```python
import torch

def _softmax(x, axis=-1):
    return torch.softmax(x, dim=axis)
def _gelu(x):
    return torch.nn.functional.gelu(x, approximate="tanh")
def _silu(x):
    return torch.nn.functional.silu(x)
def _sigmoid(x):
    return torch.sigmoid(x)
def _layernorm(x, axis=-1, eps=1e-5):
    m = x.mean(dim=axis, keepdim=True)
    v = x.var(dim=axis, keepdim=True, unbiased=False)
    return (x - m) / torch.sqrt(v + eps)
def _scatter_add(tgt, idx, src, axis=0):
    return tgt.clone().index_add_(axis, idx, src)
def _segment_sum(src, seg, n):
    out = torch.zeros((n,) + src.shape[1:], dtype=src.dtype)
    return out.index_add_(0, seg, src)
def _pad(x, pw):
    flat = tuple(v for pair in reversed(pw) for v in pair)
    return torch.nn.functional.pad(x, flat)

kernel_name = 'sequential_preLN__sliding_block_cached__dense_activation_silu__decode'

def setup_inputs():

    _w = (lambda a: (lambda t: t.to(torch.bfloat16) if t.is_floating_point() else t)(torch.as_tensor(a)))
    def _A_setup():
        B, Sq, D = 2, 1, 512
        Hq, Hkv, Sk, Dh = 32, 8, 8192, 128
        assert Hq % Hkv == 0, (Hq, Hkv)
        return {
            "x": _w((lambda *s: torch.randn(*s, dtype=torch.bfloat16) * 0.05)(B, Sq, D)),
            "k_cache": _w((lambda *s: torch.randn(*s, dtype=torch.bfloat16) * 3.2)(B, Hkv, Sk, Dh)),
            "v_cache": _w((lambda *s: torch.randn(*s, dtype=torch.bfloat16) * 0.8)(B, Hkv, Sk, Dh)),
            "wq": _w((lambda *s: torch.randn(*s, dtype=torch.bfloat16) * 3.2)(D, Hq * Dh) * (D ** -0.5)),
            "wo": _w((lambda *s: torch.randn(*s, dtype=torch.bfloat16) * 0.8)(Hq * Dh, D) * ((Hq * Dh) ** -0.5)),
        }
    _A_in = _A_setup()

    def _B_setup():
        B, S, D, F = 2, 1, 512, 1792
        return {
            "x": _w((lambda *s: torch.randn(*s, dtype=torch.bfloat16) * 0.05)(B, S, D)),
            "w1": _w((lambda *s: torch.randn(*s, dtype=torch.bfloat16) * 3.2)(D, F) * (D ** -0.5)),
            "w2": _w((lambda *s: torch.randn(*s, dtype=torch.bfloat16) * 0.4)(F, D) * (F ** -0.5)),
        }
    _B_in = _B_setup()

    return {
        "A_x": _A_in["x"],
        "A_k_cache": _A_in["k_cache"],
        "A_v_cache": _A_in["v_cache"],
        "A_wq": _A_in["wq"],
        "A_wo": _A_in["wo"],
        "B_x": _B_in["x"],
        "B_w1": _B_in["w1"],
        "B_w2": _B_in["w2"],
    }

def reference(A_x, A_k_cache, A_v_cache, A_wq, A_wo, B_x, B_w1, B_w2):
    def _A_ref(x, k_cache, v_cache, wq, wo):
        B, Sq, D = x.shape
        Hq, Dh = 32, 128
        Hkv, Sk = k_cache.shape[1], k_cache.shape[2]
        W = min(4096, max(256, Sk // 4))
        rep = Hq // Hkv
        q = (lambda x, *d: x.permute(*d))((x @ wq).reshape(B, Sq, Hq, Dh), 0, 2, 1, 3)
        k = (lambda x, n, axis: torch.repeat_interleave(x, n, dim=axis))(k_cache[:, :, Sk - W:, :], rep, axis=1)
        v = (lambda x, n, axis: torch.repeat_interleave(x, n, dim=axis))(v_cache[:, :, Sk - W:, :], rep, axis=1)
        scores = torch.einsum("bhqd,bhkd->bhqk", q, k) * (Dh ** -0.5)
        p = _softmax(scores, axis=-1)
        o = torch.einsum("bhqk,bhkd->bhqd", p, v)
        return (lambda x, *d: x.permute(*d))(o, 0, 2, 1, 3).reshape(B, Sq, Hq * Dh) @ wo

    def _B_ref(x, w1, w2):
        h = torch.einsum("bsd,df->bsf", x, w1)
        h = _silu(h)
        out = torch.einsum("bsf,fd->bsd", h, w2)
        return out

    x = A_x
    h = x + _A_ref(_layernorm(x, axis=-1), A_k_cache, A_v_cache, A_wq, A_wo)
    h2 = h + _B_ref(_layernorm(h, axis=-1), B_w1, B_w2)
    return h2
```

```python
def vr(base, n=1):
    return f"v{base}" if n == 1 else f"v[{base}:{base + n - 1}]"


def sr(base, n=1):
    return f"s{base}" if n == 1 else f"s[{base}:{base + n - 1}]"


class Asm:
    def __init__(self):
        self.lines = []
        self.pos = 0
        self.vw = {}
        self.sw = {}
        self.mfma_c = {}
        self.st_data = {}
        self.nlabel = 0

    def raw(self, text, slots=1):
        self.lines.append("    " + text)
        self.pos += slots

    def comment(self, text):
        self.lines.append("    ; " + text)

    def label(self, name):
        self.lines.append(name + ":")

    def newlabel(self, stem):
        self.nlabel += 1
        return f"L_{stem}_{self.nlabel}"

    def nop(self, n):
        while n > 0:
            k = min(n, 16)
            self.raw(f"s_nop {k - 1}", k)
            n -= k

    def _need(self, prod_pos, ws):
        have = self.pos - prod_pos - 1
        if have < ws:
            self.nop(ws - have)

    def fence(self, n=12):
        last = max([p for p, _ in self.vw.values()] + list(self.sw.values()) + [-100])
        self._need(last, n)

    def valu(self, text, dst=(), src=(), kind="valu", dpp=(), ssrc=(), sdst=(), perm=()):
        for r in src:
            if r in self.vw:
                p, k = self.vw[r]
                if k == "trans" and kind != "trans":
                    self._need(p, 1)
                elif k == "mfma":
                    self._need(p, 8)
        for r in dst:
            if r in self.vw and self.vw[r][1] == "mfma":
                self._need(self.vw[r][0], 8)
            if r in self.mfma_c:
                self._need(self.mfma_c[r], 3)
            if r in self.st_data:
                self._need(self.st_data[r], 2)
        for r in list(dpp) + list(perm):
            if r in self.vw:
                p, k = self.vw[r]
                self._need(p, 8 if k == "mfma" else 2)
        for s in ssrc:
            if s in self.sw:
                self._need(self.sw[s], 2)
        self.raw(text)
        for r in dst:
            self.vw[r] = (self.pos - 1, kind)
        for s in sdst:
            self.sw[s] = self.pos - 1

    def mfma16(self, d, a, b, c):
        for r in list(range(a, a + 4)) + list(range(b, b + 4)):
            if r in self.vw:
                p, k = self.vw[r]
                self._need(p, 8 if k == "mfma" else 2)
        if c is not None:
            for r in range(c, c + 4):
                if r in self.vw:
                    p, k = self.vw[r]
                    if k == "mfma":
                        if c != d:
                            self._need(p, 6)
                    else:
                        self._need(p, 2)
        for r in range(d, d + 4):
            if r in self.st_data:
                self._need(self.st_data[r], 2)
            if c != d and r in self.vw and self.vw[r][1] == "mfma":
                self._need(self.vw[r][0], 8)
        cs = "0" if c is None else vr(c, 4)
        self.raw(f"v_mfma_f32_16x16x32_bf16 {vr(d, 4)}, {vr(a, 4)}, {vr(b, 4)}, {cs}")
        for r in range(d, d + 4):
            self.vw[r] = (self.pos - 1, "mfma")
        if c is not None:
            for r in range(c, c + 4):
                self.mfma_c[r] = self.pos - 1

    def mem(self, text, src=(), dst=(), ssrc=(), wide_store=()):
        for r in list(src) + list(dst):
            if r in self.vw:
                p, k = self.vw[r]
                if k == "mfma":
                    self._need(p, 8)
                elif k == "trans":
                    self._need(p, 1)
        for s in ssrc:
            if s in self.sw:
                self._need(self.sw[s], 5)
        self.raw(text)
        for r in dst:
            self.vw.pop(r, None)
        for r in wide_store:
            self.st_data[r] = self.pos - 1

    def op2(self, op, d, a, b):
        src = [b] + ([a] if isinstance(a, int) else [])
        at = f"v{a}" if isinstance(a, int) else a
        ss = [a] if (isinstance(a, str) and a.startswith("s")) else []
        self.valu(f"{op} v{d}, {at}, v{b}", dst=[d], src=src, ssrc=ss)

    def op1(self, op, d, a, kind="valu"):
        src = [a] if isinstance(a, int) else []
        at = f"v{a}" if isinstance(a, int) else a
        ss = [a] if (isinstance(a, str) and a.startswith("s")) else []
        self.valu(f"{op} v{d}, {at}", dst=[d], src=src, kind=kind, ssrc=ss)

    def op3(self, op, d, a, b, c):
        src = [x for x in (a, b, c) if isinstance(x, int)]
        t = lambda x: f"v{x}" if isinstance(x, int) else x
        ss = [x for x in (a, b, c) if isinstance(x, str) and x.startswith("s")]
        self.valu(f"{op} v{d}, {t(a)}, {t(b)}, {t(c)}", dst=[d], src=src, ssrc=ss)

    def op2e(self, op, d, a, b):
        src = [x for x in (a, b) if isinstance(x, int)]
        t = lambda x: f"v{x}" if isinstance(x, int) else x
        ss = [x for x in (a, b) if isinstance(x, str) and x.startswith("s")]
        self.valu(f"{op} v{d}, {t(a)}, {t(b)}", dst=[d], src=src, ssrc=ss)

    def dpp(self, op, d, a, b, ctrl):
        self.valu(f"{op}_dpp v{d}, v{a}, v{b} {ctrl} row_mask:0xf bank_mask:0xf",
                  dst=[d], src=[b], dpp=[a])

    def swap16(self, a, b):
        self.valu(f"v_permlane16_swap_b32 v{a}, v{b}", dst=[a, b], perm=[a, b])

    def swap32(self, a, b):
        self.valu(f"v_permlane32_swap_b32 v{a}, v{b}", dst=[a, b], perm=[a, b])

    def cndmask(self, d, f, t, mask):
        src = [x for x in (f, t) if isinstance(x, int)]
        tt = lambda x: f"v{x}" if isinstance(x, int) else x
        self.valu(f"v_cndmask_b32_e64 v{d}, {tt(f)}, {tt(t)}, {mask}", dst=[d], src=src, ssrc=[mask])

    def cmp(self, op, mask, a, b):
        src = [x for x in (a, b) if isinstance(x, int)]
        t = lambda x: f"v{x}" if isinstance(x, int) else x
        self.valu(f"{op}_e64 {mask}, {t(a)}, {t(b)}", src=src, sdst=[mask])

    def allreduce(self, op, vals, steps, tmps):
        for st in steps:
            if st in ("x16", "x32"):
                for v, t in zip(vals, tmps):
                    self.op1("v_mov_b32", t, v)
                for v, t in zip(vals, tmps):
                    (self.swap16 if st == "x16" else self.swap32)(v, t)
                for v, t in zip(vals, tmps):
                    self.op2(op, v, v, t)
            else:
                for v in vals:
                    self.dpp(op, v, v, v, st)

    def text(self):
        return "\n".join(self.lines) + "\n"
```

```python
import sys
from asmlib import Asm, vr, sr

NAME = "sequential_preLN__sliding_block_cached__dense_activation_silu__decode"

STRIDE = 16384
E1 = 0
E2O = 1024
E3A = 3072
E5 = 7168
LSE = 8960
E3B = 9216
WS_BYTES = 256 * STRIDE
TS_BASE = WS_BYTES
WS_SIZE_DBG = WS_BYTES + 256 * 8 * 128

L_Q = 0
L_OP = 1024
L_ST = 9216
L_G = 9344
LDS_BYTES = 9472

LOG2E = "0x3fb8aa3b"
SCALE = "0x3db504f3"
INV512 = "0x3b000000"
EPS = "0x3727c5ac"
NFFN = 112
POLL_MAX = 1 << 15

S_WG, S_WAVE, S_G, S_IDX = 2, 3, 4, 5
P_X, P_K, P_V, P_WQ, P_WO, P_W1, P_W2, P_OUT, P_DBG, P_WS = 16, 18, 20, 22, 24, 28, 30, 32, 34, 36
S_CNT = 38
R_WS, R_A, R_B, R_C, R_D = 40, 44, 48, 52, 56
S_SELLO, S_SELHI = 60, 61
S_MASK = 62
S_EXEC = 78
S_TS = 80


def gen(debug=False, opts=None):
    opts = opts or {}
    a = Asm()
    nstamp = [0]

    def stamp():
        if debug:
            k = nstamp[0]
            assert k < 10
            a.raw(f"s_memrealtime {sr(S_TS + 2 * k, 2)}")
            nstamp[0] += 1

    def dump_stamps():
        if not debug:
            return
        n = nstamp[0]
        a.raw("s_waitcnt vmcnt(0) lgkmcnt(0)")
        a.raw("s_mov_b64 exec, 1")
        a.raw(f"s_lshl_b32 s6, s{S_WG}, 3")
        a.raw(f"s_add_u32 s6, s6, s{S_WAVE}")
        a.raw("s_lshl_b32 s6, s6, 7")
        a.raw(f"s_add_u32 s6, s6, {TS_BASE}")
        a.op1("v_mov_b32", 1, "s6")
        for k in range(n):
            a.op1("v_mov_b32", 2, f"s{S_TS + 2 * k}")
            a.op1("v_mov_b32", 3, f"s{S_TS + 2 * k + 1}")
            a.mem(f"buffer_store_dwordx2 v[2:3], v1, {sr(R_WS, 4)}, 0 offen offset:{8 * k}", src=[1, 2, 3])
            a.nop(2)
        nstamp[0] = 0

    def srd(dst, ptr, size):
        a.raw(f"s_mov_b32 s{dst}, s{ptr}")
        a.raw(f"s_and_b32 s{dst + 1}, s{ptr + 1}, 0xffff")
        a.raw(f"s_mov_b32 s{dst + 2}, {size}")
        a.raw(f"s_mov_b32 s{dst + 3}, 0x20000")

    def srd_ws():
        srd(R_WS, P_WS, WS_SIZE_DBG if debug else WS_BYTES)

    def bload(d, n, off, srdb, soff="0", imm=0, flags=""):
        op = {1: "buffer_load_dword", 2: "buffer_load_dwordx2", 4: "buffer_load_dwordx4"}[n]
        t = f"{op} {vr(d, n)}, v{off}, {sr(srdb, 4)}, {soff} offen"
        if imm:
            t += f" offset:{imm}"
        if flags:
            t += " " + flags
        a.mem(t, src=[off], dst=list(range(d, d + n)))

    def bstore(s, n, off, srdb, soff="0", imm=0, flags="", op=None):
        op = op or {1: "buffer_store_dword", 2: "buffer_store_dwordx2", 4: "buffer_store_dwordx4"}[n]
        t = f"{op} {vr(s, n)}, v{off}, {sr(srdb, 4)}, {soff} offen"
        if imm:
            t += f" offset:{imm}"
        if flags:
            t += " " + flags
        regs = list(range(s, s + n))
        a.mem(t, src=[off] + regs, wide_store=regs if n == 4 else ())

    def stream_flags():
        return opts.get("stream_flags", "")

    def poll(issue, regs, tmp, empty="-1", want=None):
        lp = a.newlabel("poll")
        dn = a.newlabel("polldone")
        a.raw(f"s_mov_b32 s{S_CNT}, {POLL_MAX}")
        a.label(lp)
        issue()
        a.raw("s_waitcnt vmcnt(0) lgkmcnt(0)")
        if want is not None:
            a.valu(f"v_cmp_ne_u32_e32 vcc, {want}, v{regs[0]}", src=[regs[0]], sdst=["vcc"])
        else:
            regs = list(regs)
            cur = regs[0]
            rest = regs[1:]
            first = True
            while rest:
                if len(rest) >= 2:
                    a.op3("v_max3_u32", tmp, cur, rest[0], rest[1])
                    rest = rest[2:]
                else:
                    a.op2("v_max_u32", tmp, cur, rest[0])
                    rest = rest[1:]
                cur = tmp
            a.valu(f"v_cmp_eq_u32_e32 vcc, {empty}, v{cur}", src=[cur], sdst=["vcc"])
        a.raw(f"s_cbranch_vccz {dn}")
        a.raw(f"s_sub_u32 s{S_CNT}, s{S_CNT}, 1")
        a.raw(f"s_cmp_eq_u32 s{S_CNT}, 0")
        a.raw(f"s_cbranch_scc0 {lp}")
        a.label(dn)

    def perm_half(raw, out):
        for x in range(4):
            for j in range(4):
                lo = raw + (2 * x) * 4 + j
                hi = raw + (2 * x + 1) * 4 + j
                a.op3("v_perm_b32", out + (2 * j) * 4 + x, hi, lo, f"s{S_SELLO}")
                a.op3("v_perm_b32", out + (2 * j + 1) * 4 + x, hi, lo, f"s{S_SELHI}")

    def round_bf16(d, s):
        a.op2e("v_cvt_pk_bf16_f32", d, s, s)
        a.op2("v_lshlrev_b32", d, "16", d)

    def layernorm(R, A, T):
        V = T
        S, S2, Q, Q2, t0, t1, M, RC = T + 16, T + 17, T + 18, T + 19, T + 20, T + 21, T + 22, T + 23
        for d in range(8):
            a.op2("v_lshlrev_b32", V + 2 * d, "16", R + d)
            a.op2("v_and_b32", V + 2 * d + 1, "0xffff0000", R + d)
        a.op2("v_add_f32", S, V + 0, V + 1)
        a.op2("v_add_f32", S2, V + 2, V + 3)
        for i in range(4, 16, 2):
            a.op2("v_add_f32", S, S, V + i)
            a.op2("v_add_f32", S2, S2, V + i + 1)
        a.op2("v_add_f32", S, S, S2)
        steps = ["quad_perm:[1,0,3,2]", "quad_perm:[2,3,0,1]", "row_half_mirror", "x16", "x32"]
        a.allreduce("v_add_f32", [S], steps, [t0])
        a.op2("v_mul_f32", S, INV512, S)
        a.op2("v_sub_f32", t0, V + 0, S)
        a.op2("v_sub_f32", t1, V + 1, S)
        a.op2("v_mul_f32", Q, t0, t0)
        a.op2("v_mul_f32", Q2, t1, t1)
        for i in range(2, 16, 2):
            a.op2("v_sub_f32", t0, V + i, S)
            a.op2("v_sub_f32", t1, V + i + 1, S)
            a.op2("v_fmac_f32", Q, t0, t0)
            a.op2("v_fmac_f32", Q2, t1, t1)
        a.op2("v_add_f32", Q, Q, Q2)
        a.allreduce("v_add_f32", [Q], steps, [t0])
        round_bf16(M, S)
        a.op2("v_mul_f32", Q, INV512, Q)
        round_bf16(Q, Q)
        a.op2("v_add_f32", Q, EPS, Q)
        round_bf16(Q, Q)
        a.op1("v_sqrt_f32", Q, Q, kind="trans")
        round_bf16(Q, Q)
        a.op1("v_rcp_f32", RC, Q, kind="trans")
        for d in range(8):
            a.op2("v_sub_f32", V + 2 * d, V + 2 * d, M)
            a.op2("v_sub_f32", V + 2 * d + 1, V + 2 * d + 1, M)
        for d in range(8):
            a.op2e("v_cvt_pk_bf16_f32", A + d, V + 2 * d, V + 2 * d + 1)
        for d in range(8):
            a.op2("v_lshlrev_b32", V + 2 * d, "16", A + d)
            a.op2("v_and_b32", V + 2 * d + 1, "0xffff0000", A + d)
        for i in range(16):
            a.op2("v_mul_f32", V + i, V + i, RC)
        for d in range(8):
            a.op2e("v_cvt_pk_bf16_f32", A + d, V + 2 * d, V + 2 * d + 1)

    def narrow_masks():
        a.op2("v_lshrrev_b32", 2, "1", 0)
        a.op2("v_and_b32", 2, "3", 2)
        for r in (1, 2, 3):
            a.cmp("v_cmp_eq_u32", sr(S_MASK + 2 * (r - 1), 2), str(r), 2)
        a.op2("v_lshrrev_b32", 2, "4", 0)
        a.op2("v_lshrrev_b32", 3, "3", 0)
        a.op2("v_xor_b32", 2, 2, 3)
        a.op2("v_and_b32", 2, "1", 2)
        a.cmp("v_cmp_eq_u32", sr(S_MASK + 6, 2), "0", 2)

    def narrow_mfma(A, B0, B1, ACC, OUT, TMP):
        for c in range(8):
            a.mfma16(ACC + 4 * c, A, B0 + 4 * c, None)
        for c in range(8):
            a.mfma16(ACC + 4 * c, A + 4, B1 + 4 * c, ACC + 4 * c)
        for c in range(8):
            a.cndmask(OUT + c, ACC + 4 * c, ACC + 4 * c + 1, sr(S_MASK, 2))
            a.cndmask(OUT + c, OUT + c, ACC + 4 * c + 2, sr(S_MASK + 2, 2))
            a.cndmask(OUT + c, OUT + c, ACC + 4 * c + 3, sr(S_MASK + 4, 2))
            a.cndmask(OUT + c, "0", OUT + c, sr(S_MASK + 6, 2))
        vals = [OUT + c for c in range(8)]
        a.allreduce("v_add_f32", vals, ["row_ror:2", "row_ror:4", "row_ror:8", "x16"],
                    [TMP + c for c in range(8)])

    def wide_masks():
        a.op2("v_lshrrev_b32", 2, "1", 0)
        a.op2("v_and_b32", 2, "7", 2)
        for k in range(8):
            a.cmp("v_cmp_eq_u32", sr(S_MASK + 2 * k, 2), str(k), 2)

    def wide_mfma(P, AM, B0, B1, ACC):
        for c in range(4):
            for half in range(2):
                for x in range(2):
                    a.cndmask(AM + 4 * c + 2 * half + x, "0", P + x, sr(S_MASK + 2 * (2 * c + half), 2))
        for pair, B in ((0, B0), (1, B1)):
            for ch in range(2):
                d = ACC + (pair * 2 + ch) * 4
                for c in range(4):
                    a.mfma16(d, AM + 4 * c, B + 4 * (ch * 4 + c), None if c == 0 else d)

    def wide_publish(ACC, VOFF, inbox_off_sgpr):
        for pair in range(2):
            for ch in range(2):
                d = ACC + (pair * 2 + ch) * 4
                for r in range(4):
                    a.op2("v_min_u32", d + r, "-2", d + r)
        for pair in range(2):
            for ch in range(2):
                d = ACC + (pair * 2 + ch) * 4
                a.raw(f"s_add_u32 s6, s{inbox_off_sgpr}, {(pair * 128 + ch * 4) * STRIDE}")
                bstore(d, 4, VOFF, R_WS, soff="s6", flags="sc1")

    a.raw("s_cmp_ge_u32 s2, 256")
    a.raw("s_cbranch_scc1 L_end")
    a.raw("s_load_dwordx16 s[16:31], s[0:1], 0")
    a.raw("s_load_dwordx4 s[32:35], s[0:1], 64")
    a.raw("s_load_dwordx2 s[36:37], s[0:1], 80")
    a.op2("v_lshrrev_b32", 1, "6", 0)
    a.op2("v_and_b32", 0, "63", 0)
    a.nop(1)
    a.valu("v_readfirstlane_b32 s3, v1", src=[1], sdst=["s3"])
    a.raw("s_and_b32 s4, s2, 7")
    a.raw("s_lshr_b32 s5, s2, 3")
    a.raw(f"s_mov_b32 s{S_SELLO}, 0x05040100")
    a.raw(f"s_mov_b32 s{S_SELHI}, 0x07060302")
    a.nop(2)
    a.raw("s_cmp_lt_u32 s3, 4")
    a.raw("s_cbranch_scc1 L_att")
    a.raw("s_cmp_eq_u32 s3, 4")
    a.raw("s_cbranch_scc1 L_w4")
    a.raw("s_cmp_eq_u32 s3, 5")
    a.raw("s_cbranch_scc1 L_w5")
    a.raw("s_cmp_eq_u32 s3, 6")
    a.raw("s_cbranch_scc1 L_w6")
    a.raw("s_branch L_w7")

    a.label("L_att")
    stamp()
    KOFF, VOFF, QOFF = 4, 5, 6
    KR, VRAW, QR, SACC, PR, PM, OACC = 16, 48, 80, 96, 104, 108, 8
    a.op2("v_and_b32", 2, "15", 0)
    a.op2("v_lshrrev_b32", 3, "4", 0)
    a.op2("v_lshlrev_b32", 7, "8", 2)
    a.op3("v_lshl_add_u32", KOFF, 3, "4", 7)
    a.op2("v_lshlrev_b32", 7, "10", 3)
    a.op3("v_lshl_add_u32", VOFF, 2, "4", 7)
    a.raw("s_lshr_b32 s6, s5, 4")
    a.raw("s_and_b32 s7, s5, 15")
    a.raw("s_lshl_b32 s8, s6, 3")
    a.raw("s_add_u32 s8, s8, s4")
    a.raw("s_lshl_b32 s8, s8, 13")
    a.raw("s_lshl_b32 s9, s7, 7")
    a.raw("s_add_u32 s8, s8, s9")
    a.raw("s_lshl_b32 s9, s3, 5")
    a.raw("s_add_u32 s8, s8, s9")
    a.raw("s_add_u32 s8, s8, 6144")
    a.raw("s_lshl_b32 s8, s8, 8")
    a.raw("s_add_u32 s9, s8, 4096")
    a.raw("s_waitcnt lgkmcnt(0)")
    srd(R_A, P_K, 0x2000000)
    srd(R_B, P_V, 0x2000000)
    srd_ws()
    a.raw("s_barrier")
    for T in range(2):
        for s in range(4):
            bload(KR + T * 16 + s * 4, 4, KOFF, R_A, soff=f"s{8 + T}", imm=s * 64, flags=stream_flags())
    for i in range(8):
        bload(VRAW + i * 4, 4, VOFF, R_B, soff=f"s{8 + i // 4}", imm=(i % 4) * 256, flags=stream_flags())
    a.op2("v_and_b32", 7, "3", 0)
    a.op2("v_lshlrev_b32", 7, "8", 7)
    a.op3("v_lshl_add_u32", QOFF, 3, "4", 7)
    a.op2("v_lshrrev_b32", 7, "2", 0)
    a.op2("v_and_b32", 7, "3", 7)
    for c in range(4):
        a.cmp("v_cmp_eq_u32", sr(S_MASK + 2 * c, 2), str(c), 7)
    a.raw(f"s_mov_b32 s10, {SCALE}")
    a.raw(f"s_mov_b32 s11, {LOG2E}")
    a.raw("s_barrier")
    stamp()
    for s in range(4):
        a.mem(f"ds_read_b128 {vr(QR + 4 * s, 4)}, v{QOFF} offset:{L_Q + 64 * s}", src=[QOFF],
              dst=list(range(QR + 4 * s, QR + 4 * s + 4)))
    a.raw("s_waitcnt vmcnt(8) lgkmcnt(0)")
    stamp()
    for s in range(4):
        for T in range(2):
            a.mfma16(SACC + 4 * T, KR + T * 16 + s * 4, QR + 4 * s, None if s == 0 else SACC + 4 * T)
    SV = QR
    PK = QR + 8
    for d in range(4):
        a.op2e("v_cvt_pk_bf16_f32", PK + d, SACC + 2 * d, SACC + 2 * d + 1)
    for d in range(4):
        a.op2("v_lshlrev_b32", SV + 2 * d, "16", PK + d)
        a.op2("v_and_b32", SV + 2 * d + 1, "0xffff0000", PK + d)
    for i in range(8):
        a.op2("v_mul_f32", SV + i, "s10", SV + i)
    for d in range(4):
        a.op2e("v_cvt_pk_bf16_f32", PK + d, SV + 2 * d, SV + 2 * d + 1)
    for d in range(4):
        a.op2("v_lshlrev_b32", SV + 2 * d, "16", PK + d)
        a.op2("v_and_b32", SV + 2 * d + 1, "0xffff0000", PK + d)
    for i in range(8):
        a.op2("v_mul_f32", SV + i, "s11", SV + i)
    MX, LS, TT = QR + 12, QR + 13, QR + 14
    a.op3("v_max3_f32", MX, SV + 0, SV + 1, SV + 2)
    a.op3("v_max3_f32", TT, SV + 3, SV + 4, SV + 5)
    a.op3("v_max3_f32", MX, MX, SV + 6, SV + 7)
    a.op2("v_max_f32", MX, MX, TT)
    a.allreduce("v_max_f32", [MX], ["x16", "x32"], [TT])
    for i in range(8):
        a.op2("v_sub_f32", SV + i, SV + i, MX)
    for i in range(8):
        a.op1("v_exp_f32", SV + i, SV + i, kind="trans")
    for d in range(4):
        a.op2e("v_cvt_pk_bf16_f32", PR + d, SV + 2 * d, SV + 2 * d + 1)
    a.op2("v_add_f32", LS, SV + 0, SV + 1)
    a.op2("v_add_f32", TT, SV + 2, SV + 3)
    a.op2("v_add_f32", LS, LS, SV + 4)
    a.op2("v_add_f32", TT, TT, SV + 5)
    a.op2("v_add_f32", LS, LS, SV + 6)
    a.op2("v_add_f32", TT, TT, SV + 7)
    a.op2("v_add_f32", LS, LS, TT)
    for c in range(4):
        for x in range(4):
            a.cndmask(PM + 4 * c + x, "0", PR + x, sr(S_MASK + 2 * c, 2))
    a.allreduce("v_add_f32", [LS], ["x16", "x32"], [TT])
    a.raw("s_lshl_b32 s6, s3, 3")
    a.op2("v_lshlrev_b32", 7, "5", 0)
    a.op2("v_add_u32", 7, "s6", 7)
    a.raw("s_mov_b64 exec, 15")
    a.mem(f"ds_write_b64 v7, {vr(MX, 2)} offset:{L_ST}", src=[7, MX, LS])
    a.raw("s_mov_b64 exec, -1")
    a.raw("s_waitcnt vmcnt(0)")
    stamp()
    perm_half(VRAW, KR)
    for ch in range(2):
        for c in range(4):
            a.mfma16(OACC + 4 * ch, KR + 4 * (ch * 4 + c), PM + 4 * c, None if c == 0 else OACC + 4 * ch)
    a.raw("s_lshl_b32 s6, s3, 11")
    a.op2("v_lshlrev_b32", 7, "4", 0)
    a.op2("v_add_u32", 2, "s6", 7)
    for ch in range(2):
        a.mem(f"ds_write_b128 v2, {vr(OACC + 4 * ch, 4)} offset:{L_OP + 1024 * ch}",
              src=[2] + list(range(OACC + 4 * ch, OACC + 4 * ch + 4)))
    a.raw("s_waitcnt lgkmcnt(0)")
    a.raw("s_barrier")
    a.raw("s_cmp_ge_u32 s3, 2")
    a.raw("s_cbranch_scc1 L_att_done")
    OW, STV = 16, 32
    a.raw("s_lshl_b32 s6, s3, 10")
    a.op2("v_add_u32", 2, "s6", 7)
    for w in range(4):
        a.mem(f"ds_read_b128 {vr(OW + 4 * w, 4)}, v2 offset:{L_OP + 2048 * w}", src=[2],
              dst=list(range(OW + 4 * w, OW + 4 * w + 4)))
    a.op2("v_and_b32", 3, "3", 0)
    a.op2("v_lshlrev_b32", 4, "5", 3)
    for k in range(2):
        a.mem(f"ds_read_b128 {vr(STV + 4 * k, 4)}, v4 offset:{L_ST + 16 * k}", src=[4],
              dst=list(range(STV + 4 * k, STV + 4 * k + 4)))
    a.op2("v_lshrrev_b32", 5, "2", 0)
    a.op2("v_and_b32", 5, "3", 5)
    a.op3("v_lshl_add_u32", 5, 3, "3", 5)
    a.op2("v_lshlrev_b32", 5, "17", 5)
    a.raw("s_lshl_b32 s6, s3, 2")
    a.raw("s_lshl_b32 s6, s6, 3")
    a.raw("s_add_u32 s6, s6, s4")
    a.raw("s_lshl_b32 s6, s6, 14")
    a.raw("s_lshl_b32 s7, s5, 6")
    a.raw("s_add_u32 s7, s7, s6")
    a.raw(f"s_add_u32 s7, s7, {E2O}")
    a.raw("s_lshl_b32 s8, s5, 2")
    a.raw("s_add_u32 s8, s8, s6")
    a.raw(f"s_add_u32 s8, s8, {LSE}")
    a.op2("v_lshrrev_b32", 6, "4", 0)
    a.op3("v_lshl_add_u32", 6, 6, "4", 5)
    a.raw("s_waitcnt lgkmcnt(0)")
    Mx, Lx, E0 = 40, 41, 42
    a.op3("v_max3_f32", Mx, STV + 0, STV + 2, STV + 4)
    a.op2("v_max_f32", Mx, Mx, STV + 6)
    for w in range(4):
        a.op2("v_sub_f32", E0 + w, STV + 2 * w, Mx)
    for w in range(4):
        a.op1("v_exp_f32", E0 + w, E0 + w, kind="trans")
    a.op2("v_mul_f32", Lx, E0 + 0, STV + 1)
    for w in range(1, 4):
        a.op2("v_fmac_f32", Lx, E0 + w, STV + 2 * w + 1)
    a.op1("v_rcp_f32", 46, Lx, kind="trans")
    a.op1("v_log_f32", 47, Lx, kind="trans")
    for w in range(4):
        a.op2("v_mul_f32", E0 + w, E0 + w, 46)
    a.op2("v_add_f32", 47, 47, Mx)
    for r in range(4):
        a.op2("v_mul_f32", 48 + r, E0 + 0, OW + r)
    for w in range(1, 4):
        for r in range(4):
            a.op2("v_fmac_f32", 48 + r, E0 + w, OW + 4 * w + r)
    for r in range(4):
        a.op2("v_min_u32", 48 + r, "-2", 48 + r)
    a.op2("v_min_u32", 47, "-2", 47)
    bstore(48, 4, 6, R_WS, soff="s7", flags="sc1")
    a.raw("s_mov_b64 exec, 0xffff")
    bstore(47, 1, 5, R_WS, soff="s8", flags="sc1")
    a.raw("s_mov_b64 exec, -1")
    stamp()
    a.label("L_att_done")
    dump_stamps()
    a.raw("s_endpgm")

    a.label("L_w4")
    stamp()
    XR, AOP, XIN = 8, 16, 24
    RAW, PO0, PO1, ACC = 32, 96, 32, 64
    AOFF, WOFF = 4, 5
    a.op2("v_lshrrev_b32", 2, "4", 0)
    a.op2("v_and_b32", 3, "7", 0)
    a.op3("v_lshl_add_u32", 3, 2, "3", 3)
    a.op2("v_lshlrev_b32", 3, "4", 3)
    a.op2("v_and_b32", 6, "8", 0)
    a.op3("v_lshl_add_u32", AOFF, 6, "7", 3)
    a.op2("v_lshrrev_b32", 3, "1", 0)
    a.op2("v_and_b32", 3, "7", 3)
    a.op3("v_lshl_add_u32", 3, 2, "3", 3)
    a.op2("v_lshlrev_b32", 3, "16", 3)
    a.op2("v_and_b32", 6, "1", 0)
    a.op3("v_lshl_add_u32", WOFF, 6, "4", 3)
    a.raw("s_lshl_b32 s8, s4, 10")
    a.raw("s_lshl_b32 s9, s5, 5")
    a.raw("s_add_u32 s8, s8, s9")
    a.raw("s_waitcnt lgkmcnt(0)")
    srd(R_A, P_X, 2048)
    srd(R_B, P_WQ, 512 * 8192)
    for s in range(2):
        bload(XR + 4 * s, 4, AOFF, R_A, imm=512 * s)
    for s in range(2):
        for i in range(8):
            a.raw(f"s_add_u32 s9, s8, {(s * 256 + i) * 8192}")
            bload(RAW + (s * 8 + i) * 4, 4, WOFF, R_B, soff="s9", flags=stream_flags())
    a.raw("s_barrier")
    srd_ws()
    srd(R_C, P_DBG, 256)
    srd(R_D, P_OUT, 2048)
    a.raw("s_lshr_b32 s10, s2, 7")
    a.raw("s_lshl_b32 s10, s10, 8")
    a.raw("s_and_b32 s11, s2, 127")
    a.raw("s_add_u32 s10, s10, s11")
    a.raw("s_lshl_b32 s10, s10, 1")
    a.op1("v_mov_b32", 7, "s10")
    for x in range(2):
        for b in range(2):
            a.mem(f"buffer_load_ushort v{XIN + 2 * x + b}, v7, {sr(R_A, 4)}, 0 offen offset:{b * 1024 + x * 256}",
                  src=[7], dst=[XIN + 2 * x + b])
    narrow_masks()
    a.raw("s_waitcnt vmcnt(20)")
    layernorm(XR, AOP, 96)
    a.raw("s_waitcnt vmcnt(12)")
    perm_half(RAW, PO0)
    a.raw("s_waitcnt vmcnt(0)")
    stamp()
    perm_half(RAW + 32, PO1)
    QV, QT = 8, 96
    narrow_mfma(AOP, PO0, PO1, ACC, QV, QT)
    QP = 28
    for d in range(4):
        a.op2e("v_cvt_pk_bf16_f32", QP + d, QV + 2 * d, QV + 2 * d + 1)
    for d in range(4):
        a.op2("v_min_u32", QP + d, "-2", QP + d)
    for k in range(4):
        a.op2("v_lshlrev_b32", XIN + k, "16", XIN + k)
    a.op2("v_lshrrev_b32", 2, "1", 0)
    a.op2("v_lshlrev_b32", 2, "17", 2)
    a.op2("v_and_b32", 3, "1", 0)
    a.op3("v_lshl_add_u32", 2, 3, "4", 2)
    a.raw("s_lshl_b32 s8, s4, 14")
    a.raw("s_lshl_b32 s9, s5, 5")
    a.raw("s_add_u32 s8, s8, s9")
    if E1:
        a.raw(f"s_add_u32 s8, s8, {E1}")
    stamp()
    a.op2("v_lshlrev_b32", 3, "2", 0)
    a.raw("s_mov_b32 s9, 0x01010101")
    poll(lambda: bload(6, 1, 3, R_C, flags="sc1"), [6], 7, want="s9")
    bstore(QP, 4, 2, R_WS, soff="s8", flags="sc1")
    stamp()
    a.op2("v_lshlrev_b32", 3, "4", 0)
    a.raw("s_lshl_b32 s12, s2, 14")
    poll(lambda: bload(8, 4, 3, R_WS, soff="s12", imm=E1, flags="sc1"), [8, 9, 10, 11], 7)
    a.mem(f"ds_write_b128 v3, v[8:11] offset:{L_Q}", src=[3, 8, 9, 10, 11])
    a.raw("s_waitcnt lgkmcnt(0)")
    stamp()
    a.raw("s_barrier")
    a.raw("s_barrier")
    G0 = 32
    a.raw(f"s_add_u32 s13, s12, {E3A}")

    def issue_e3a():
        for q in range(4):
            bload(G0 + 4 * q, 4, 3, R_WS, soff="s13", imm=1024 * q if q < 4 else 0, flags="sc1")
    poll(issue_e3a, list(range(G0, G0 + 16)), 7)
    stamp()
    for r in range(4):
        a.op2("v_add_f32", G0 + r, G0 + r, G0 + 4 + r)
        a.op2("v_add_f32", G0 + 8 + r, G0 + 8 + r, G0 + 12 + r)
    for r in range(4):
        a.op2("v_add_f32", G0 + r, G0 + r, G0 + 8 + r)
    full = ["row_ror:1", "row_ror:2", "row_ror:4", "row_ror:8", "x16", "x32"]
    a.allreduce("v_add_f32", [G0 + r for r in range(4)], full, [G0 + 4 + r for r in range(4)])
    H = 48
    for r in range(4):
        round_bf16(G0 + r, G0 + r)
    for r in range(4):
        a.op2("v_add_f32", H + r, XIN + r, G0 + r)
    a.op2e("v_cvt_pk_bf16_f32", 52, H + 0, H + 2)
    a.op2e("v_cvt_pk_bf16_f32", 53, H + 1, H + 3)
    a.op2("v_and_b32", 2, "1", 0)
    a.cmp("v_cmp_eq_u32", "vcc", "1", 2)
    a.cndmask(54, 52, 53, "vcc")
    a.op2("v_min_u32", 54, "-2", 54)
    a.op2("v_lshrrev_b32", 5, "1", 0)
    a.op2("v_lshlrev_b32", 5, "14", 5)
    a.op3("v_lshl_add_u32", 5, 2, "10", 5)
    a.raw("s_lshl_b32 s8, s2, 2")
    for k in range(4):
        a.raw(f"s_add_u32 s9, s8, {(128 + 32 * k) * STRIDE + E3B}")
        if k == 3:
            a.raw("s_mov_b32 exec_hi, 0")
        bstore(54, 1, 5, R_WS, soff="s9", flags="sc1")
    a.raw("s_mov_b64 exec, -1")
    stamp()
    a.op2("v_lshlrev_b32", H + 0, "16", 52)
    a.op2("v_and_b32", H + 2, "0xffff0000", 52)
    a.op2("v_lshlrev_b32", H + 1, "16", 53)
    a.op2("v_and_b32", H + 3, "0xffff0000", 53)
    a.raw(f"s_add_u32 s13, s12, {E5}")
    for r in range(4):
        a.op1("v_mov_b32", G0 + 4 + r, "0")

    def issue_e5():
        bload(G0, 4, 3, R_WS, soff="s13", flags="sc1")
        a.raw("s_mov_b32 exec_hi, 0xffff")
        bload(G0 + 4, 4, 3, R_WS, soff="s13", imm=1024, flags="sc1")
        a.raw("s_mov_b64 exec, -1")
    poll(issue_e5, list(range(G0, G0 + 8)), 7)
    stamp()
    for r in range(4):
        a.op2("v_add_f32", G0 + r, G0 + r, G0 + 4 + r)
    a.allreduce("v_add_f32", [G0 + r for r in range(4)], full, [G0 + 4 + r for r in range(4)])
    for r in range(4):
        round_bf16(G0 + r, G0 + r)
    for r in range(4):
        a.op2("v_add_f32", G0 + r, H + r, G0 + r)
    for r in range(4):
        a.op2e("v_cvt_pk_bf16_f32", G0 + r, G0 + r, G0 + r)
    a.op1("v_mov_b32", 7, "s10")
    a.raw("s_mov_b64 exec, 1")
    for x in range(2):
        for b in range(2):
            bstore(G0 + 2 * x + b, 1, 7, R_D, imm=b * 1024 + x * 256, op="buffer_store_short")
    a.raw("s_mov_b64 exec, -1")
    stamp()
    dump_stamps()
    a.raw("s_endpgm")

    a.label("L_w5")
    WOFF, GOFF, LOFF, POFF = 4, 5, 6, 8
    RAW, PO0, PO1, ACC, AM = 32, 96, 32, 64, 80
    a.op2("v_and_b32", 2, "15", 0)
    a.op2("v_lshrrev_b32", 3, "4", 0)
    a.op2("v_lshlrev_b32", 7, "15", 3)
    a.op3("v_lshl_add_u32", WOFF, 2, "4", 7)
    a.op2("v_lshlrev_b32", 7, "6", 2)
    a.op3("v_lshl_add_u32", GOFF, 3, "4", 7)
    a.op2("v_lshlrev_b32", LOFF, "2", 2)
    a.op3("v_lshl_add_u32", 7, 2, "3", 3)
    a.op2("v_lshlrev_b32", POFF, "14", 7)
    a.raw("s_lshr_b32 s6, s5, 3")
    a.raw("s_lshl_b32 s7, s4, 2")
    a.raw("s_add_u32 s6, s6, s7")
    a.raw("s_lshl_b32 s6, s6, 7")
    a.raw("s_and_b32 s7, s5, 7")
    a.raw("s_add_u32 s6, s6, s7")
    a.raw("s_lshl_b32 s8, s6, 10")
    for k in range(1, 4):
        a.raw(f"s_add_u32 s{8 + k}, s8, {k * 8192}")
    a.raw("s_lshl_b32 s12, s2, 14")
    a.raw("s_lshl_b32 s13, s2, 4")
    a.raw(f"s_add_u32 s13, s13, {E3A}")
    wide_masks()
    a.raw("s_waitcnt lgkmcnt(0)")
    srd(R_A, P_WO, 4096 * 1024)
    srd_ws()
    a.raw("s_barrier")
    a.raw("s_barrier")
    stamp()
    for pair in range(2):
        for i in range(8):
            bload(RAW + (pair * 8 + i) * 4, 4, WOFF, R_A, soff=f"s{8 + (i & 3)}",
                  imm=(pair * 2 + (i >> 2)) * 256, flags=stream_flags())
    a.raw("s_barrier")
    a.raw("s_waitcnt vmcnt(8)")
    perm_half(RAW, PO0)
    a.raw("s_waitcnt vmcnt(0)")
    stamp()
    perm_half(RAW + 32, PO1)
    O0, O1, L0 = 12, 16, 20

    def issue_e2():
        bload(O0, 4, GOFF, R_WS, soff="s12", imm=E2O, flags="sc1")
        bload(O1, 4, GOFF, R_WS, soff="s12", imm=E2O + 1024, flags="sc1")
        a.raw(f"s_add_u32 s6, s12, {LSE}")
        bload(L0, 1, LOFF, R_WS, soff="s6", flags="sc1")
        bload(L0 + 1, 1, LOFF, R_WS, soff="s6", imm=64, flags="sc1")
    poll(issue_e2, list(range(O0, O0 + 10)), 7)
    stamp()
    row = ["row_ror:1", "row_ror:2", "row_ror:4", "row_ror:8"]
    Mb, Sb = 22, 24
    for b in range(2):
        a.op1("v_mov_b32", Mb + b, L0 + b)
    a.allreduce("v_max_f32", [Mb, Mb + 1], row, [])
    for b in range(2):
        a.op2("v_sub_f32", L0 + b, L0 + b, Mb + b)
    for b in range(2):
        a.op1("v_exp_f32", L0 + b, L0 + b, kind="trans")
    for b in range(2):
        a.op1("v_mov_b32", Sb + b, L0 + b)
    for b in range(2):
        for r in range(4):
            a.op2("v_mul_f32", O0 + 4 * b + r, O0 + 4 * b + r, L0 + b)
    a.allreduce("v_add_f32", [Sb, Sb + 1] + list(range(O0, O0 + 8)), row, [])
    for b in range(2):
        a.op1("v_rcp_f32", Sb + b, Sb + b, kind="trans")
    for b in range(2):
        for r in range(4):
            a.op2("v_mul_f32", O0 + 4 * b + r, O0 + 4 * b + r, Sb + b)
    PP = 26
    for b in range(2):
        for x in range(2):
            a.op2e("v_cvt_pk_bf16_f32", PP + 2 * b + x, O0 + 4 * b + 2 * x, O0 + 4 * b + 2 * x + 1)
    a.op2("v_and_b32", 2, "1", 0)
    a.cmp("v_cmp_eq_u32", "vcc", "1", 2)
    for x in range(2):
        a.cndmask(PP + x, PP + x, PP + 2 + x, "vcc")
    wide_mfma(PP, AM, PO0, PO1, ACC)
    wide_publish(ACC, POFF, 13)
    stamp()
    dump_stamps()
    a.raw("s_endpgm")

    a.label("L_w6")
    a.raw("s_sub_u32 s14, s2, 128")
    a.raw(f"s_cmp_ge_u32 s14, {NFFN}")
    a.raw("s_cbranch_scc1 L_end")
    a.raw("s_and_b32 s6, s14, 7")
    a.raw("s_mul_i32 s6, s6, 14")
    a.raw("s_lshr_b32 s7, s14, 3")
    a.raw("s_add_u32 s15, s6, s7")
    AOFF, WOFF = 4, 5
    HR, AOP = 8, 16
    RAW, PO0, PO1, ACC = 32, 96, 32, 64
    a.op2("v_lshrrev_b32", 2, "4", 0)
    a.op2("v_and_b32", 3, "7", 0)
    a.op3("v_lshl_add_u32", 3, 2, "3", 3)
    a.op2("v_lshlrev_b32", 3, "4", 3)
    a.op2("v_and_b32", 6, "8", 0)
    a.op3("v_lshl_add_u32", AOFF, 6, "7", 3)
    a.op2("v_lshrrev_b32", 3, "1", 0)
    a.op2("v_and_b32", 3, "7", 3)
    a.op3("v_lshl_add_u32", 3, 2, "3", 3)
    a.op2("v_mul_u32_u24", 3, str(4 * 3584), 3)
    a.op2("v_and_b32", 6, "1", 0)
    a.op3("v_lshl_add_u32", WOFF, 6, "4", 3)
    a.raw("s_lshl_b32 s8, s15, 5")
    a.raw("s_lshl_b32 s12, s2, 14")
    a.raw(f"s_add_u32 s12, s12, {E3B}")
    narrow_masks()
    a.raw("s_waitcnt lgkmcnt(0)")
    srd(R_A, P_W1, 512 * 3584)
    srd_ws()
    a.raw("s_barrier")
    a.raw("s_barrier")
    for s in range(2):
        for i in range(8):
            a.raw(f"s_add_u32 s9, s8, {(s * 256 + (i >> 1) + 128 * (i & 1)) * 3584}")
            bload(RAW + (s * 8 + i) * 4, 4, WOFF, R_A, soff="s9", flags=stream_flags())
    a.raw("s_barrier")
    a.raw("s_waitcnt vmcnt(8)")
    perm_half(RAW, PO0)
    a.raw("s_waitcnt vmcnt(0)")
    stamp()
    perm_half(RAW + 32, PO1)

    def issue_e3b():
        for s in range(2):
            bload(HR + 4 * s, 4, AOFF, R_WS, soff="s12", imm=512 * s, flags="sc1")
    poll(issue_e3b, list(range(HR, HR + 8)), 7)
    stamp()
    layernorm(HR, AOP, 64)
    HV, HT = 8, 24
    narrow_mfma(AOP, PO0, PO1, ACC, HV, HT)
    for d in range(4):
        a.op2e("v_cvt_pk_bf16_f32", HT + d, HV + 2 * d, HV + 2 * d + 1)
    for d in range(4):
        a.op2("v_lshlrev_b32", HV + 2 * d, "16", HT + d)
        a.op2("v_and_b32", HV + 2 * d + 1, "0xffff0000", HT + d)
    for i in range(8):
        a.op2("v_mul_f32", HT + i, "0xbfb8aa3b", HV + i)
    for i in range(8):
        a.op1("v_exp_f32", HT + i, HT + i, kind="trans")
    for i in range(8):
        a.op2("v_add_f32", HT + i, "1.0", HT + i)
    for i in range(8):
        a.op1("v_rcp_f32", HT + i, HT + i, kind="trans")
    for i in range(8):
        a.op2("v_mul_f32", HV + i, HV + i, HT + i)
    for d in range(4):
        a.op2e("v_cvt_pk_bf16_f32", 16 + d, HV + 2 * d, HV + 2 * d + 1)
    for d in range(4):
        a.op2("v_min_u32", 16 + d, "-2", 16 + d)
    a.op2("v_and_b32", 2, "33", 0)
    a.op2("v_and_b32", 3, "1", 0)
    a.op3("v_lshl_add_u32", 3, 3, "4", 2)
    a.op2("v_and_b32", 3, "0x30", 3)
    a.raw("s_mov_b32 s6, 3")
    a.raw("s_mov_b32 s7, 3")
    a.raw("s_mov_b64 exec, s[6:7]")
    a.mem(f"ds_write_b128 v3, v[16:19] offset:{L_G}", src=[3, 16, 17, 18, 19])
    a.raw("s_mov_b64 exec, -1")
    stamp()
    dump_stamps()
    a.raw("s_endpgm")

    a.label("L_w7")
    stamp()
    WOFF, POFF, GOFF = 4, 8, 5
    RAW, PO0, PO1, ACC, AM = 32, 96, 32, 64, 80
    a.raw("s_sub_u32 s14, s2, 128")
    a.op2("v_lshlrev_b32", 2, "4", 0)
    for r in range(4):
        a.op1("v_mov_b32", 12 + r, "-1")
    a.raw("s_lshl_b32 s12, s2, 14")
    a.raw("s_add_u32 s13, s12, 4096")
    a.raw("s_add_u32 s15, s12, 8192")
    a.raw("s_mov_b64 exec, 15")
    a.mem(f"ds_write_b128 v2, v[12:15] offset:{L_G}", src=[2, 12, 13, 14, 15])
    a.raw("s_mov_b64 exec, -1")
    a.raw("s_waitcnt lgkmcnt(0)")
    srd_ws()
    for k in range(9):
        bstore(12, 4, 2, R_WS, soff=["s12", "s13", "s15"][k // 4], imm=(k % 4) * 1024, flags="sc1")
    a.raw(f"s_cmp_ge_u32 s14, {NFFN}")
    a.raw("s_cbranch_scc1 L_w7_noffn")
    for k in range(9, 11):
        bstore(12, 4, 2, R_WS, soff="s15", imm=(k % 4) * 1024, flags="sc1")
    a.label("L_w7_noffn")
    a.raw("s_barrier")
    srd(R_C, P_DBG, 256)
    a.op1("v_mov_b32", 3, "s2")
    a.op1("v_mov_b32", 6, "1")
    a.raw("s_waitcnt vmcnt(0)")
    a.raw("s_mov_b64 exec, 1")
    bstore(6, 1, 3, R_C, flags="sc1", op="buffer_store_byte")
    a.raw("s_mov_b64 exec, -1")
    stamp()
    a.raw(f"s_cmp_ge_u32 s14, {NFFN}")
    a.raw("s_cbranch_scc1 L_w7_exit")
    a.raw("s_and_b32 s6, s14, 7")
    a.raw("s_mul_i32 s6, s6, 14")
    a.raw("s_lshr_b32 s7, s14, 3")
    a.raw("s_add_u32 s15, s6, s7")
    a.op2("v_and_b32", 2, "15", 0)
    a.op2("v_lshrrev_b32", 3, "4", 0)
    a.op2("v_lshlrev_b32", 7, "12", 3)
    a.op3("v_lshl_add_u32", WOFF, 2, "4", 7)
    a.op3("v_lshl_add_u32", 7, 2, "3", 3)
    a.op2("v_lshlrev_b32", POFF, "14", 7)
    a.op2("v_and_b32", 7, "1", 0)
    a.op2("v_lshlrev_b32", 7, "5", 7)
    a.op3("v_lshl_add_u32", GOFF, 3, "3", 7)
    a.raw("s_lshl_b32 s8, s15, 14")
    a.raw("s_lshl_b32 s13, s14, 4")
    a.raw(f"s_add_u32 s13, s13, {E5}")
    wide_masks()
    srd(R_A, P_W2, 1792 * 1024)
    a.raw("s_barrier")
    for pair in range(2):
        for i in range(8):
            bload(RAW + (pair * 8 + i) * 4, 4, WOFF, R_A, soff="s8",
                  imm=(i & 3) * 1024 + (pair * 2 + (i >> 2)) * 256, flags=stream_flags())
    a.raw("s_barrier")
    a.raw("s_waitcnt vmcnt(8)")
    perm_half(RAW, PO0)
    a.raw("s_waitcnt vmcnt(0)")
    perm_half(RAW + 32, PO1)
    PP = 26

    def issue_g():
        a.mem(f"ds_read_b64 {vr(PP, 2)}, v{GOFF} offset:{L_G}", src=[GOFF], dst=[PP, PP + 1])
    lp = a.newlabel("gpoll")
    dn = a.newlabel("gdone")
    a.raw(f"s_mov_b32 s{S_CNT}, {POLL_MAX * 64}")
    a.label(lp)
    issue_g()
    a.raw("s_waitcnt lgkmcnt(0)")
    a.op2("v_max_u32", 7, PP, PP + 1)
    a.valu("v_cmp_eq_u32_e32 vcc, -1, v7", src=[7], sdst=["vcc"])
    a.raw(f"s_cbranch_vccz {dn}")
    a.raw("s_sleep 1")
    a.raw(f"s_sub_u32 s{S_CNT}, s{S_CNT}, 1")
    a.raw(f"s_cmp_eq_u32 s{S_CNT}, 0")
    a.raw(f"s_cbranch_scc0 {lp}")
    a.label(dn)
    stamp()
    wide_mfma(PP, AM, PO0, PO1, ACC)
    wide_publish(ACC, POFF, 13)
    stamp()
    a.label("L_w7_exit")
    dump_stamps()
    a.label("L_end")
    a.raw("s_endpgm")

    hdr = open(f"cdna_kernels/{NAME}.s.ref").read().split("; Override launch")[0]
    out = hdr
    out += "; Override launch geometry by editing the next line (default: block=256,\n"
    out += "; grid=ceil(out_elems/256), lds=0). Harness parses it; keep it on one line.\n"
    out += f"; @launch grid=(256,1,1) block=(512,1,1) lds={LDS_BYTES}\n"
    out += '.amdgcn_target "amdgcn-amd-amdhsa--gfx950"\n.text\n'
    out += f".globl {NAME}_kernel\n.p2align 8\n.type {NAME}_kernel,@function\n{NAME}_kernel:\n"
    out += a.text()
    out += '.section .rodata,"a"\n.p2align 6\n'
    out += f".amdhsa_kernel {NAME}_kernel\n"
    out += "  .amdhsa_next_free_vgpr 128\n  .amdhsa_next_free_sgpr 102\n  .amdhsa_accum_offset 128\n"
    out += "  .amdhsa_group_segment_fixed_size 0\n  .amdhsa_kernarg_size 88\n  .amdhsa_user_sgpr_count 2\n"
    out += "  .amdhsa_user_sgpr_kernarg_segment_ptr 1\n  .amdhsa_system_sgpr_workgroup_id_x 1\n"
    out += "  .amdhsa_float_denorm_mode_32 3\n"
    out += ".end_amdhsa_kernel\n"
    return out


if __name__ == "__main__":
    debug = "--debug" in sys.argv
    path = [x for x in sys.argv[1:] if not x.startswith("--")]
    path = path[0] if path else f"cdna_kernels/{NAME}.s"
    opts = {}
    if "--nt" in sys.argv:
        opts["stream_flags"] = "nt"
    open(path, "w").write(gen(debug, opts))
    print("wrote", path)
```

```python
def vr(base, n=1):
    return f"v{base}" if n == 1 else f"v[{base}:{base + n - 1}]"


def sr(base, n=1):
    return f"s{base}" if n == 1 else f"s[{base}:{base + n - 1}]"


class Asm:
    def __init__(self):
        self.lines = []
        self.pos = 0
        self.vw = {}
        self.sw = {}
        self.mfma_c = {}
        self.st_data = {}
        self.nlabel = 0

    def raw(self, text, slots=1):
        self.lines.append("    " + text)
        self.pos += slots

    def comment(self, text):
        self.lines.append("    ; " + text)

    def label(self, name):
        self.lines.append(name + ":")

    def newlabel(self, stem):
        self.nlabel += 1
        return f"L_{stem}_{self.nlabel}"

    def nop(self, n):
        while n > 0:
            k = min(n, 16)
            self.raw(f"s_nop {k - 1}", k)
            n -= k

    def _need(self, prod_pos, ws):
        have = self.pos - prod_pos - 1
        if have < ws:
            self.nop(ws - have)

    def fence(self, n=12):
        last = max([p for p, _ in self.vw.values()] + list(self.sw.values()) + [-100])
        self._need(last, n)

    def valu(self, text, dst=(), src=(), kind="valu", dpp=(), ssrc=(), sdst=(), perm=()):
        for r in src:
            if r in self.vw:
                p, k = self.vw[r]
                if k == "trans" and kind != "trans":
                    self._need(p, 1)
                elif k == "mfma":
                    self._need(p, 8)
        for r in dst:
            if r in self.vw and self.vw[r][1] == "mfma":
                self._need(self.vw[r][0], 8)
            if r in self.mfma_c:
                self._need(self.mfma_c[r], 3)
            if r in self.st_data:
                self._need(self.st_data[r], 2)
        for r in list(dpp) + list(perm):
            if r in self.vw:
                p, k = self.vw[r]
                self._need(p, 8 if k == "mfma" else 2)
        for s in ssrc:
            if s in self.sw:
                self._need(self.sw[s], 2)
        self.raw(text)
        for r in dst:
            self.vw[r] = (self.pos - 1, kind)
        for s in sdst:
            self.sw[s] = self.pos - 1

    def mfma16(self, d, a, b, c):
        for r in list(range(a, a + 4)) + list(range(b, b + 4)):
            if r in self.vw:
                p, k = self.vw[r]
                self._need(p, 8 if k == "mfma" else 2)
        if c is not None:
            for r in range(c, c + 4):
                if r in self.vw:
                    p, k = self.vw[r]
                    if k == "mfma":
                        if c != d:
                            self._need(p, 6)
                    else:
                        self._need(p, 2)
        for r in range(d, d + 4):
            if r in self.st_data:
                self._need(self.st_data[r], 2)
            if c != d and r in self.vw and self.vw[r][1] == "mfma":
                self._need(self.vw[r][0], 8)
        cs = "0" if c is None else vr(c, 4)
        self.raw(f"v_mfma_f32_16x16x32_bf16 {vr(d, 4)}, {vr(a, 4)}, {vr(b, 4)}, {cs}")
        for r in range(d, d + 4):
            self.vw[r] = (self.pos - 1, "mfma")
        if c is not None:
            for r in range(c, c + 4):
                self.mfma_c[r] = self.pos - 1

    def mfma16k16(self, d, a, b, c):
        for r in list(range(a, a + 2)) + list(range(b, b + 2)):
            if r in self.vw:
                p, k = self.vw[r]
                self._need(p, 8 if k == "mfma" else 2)
        if c is not None:
            for r in range(c, c + 4):
                if r in self.vw:
                    p, k = self.vw[r]
                    if k == "mfma":
                        if c != d:
                            self._need(p, 6)
                    else:
                        self._need(p, 2)
        for r in range(d, d + 4):
            if r in self.st_data:
                self._need(self.st_data[r], 2)
            if c != d and r in self.vw and self.vw[r][1] == "mfma":
                self._need(self.vw[r][0], 8)
        cs = "0" if c is None else vr(c, 4)
        self.raw(f"v_mfma_f32_16x16x16_bf16 {vr(d, 4)}, {vr(a, 2)}, {vr(b, 2)}, {cs}")
        for r in range(d, d + 4):
            self.vw[r] = (self.pos - 1, "mfma")
        if c is not None:
            for r in range(c, c + 4):
                self.mfma_c[r] = self.pos - 1

    def mem(self, text, src=(), dst=(), ssrc=(), wide_store=()):
        for r in list(src) + list(dst):
            if r in self.vw:
                p, k = self.vw[r]
                if k == "mfma":
                    self._need(p, 8)
                elif k == "trans":
                    self._need(p, 1)
        for s in ssrc:
            if s in self.sw:
                self._need(self.sw[s], 5)
        self.raw(text)
        for r in dst:
            self.vw.pop(r, None)
        for r in wide_store:
            self.st_data[r] = self.pos - 1

    def op2(self, op, d, a, b):
        src = [b] + ([a] if isinstance(a, int) else [])
        at = f"v{a}" if isinstance(a, int) else a
        ss = [a] if (isinstance(a, str) and a.startswith("s")) else []
        self.valu(f"{op} v{d}, {at}, v{b}", dst=[d], src=src, ssrc=ss)

    def op1(self, op, d, a, kind="valu"):
        src = [a] if isinstance(a, int) else []
        at = f"v{a}" if isinstance(a, int) else a
        ss = [a] if (isinstance(a, str) and a.startswith("s")) else []
        self.valu(f"{op} v{d}, {at}", dst=[d], src=src, kind=kind, ssrc=ss)

    def op3(self, op, d, a, b, c):
        src = [x for x in (a, b, c) if isinstance(x, int)]
        t = lambda x: f"v{x}" if isinstance(x, int) else x
        ss = [x for x in (a, b, c) if isinstance(x, str) and x.startswith("s")]
        self.valu(f"{op} v{d}, {t(a)}, {t(b)}, {t(c)}", dst=[d], src=src, ssrc=ss)

    def op2e(self, op, d, a, b):
        src = [x for x in (a, b) if isinstance(x, int)]
        t = lambda x: f"v{x}" if isinstance(x, int) else x
        ss = [x for x in (a, b) if isinstance(x, str) and x.startswith("s")]
        self.valu(f"{op} v{d}, {t(a)}, {t(b)}", dst=[d], src=src, ssrc=ss)

    def dpp(self, op, d, a, b, ctrl):
        self.valu(f"{op}_dpp v{d}, v{a}, v{b} {ctrl} row_mask:0xf bank_mask:0xf",
                  dst=[d], src=[b], dpp=[a])

    def swap16(self, a, b):
        self.valu(f"v_permlane16_swap_b32 v{a}, v{b}", dst=[a, b], perm=[a, b])

    def swap32(self, a, b):
        self.valu(f"v_permlane32_swap_b32 v{a}, v{b}", dst=[a, b], perm=[a, b])

    def cndmask(self, d, f, t, mask):
        src = [x for x in (f, t) if isinstance(x, int)]
        tt = lambda x: f"v{x}" if isinstance(x, int) else x
        self.valu(f"v_cndmask_b32_e64 v{d}, {tt(f)}, {tt(t)}, {mask}", dst=[d], src=src, ssrc=[mask])

    def cmp(self, op, mask, a, b):
        src = [x for x in (a, b) if isinstance(x, int)]
        t = lambda x: f"v{x}" if isinstance(x, int) else x
        self.valu(f"{op}_e64 {mask}, {t(a)}, {t(b)}", src=src, sdst=[mask])

    def allreduce(self, op, vals, steps, tmps):
        for st in steps:
            if st in ("x16", "x32"):
                for v, t in zip(vals, tmps):
                    self.op1("v_mov_b32", t, v)
                for v, t in zip(vals, tmps):
                    (self.swap16 if st == "x16" else self.swap32)(v, t)
                for v, t in zip(vals, tmps):
                    self.op2(op, v, v, t)
            else:
                for v in vals:
                    self.dpp(op, v, v, v, st)

    def text(self):
        return "\n".join(self.lines) + "\n"
```

```python
import sys
from asmlib import Asm, vr, sr

NAME = "sequential_preLN__sliding_block_cached__dense_activation_silu__decode"

QB = 0
OB = 128 * 1024
AB = 384 * 1024
FB = 416 * 1024
WS_BYTES = 1 << 20
TS_BASE = WS_BYTES
WS_SIZE_DBG = WS_BYTES + 256 * 8 * 128

L_Q = 0
L_ST = 1024
L_K = 2048
L_ON = 0
L_H = 2048
L_G = 4096
L_P3 = 4352
LDS_BYTES = 2048 + 65536

LOG2E = "0x3fb8aa3b"
SCALE = "0x3db504f3"
INV512 = "0x3b000000"
EPS = "0x3727c5ac"
POLL_MAX = 1 << 15

S_WG, S_WAVE, S_G, S_IDX = 2, 3, 4, 5
P_X, P_K, P_V, P_WQ, P_WO, P_W1, P_W2, P_OUT, P_DBG, P_WS = 16, 18, 20, 22, 24, 28, 30, 32, 34, 36
S_CNT = 38
S_PHI = 39
R_WS, R_A, R_B, R_C, R_D = 40, 44, 48, 52, 56
S_SELLO, S_SELHI = 60, 61
S_PM = 62
S_MASK = 78
S_TS = 88


def gen(debug=False, opts=None):
    opts = opts or {}
    SF = opts.get("stream_flags", "nt")
    NF = opts.get("narrow_flags", "nt")
    if NF == "def":
        NF = ""
    a = Asm()

    def stamp(k):
        if debug:
            assert k < 7
            a.raw(f"s_memrealtime {sr(S_TS + 2 * k, 2)}")

    def dump_stamps():
        if not debug:
            return
        a.raw("s_waitcnt vmcnt(0) lgkmcnt(0)")
        a.raw("s_mov_b64 exec, 1")
        a.raw(f"s_lshl_b32 s6, s{S_WG}, 3")
        a.raw(f"s_add_u32 s6, s6, s{S_WAVE}")
        a.raw("s_lshl_b32 s6, s6, 7")
        a.raw(f"s_add_u32 s6, s6, {TS_BASE}")
        a.op1("v_mov_b32", 1, "s6")
        for k in range(7):
            a.op1("v_mov_b32", 2, f"s{S_TS + 2 * k}")
            a.op1("v_mov_b32", 3, f"s{S_TS + 2 * k + 1}")
            a.mem(f"buffer_store_dwordx2 v[2:3], v1, {sr(R_WS, 4)}, 0 offen offset:{8 * k}", src=[1, 2, 3])
            a.nop(2)

    def srd(dst, ptr, size):
        a.raw(f"s_mov_b32 s{dst}, s{ptr}")
        a.raw(f"s_and_b32 s{dst + 1}, s{ptr + 1}, 0xffff")
        a.raw(f"s_mov_b32 s{dst + 2}, {size}")
        a.raw(f"s_mov_b32 s{dst + 3}, 0x20000")

    def bload(d, n, off, srdb, soff="0", imm=0, flags=""):
        op = {1: "buffer_load_dword", 2: "buffer_load_dwordx2", 4: "buffer_load_dwordx4"}[n]
        t = f"{op} {vr(d, n)}, v{off}, {sr(srdb, 4)}, {soff} offen"
        if imm:
            t += f" offset:{imm}"
        if flags:
            t += " " + flags
        a.mem(t, src=[off], dst=list(range(d, d + n)))

    def bstore(s, n, off, srdb, soff="0", imm=0, flags="", op=None):
        op = op or {1: "buffer_store_dword", 2: "buffer_store_dwordx2", 4: "buffer_store_dwordx4"}[n]
        t = f"{op} {vr(s, n)}, v{off}, {sr(srdb, 4)}, {soff} offen"
        if imm:
            t += f" offset:{imm}"
        if flags:
            t += " " + flags
        regs = list(range(s, s + n))
        a.mem(t, src=[off] + regs, wide_store=regs if n == 4 else ())

    def dsr(d, n, addr, off):
        op = {1: "ds_read_b32", 2: "ds_read_b64", 4: "ds_read_b128"}[n]
        a.mem(f"{op} {vr(d, n)}, v{addr} offset:{off}", src=[addr], dst=list(range(d, d + n)))

    def dsw(s, n, addr, off):
        op = {1: "ds_write_b32", 2: "ds_write_b64", 4: "ds_write_b128"}[n]
        a.mem(f"{op} v{addr}, {vr(s, n)} offset:{off}", src=[addr] + list(range(s, s + n)))

    def poll_flags(voff, imm, lanes, tmp, pre_loaded=False):
        lp, dn, ck = a.newlabel("fp"), a.newlabel("fd"), a.newlabel("fc")
        a.raw(f"s_mov_b32 s{S_CNT}, {POLL_MAX}")
        a.raw(f"s_mov_b64 exec, {lanes}")
        if pre_loaded:
            a.raw(f"s_branch {ck}")
        a.label(lp)
        bload(tmp, 1, voff, R_C, imm=imm, flags="sc1")
        a.raw("s_waitcnt vmcnt(0)")
        a.label(ck)
        a.valu(f"v_cmp_ne_u32_e32 vcc, 1, v{tmp}", src=[tmp], sdst=["vcc"])
        a.raw(f"s_cbranch_vccz {dn}")
        a.raw("s_sleep 2")
        a.raw(f"s_sub_u32 s{S_CNT}, s{S_CNT}, 1")
        a.raw(f"s_cmp_eq_u32 s{S_CNT}, 0")
        a.raw(f"s_cbranch_scc0 {lp}")
        a.label(dn)
        a.raw("s_mov_b64 exec, -1")

    def poll_issue(loads, width=4):
        for (d, vo, so, im) in loads:
            bload(d, width, vo, R_WS, soff=so, imm=im, flags="sc1")

    def poll_masked(loads, tmp, sleep=0, issued=False, first_wait=0, width=4):
        n = len(loads)
        lp, dn, ck = a.newlabel("pl"), a.newlabel("pd"), a.newlabel("pc")
        a.raw(f"s_mov_b32 s{S_CNT}, {POLL_MAX}")
        if not issued:
            poll_issue(loads, width)
        if first_wait:
            a.raw(f"s_waitcnt vmcnt({first_wait})")
            a.raw(f"s_branch {ck}")
        a.label(lp)
        a.raw("s_waitcnt vmcnt(0)")
        a.label(ck)
        for k, (d, vo, so, im) in enumerate(loads):
            t = tmp + (k & 1)
            if width == 4:
                a.op3("v_max3_u32", t, d, d + 1, d + 2)
                a.op2("v_max_u32", t, t, d + 3)
            else:
                t = d
            a.cmp("v_cmp_eq_u32", sr(S_PM + 2 * k, 2), "-1", t)
        a.nop(1)
        if n == 1:
            a.raw(f"s_cmp_eq_u64 {sr(S_PM, 2)}, 0")
        else:
            a.raw(f"s_or_b64 s[6:7], {sr(S_PM, 2)}, {sr(S_PM + 2, 2)}")
            for k in range(2, n):
                a.raw(f"s_or_b64 s[6:7], s[6:7], {sr(S_PM + 2 * k, 2)}")
            a.raw("s_cmp_eq_u64 s[6:7], 0")
        a.raw(f"s_cbranch_scc1 {dn}")
        if sleep:
            a.raw(f"s_sleep {sleep}")
        for k, (d, vo, so, im) in enumerate(loads):
            sk = a.newlabel("sk")
            a.raw(f"s_mov_b64 exec, {sr(S_PM + 2 * k, 2)}")
            a.raw(f"s_cbranch_execz {sk}")
            bload(d, width, vo, R_WS, soff=so, imm=im, flags="sc1")
            a.label(sk)
        a.raw("s_mov_b64 exec, -1")
        a.raw(f"s_sub_u32 s{S_CNT}, s{S_CNT}, 1")
        a.raw(f"s_cmp_eq_u32 s{S_CNT}, 0")
        a.raw(f"s_cbranch_scc0 {lp}")
        a.raw("s_waitcnt vmcnt(0)")
        a.label(dn)

    def perm_half(raw, out):
        for x in range(4):
            for j in range(4):
                lo = raw + (2 * x) * 4 + j
                hi = raw + (2 * x + 1) * 4 + j
                a.op3("v_perm_b32", out + (2 * j) * 4 + x, hi, lo, f"s{S_SELLO}")
                a.op3("v_perm_b32", out + (2 * j + 1) * 4 + x, hi, lo, f"s{S_SELHI}")

    def round_bf16(d, s):
        a.op2e("v_cvt_pk_bf16_f32", d, s, s)
        a.op2("v_lshlrev_b32", d, "16", d)

    def unpack(V, R, n):
        for d in range(n):
            a.op2("v_lshlrev_b32", V + 2 * d, "16", R + d)
            a.op2("v_and_b32", V + 2 * d + 1, "0xffff0000", R + d)

    def ln_stats(V, T, steps):
        S, S2, Q, Q2, t0, t1, M, RC = range(T, T + 8)
        a.op2("v_add_f32", S, V + 0, V + 1)
        a.op2("v_add_f32", S2, V + 2, V + 3)
        for i in range(4, 16, 2):
            a.op2("v_add_f32", S, S, V + i)
            a.op2("v_add_f32", S2, S2, V + i + 1)
        a.op2("v_add_f32", S, S, S2)
        a.allreduce("v_add_f32", [S], steps, [t0])
        a.op2("v_mul_f32", S, INV512, S)
        a.op2("v_sub_f32", t0, V + 0, S)
        a.op2("v_sub_f32", t1, V + 1, S)
        a.op2("v_mul_f32", Q, t0, t0)
        a.op2("v_mul_f32", Q2, t1, t1)
        for i in range(2, 16, 2):
            a.op2("v_sub_f32", t0, V + i, S)
            a.op2("v_sub_f32", t1, V + i + 1, S)
            a.op2("v_fmac_f32", Q, t0, t0)
            a.op2("v_fmac_f32", Q2, t1, t1)
        a.op2("v_add_f32", Q, Q, Q2)
        a.allreduce("v_add_f32", [Q], steps, [t0])
        round_bf16(M, S)
        a.op2("v_mul_f32", Q, INV512, Q)
        round_bf16(Q, Q)
        a.op2("v_add_f32", Q, EPS, Q)
        round_bf16(Q, Q)
        a.op1("v_sqrt_f32", Q, Q, kind="trans")
        round_bf16(Q, Q)
        a.op1("v_rcp_f32", RC, Q, kind="trans")
        return M, RC

    def ln_apply(V, A, M, RC):
        for i in range(16):
            a.op2("v_sub_f32", V + i, V + i, M)
        for d in range(8):
            a.op2e("v_cvt_pk_bf16_f32", A + d, V + 2 * d, V + 2 * d + 1)
        unpack(V, A, 8)
        for i in range(16):
            a.op2("v_mul_f32", V + i, V + i, RC)
        for d in range(8):
            a.op2e("v_cvt_pk_bf16_f32", A + d, V + 2 * d, V + 2 * d + 1)

    def narrow_masks(t0, t1):
        a.op2("v_lshrrev_b32", t0, "1", 0)
        a.op2("v_and_b32", t0, "3", t0)
        for r in (1, 2, 3):
            a.cmp("v_cmp_eq_u32", sr(S_MASK + 2 * (r - 1), 2), str(r), t0)
        a.op2("v_lshrrev_b32", t0, "4", 0)
        a.op2("v_lshrrev_b32", t1, "3", 0)
        a.op2("v_xor_b32", t0, t0, t1)
        a.op2("v_and_b32", t0, "1", t0)
        a.cmp("v_cmp_eq_u32", sr(S_MASK + 6, 2), "0", t0)

    def narrow_mfma(As, Bs, ACC, OUT, TMP):
        for s, (A, B) in enumerate(zip(As, Bs)):
            for c in range(8):
                a.mfma16(ACC + 4 * c, A, B + 4 * c, None if s == 0 else ACC + 4 * c)
        for c in range(8):
            a.cndmask(OUT + c, ACC + 4 * c, ACC + 4 * c + 1, sr(S_MASK, 2))
            a.cndmask(OUT + c, OUT + c, ACC + 4 * c + 2, sr(S_MASK + 2, 2))
            a.cndmask(OUT + c, OUT + c, ACC + 4 * c + 3, sr(S_MASK + 4, 2))
            a.cndmask(OUT + c, "0", OUT + c, sr(S_MASK + 6, 2))
        vals = [OUT + c for c in range(8)]
        a.allreduce("v_add_f32", vals, ["row_ror:2", "row_ror:4", "row_ror:8", "x16"],
                    [TMP + c for c in range(8)])

    def narrow_lane(dst_u, dst_un, t):
        a.op2("v_lshrrev_b32", t, "4", 0)
        a.op2("v_and_b32", dst_u, "7", 0)
        a.op3("v_lshl_add_u32", dst_u, t, "3", dst_u)
        a.op2("v_lshrrev_b32", dst_un, "1", 0)
        a.op2("v_and_b32", dst_un, "7", dst_un)
        a.op3("v_lshl_add_u32", dst_un, t, "3", dst_un)

    def srd_ws():
        srd(R_WS, P_WS, WS_SIZE_DBG if debug else WS_BYTES)

    a.raw("s_cmp_ge_u32 s2, 256")
    a.raw("s_cbranch_scc1 L_end")
    a.raw("s_load_dwordx16 s[16:31], s[0:1], 0")
    a.raw("s_load_dwordx4 s[32:35], s[0:1], 64")
    a.raw("s_load_dwordx2 s[36:37], s[0:1], 80")
    stamp(0)
    a.op2("v_lshrrev_b32", 1, "6", 0)
    a.op2("v_and_b32", 0, "63", 0)
    a.nop(1)
    a.valu("v_readfirstlane_b32 s3, v1", src=[1], sdst=["s3"])
    a.raw("s_and_b32 s4, s2, 7")
    a.raw("s_lshr_b32 s5, s2, 4")
    a.raw(f"s_mov_b32 s{S_SELLO}, 0x05040100")
    a.raw(f"s_mov_b32 s{S_SELHI}, 0x07060302")
    a.raw("s_bitcmp1_b32 s2, 3")
    a.raw("s_cbranch_scc1 L_tail")

    KOFF, VOFF, QOFF = 4, 5, 6
    KR, VRAW, QR, SACC, PR, PM, OACC = 16, 48, 80, 96, 104, 108, 8
    G0 = 128
    a.op2("v_and_b32", 2, "15", 0)
    a.op2("v_lshrrev_b32", 3, "4", 0)
    a.op2("v_xor_b32", 7, 2, 3)
    a.op2("v_lshlrev_b32", 7, "4", 7)
    for q in range(4):
        a.op2("v_xor_b32", 112 + q, str(64 * q), 7)
        a.op3("v_lshl_add_u32", 116 + q, 2, "8", 112 + q)
        a.op3("v_lshl_add_u32", 112 + q, 3, "8", 112 + q)
    a.raw("s_lshl_b32 s13, s3, 13")
    a.raw(f"s_add_u32 s13, s13, {L_K}")
    for q in range(4):
        a.op2("v_add_u32", 116 + q, "s13", 116 + q)
    a.op2("v_lshlrev_b32", 7, "10", 3)
    a.op3("v_lshl_add_u32", VOFF, 2, "4", 7)
    for t in ["s_lshr_b32 s6, s5, 3", "s_and_b32 s7, s5, 7", "s_lshl_b32 s8, s6, 3", "s_add_u32 s8, s8, s4",
              "s_lshl_b32 s8, s8, 13", "s_lshl_b32 s9, s7, 8", "s_add_u32 s8, s8, s9", "s_lshl_b32 s9, s3, 5",
              "s_add_u32 s8, s8, s9", "s_add_u32 s8, s8, 6144", "s_lshl_b32 s8, s8, 8", "s_add_u32 s9, s8, 4096"]:
        a.raw(t)
    a.op2("v_lshlrev_b32", 7, "4", 0)
    a.raw("s_lshl_b32 s14, s5, 3")
    a.raw("s_add_u32 s14, s14, s4")
    a.raw("s_mul_i32 s15, s14, 7168")
    a.raw(f"s_add_u32 s15, s15, {FB}")
    a.raw("s_waitcnt lgkmcnt(0)")
    srd(R_A, P_K, 0x2000000)
    srd(R_B, P_V, 0x2000000)
    srd_ws()
    srd(R_C, P_DBG, 256)
    a.raw("s_cmp_lg_u32 s3, 1")
    a.raw("s_cbranch_scc1 L_a_nc")
    a.raw("s_cmp_ge_u32 s5, 8")
    a.raw("s_cbranch_scc1 L_a_nc")
    for r in range(4):
        a.op1("v_mov_b32", 12 + r, "-1")
    a.raw("s_add_u32 s6, s15, 4096")
    for k in range(7):
        bstore(12, 4, 7, R_WS, soff="s15" if k < 4 else "s6", imm=(k & 3) * 1024, flags="sc1")
    a.label("L_a_nc")
    for T in range(2):
        if T:
            a.raw("s_add_u32 s13, s13, 4096")
        a.raw("s_mov_b32 m0, s13")
        a.nop(1)
        for q in range(4):
            a.mem(f"buffer_load_dwordx4 v{112 + q}, {sr(R_A, 4)}, s{8 + T} offen offset:{q * 1024} {SF} lds",
                  src=[112 + q])
    a.raw("s_lshl_b32 s6, s4, 2")
    a.op1("v_mov_b32", 124, "s6")
    if opts.get("kbar", 1):
        a.raw("s_barrier")
    bload(125, 1, 124, R_C, imm=64, flags="sc1")
    for i in range(4):
        bload(VRAW + i * 4, 4, VOFF, R_B, soff="s8", imm=i * 256, flags=SF)
    a.op2("v_and_b32", 2, "3", 0)
    a.op2("v_lshlrev_b32", 2, "8", 2)
    a.op3("v_lshl_add_u32", QOFF, 3, "4", 2)
    a.op2("v_lshrrev_b32", 2, "2", 0)
    a.op2("v_and_b32", 2, "3", 2)
    for c in range(4):
        a.cmp("v_cmp_eq_u32", sr(S_MASK + 2 * c, 2), str(c), 2)
    a.raw(f"s_mov_b32 s10, {SCALE}")
    a.raw(f"s_mov_b32 s11, {LOG2E}")
    a.raw("s_lshl_b32 s12, s4, 14")
    a.raw("s_lshr_b32 s6, s5, 3")
    a.raw("s_lshl_b32 s6, s6, 13")
    a.raw("s_add_u32 s12, s12, s6")
    a.raw("s_add_u32 s13, s12, 4096")
    a.raw("s_waitcnt vmcnt(4)")
    stamp(1)
    a.raw("s_barrier")
    qloads = [(G0 + 4 * k, 7, "s12" if k < 4 else "s13", (k & 3) * 1024) for k in range(8)]
    a.raw("s_cmp_lg_u32 s3, 0")
    a.raw("s_cbranch_scc1 L_a_nq")
    poll_flags(124, 64, "1", 125, pre_loaded=True)
    poll_issue(qloads)
    a.label("L_a_nq")
    a.raw("s_barrier")
    for i in range(4, 8):
        bload(VRAW + i * 4, 4, VOFF, R_B, soff="s9", imm=(i % 4) * 256, flags=SF)
    for T in range(2):
        for s in range(4):
            dsr(KR + T * 16 + s * 4, 4, 116 + s, T * 4096)
    a.raw("s_cmp_lg_u32 s3, 0")
    a.raw("s_cbranch_scc1 L_a_nq2")
    poll_masked(qloads, 126, sleep=1, issued=True, first_wait=4)
    for h2 in range(2):
        for e in range(4):
            d = G0 + 4 * h2 + e
            a.op2("v_add_f32", d, d, d + 8)
            a.op2("v_add_f32", d + 16, d + 16, d + 24)
        for e in range(4):
            d = G0 + 4 * h2 + e
            a.op2("v_add_f32", d, d, d + 16)
    for h2 in range(2):
        for x in range(2):
            a.op2e("v_cvt_pk_bf16_f32", G0 + 8 + 2 * h2 + x, G0 + 4 * h2 + 2 * x, G0 + 4 * h2 + 2 * x + 1)
    a.op2("v_lshlrev_b32", 2, "7", 3)
    a.op2("v_and_b32", 126, "3", 0)
    a.op3("v_lshl_add_u32", 2, 126, "5", 2)
    a.op2("v_and_b32", 126, "12", 0)
    a.op2("v_add_u32", 2, 2, 126)
    for h2 in range(2):
        for x in range(2):
            dsw(G0 + 8 + 2 * h2 + x, 1, 2, L_Q + 512 * h2 + 16 * x)
    a.raw("s_cmp_lg_u32 s5, 0")
    a.raw("s_cbranch_scc1 L_a_nl")
    a.op1("v_mov_b32", 125, "1")
    a.raw("s_mov_b64 exec, 1")
    bstore(125, 1, 124, R_C, flags="sc1")
    a.raw("s_mov_b64 exec, -1")
    a.label("L_a_nl")
    a.raw("s_waitcnt lgkmcnt(0)")
    a.label("L_a_nq2")
    a.raw("s_barrier")
    stamp(2)
    for s in range(4):
        dsr(QR + 4 * s, 4, QOFF, L_Q + 64 * s)
    a.raw("s_waitcnt lgkmcnt(0)")
    for s in range(4):
        for T in range(2):
            a.mfma16(SACC + 4 * T, KR + T * 16 + s * 4, QR + 4 * s, None if s == 0 else SACC + 4 * T)
    SV = QR
    PK = QR + 8
    for d in range(4):
        a.op2e("v_cvt_pk_bf16_f32", PK + d, SACC + 2 * d, SACC + 2 * d + 1)
    unpack(SV, PK, 4)
    for i in range(8):
        a.op2("v_mul_f32", SV + i, "s10", SV + i)
    for d in range(4):
        a.op2e("v_cvt_pk_bf16_f32", PK + d, SV + 2 * d, SV + 2 * d + 1)
    unpack(SV, PK, 4)
    for i in range(8):
        a.op2("v_mul_f32", SV + i, "s11", SV + i)
    MX, LS, TT = QR + 12, QR + 13, QR + 14
    a.op3("v_max3_f32", MX, SV + 0, SV + 1, SV + 2)
    a.op3("v_max3_f32", TT, SV + 3, SV + 4, SV + 5)
    a.op3("v_max3_f32", MX, MX, SV + 6, SV + 7)
    a.op2("v_max_f32", MX, MX, TT)
    a.allreduce("v_max_f32", [MX], ["x16", "x32"], [TT])
    for i in range(8):
        a.op2("v_sub_f32", SV + i, SV + i, MX)
    for i in range(8):
        a.op1("v_exp_f32", SV + i, SV + i, kind="trans")
    for d in range(4):
        a.op2e("v_cvt_pk_bf16_f32", PR + d, SV + 2 * d, SV + 2 * d + 1)
    a.op2("v_add_f32", LS, SV + 0, SV + 1)
    a.op2("v_add_f32", TT, SV + 2, SV + 3)
    a.op2("v_add_f32", LS, LS, SV + 4)
    a.op2("v_add_f32", TT, TT, SV + 5)
    a.op2("v_add_f32", LS, LS, SV + 6)
    a.op2("v_add_f32", TT, TT, SV + 7)
    a.op2("v_add_f32", LS, LS, TT)
    for c in range(4):
        for x in range(4):
            a.cndmask(PM + 4 * c + x, "0", PR + x, sr(S_MASK + 2 * c, 2))
    a.allreduce("v_add_f32", [LS], ["x16", "x32"], [TT])
    a.raw("s_lshl_b32 s6, s3, 3")
    a.op2("v_lshlrev_b32", 2, "6", 0)
    a.op2("v_add_u32", 2, "s6", 2)
    a.raw("s_mov_b64 exec, 15")
    dsw(MX, 2, 2, L_ST)
    a.raw("s_mov_b64 exec, -1")
    a.op2("v_and_b32", 4, "3", 0)
    a.op2("v_lshlrev_b32", 4, "8", 4)
    a.op2("v_and_b32", 3, "12", 0)
    a.op3("v_lshl_add_u32", 4, 3, "4", 4)
    a.op2("v_and_b32", 3, "16", 0)
    a.op3("v_lshl_add_u32", 4, 3, "6", 4)
    a.op2("v_lshrrev_b32", 3, "5", 0)
    a.raw("s_lshl_b32 s6, s3, 1")
    a.op2("v_add_u32", 3, "s6", 3)
    a.op3("v_lshl_add_u32", 4, 3, "4", 4)
    a.op2("v_lshlrev_b32", 5, "6", 3)
    a.raw("s_lshl_b32 s6, s3, 13")
    a.op2("v_add_u32", 2, "s6", 7)
    a.raw("s_lshl_b32 s6, s4, 4")
    a.raw("s_add_u32 s6, s6, s5")
    a.raw("s_lshl_b32 s6, s6, 1")
    a.raw("s_add_u32 s6, s6, s3")
    a.raw("s_lshl_b32 s6, s6, 10")
    a.raw(f"s_add_u32 s12, s6, {OB}")
    for r in range(4):
        a.raw(f"s_mov_b32 s{8 + r}, {0x07060500 + r:#x}")
    a.raw("s_waitcnt vmcnt(0)")
    stamp(3)
    perm_half(VRAW, KR)
    for ch in range(2):
        for c in range(4):
            a.mfma16(OACC + 4 * ch, KR + 4 * (ch * 4 + c), PM + 4 * c, None if c == 0 else OACC + 4 * ch)
    for ch in range(2):
        dsw(OACC + 4 * ch, 4, 2, L_K + 1024 * ch)
    a.raw("s_waitcnt lgkmcnt(0)")
    a.raw("s_barrier")
    a.raw("s_cmp_ge_u32 s3, 2")
    a.raw("s_cbranch_scc1 L_a_fin")
    OW, STV = 16, 48
    for k in range(4):
        dsr(STV + 4 * k, 4, 5, L_ST + 16 * k)
    for w in range(8):
        dsr(OW + 4 * w, 4, 4, L_K + 8192 * w)
    a.raw("s_waitcnt lgkmcnt(8)")
    Mx, Lx, E0 = 64, 65, 66
    a.op3("v_max3_f32", Mx, STV + 0, STV + 2, STV + 4)
    a.op3("v_max3_f32", Lx, STV + 6, STV + 8, STV + 10)
    a.op3("v_max3_f32", Mx, Mx, STV + 12, STV + 14)
    a.op2("v_max_f32", Mx, Mx, Lx)
    for w in range(8):
        a.op2("v_sub_f32", E0 + w, STV + 2 * w, Mx)
    for w in range(8):
        a.op1("v_exp_f32", E0 + w, E0 + w, kind="trans")
    a.op2("v_mul_f32", Lx, E0 + 0, STV + 1)
    for w in range(1, 8):
        a.op2("v_fmac_f32", Lx, E0 + w, STV + 2 * w + 1)
    a.op1("v_rcp_f32", 74, Lx, kind="trans")
    a.op1("v_log_f32", 75, Lx, kind="trans")
    a.raw("s_waitcnt lgkmcnt(0)")
    for r in range(4):
        a.op2("v_mul_f32", 76 + r, E0 + 0, OW + r)
    for w in range(1, 8):
        for r in range(4):
            a.op2("v_fmac_f32", 76 + r, E0 + w, OW + 4 * w + r)
    a.op2("v_add_f32", 75, 75, Mx)
    for r in range(4):
        a.op2("v_mul_f32", 76 + r, 76 + r, 74)
    for r in range(4):
        a.op3("v_perm_b32", 76 + r, 76 + r, 75, f"s{8 + r}")
    for r in range(4):
        a.op2("v_min_u32", 76 + r, "-2", 76 + r)
    bstore(76, 4, 7, R_WS, soff="s12", flags="sc1")
    stamp(4)
    a.raw("s_branch L_exit")
    a.label("L_a_fin")
    a.raw("s_cmp_lg_u32 s3, 2")
    a.raw("s_cbranch_scc1 L_exit")
    a.raw("s_cmp_ge_u32 s5, 8")
    a.raw("s_cbranch_scc1 L_exit")
    srd(R_A, P_X, 2048)
    srd(R_D, P_OUT, 2048)
    a.raw("s_lshr_b32 s6, s14, 5")
    a.raw("s_lshl_b32 s6, s6, 8")
    a.raw("s_and_b32 s7, s14, 3")
    a.raw("s_lshl_b32 s7, s7, 5")
    a.raw("s_add_u32 s6, s6, s7")
    a.raw("s_bfe_u32 s7, s14, 0x30002")
    a.raw("s_add_u32 s6, s6, s7")
    a.op2("v_and_b32", 2, "3", 0)
    a.op2("v_lshlrev_b32", 2, "3", 2)
    a.op2("v_and_b32", 3, "8", 0)
    a.op3("v_lshl_add_u32", 2, 3, "4", 2)
    a.op2("v_add_u32", 2, "s6", 2)
    a.op2("v_and_b32", 3, "4", 0)
    a.op2("v_lshlrev_b32", 4, "1", 2)
    a.op3("v_lshl_add_u32", 4, 3, "8", 4)
    a.mem(f"buffer_load_ushort v10, v4, {sr(R_A, 4)}, 0 offen", src=[4], dst=[10])
    a.op2("v_lshrrev_b32", 5, "5", 2)
    a.op2("v_lshlrev_b32", 5, "8", 5)
    a.op2("v_and_b32", 6, "2", 2)
    a.op3("v_lshl_add_u32", 5, 6, "6", 5)
    a.op2("v_and_b32", 6, "4", 2)
    a.op3("v_lshl_add_u32", 5, 6, "4", 5)
    a.op2("v_and_b32", 6, "1", 2)
    a.op3("v_lshl_add_u32", 5, 6, "5", 5)
    a.op3("v_lshl_add_u32", 5, 3, "2", 5)
    a.op2("v_and_b32", 6, "24", 2)
    a.op2("v_lshrrev_b32", 6, "1", 6)
    a.op2("v_add_u32", 5, 5, 6)
    a.op2("v_lshrrev_b32", 6, "4", 0)
    a.op3("v_lshl_add_u32", 5, 6, "12", 5)
    a.op2("v_lshrrev_b32", 6, "2", 0)
    a.op2("v_and_b32", 6, "3", 6)
    for r in (1, 2, 3):
        a.cmp("v_cmp_eq_u32", sr(S_MASK + 2 * (r - 1), 2), str(r), 6)
    a.op2("v_lshlrev_b32", 6, "2", 0)
    poll_flags(6, 0, "0xff", 8)
    a.raw(f"s_mov_b32 s8, {AB}")
    a.raw(f"s_mov_b32 s9, {AB + 16384}")
    poll_masked([(12, 5, "s8", 0), (13, 5, "s9", 0)], 8, sleep=4, width=1)
    stamp(4)
    a.op2("v_add_f32", 12, 12, 13)
    a.allreduce("v_add_f32", [12], ["x16", "x32"], [13])
    round_bf16(12, 12)
    a.op2("v_lshlrev_b32", 10, "16", 10)
    a.op2("v_add_f32", 12, 12, 10)
    round_bf16(12, 12)
    a.raw("s_add_u32 s9, s15, 4096")
    F0 = 16
    poll_masked([(F0 + 4 * k, 7, "s15" if k < 4 else "s9", (k & 3) * 1024) for k in range(7)], 8,
                sleep=opts.get("sleep_f", 2))
    stamp(5)
    for r in range(4):
        a.op2("v_add_f32", F0 + r, F0 + r, F0 + 4 + r)
        a.op2("v_add_f32", F0 + 8 + r, F0 + 8 + r, F0 + 12 + r)
        a.op2("v_add_f32", F0 + 16 + r, F0 + 16 + r, F0 + 20 + r)
    for r in range(4):
        a.op2("v_add_f32", F0 + r, F0 + r, F0 + 8 + r)
        a.op2("v_add_f32", F0 + 16 + r, F0 + 16 + r, F0 + 24 + r)
    for r in range(4):
        a.op2("v_add_f32", F0 + r, F0 + r, F0 + 16 + r)
    a.allreduce("v_add_f32", [F0 + r for r in range(4)], ["row_ror:4", "row_ror:8", "x16", "x32"],
                [F0 + 4 + r for r in range(4)])
    for r in (1, 2, 3):
        a.cndmask(F0, F0, F0 + r, sr(S_MASK + 2 * (r - 1), 2))
    round_bf16(F0, F0)
    a.op2("v_add_f32", F0, F0, 12)
    a.op2e("v_cvt_pk_bf16_f32", F0, F0, F0)
    a.raw("s_mov_b64 exec, 0xffff")
    bstore(F0, 1, 4, R_D, op="buffer_store_short")
    a.raw("s_mov_b64 exec, -1")
    stamp(6)
    a.raw("s_branch L_exit")

    WOR, WOP, AC3 = 144, 192, 208

    def issue_wo():
        srd(R_D, P_WO, 4096 * 1024)
        a.op2("v_and_b32", 160, "12", 0)
        a.op2("v_lshlrev_b32", 160, "3", 160)
        a.op2("v_lshrrev_b32", 161, "4", 0)
        a.op2("v_add_u32", 160, 160, 161)
        a.op2("v_lshlrev_b32", 160, "10", 160)
        a.op2("v_and_b32", 161, "3", 0)
        a.op3("v_lshl_add_u32", 160, 161, "4", 160)
        a.raw("s_lshl_b32 s6, s4, 2")
        a.raw("s_lshr_b32 s7, s3, 1")
        a.raw("s_add_u32 s6, s6, s7")
        a.raw("s_lshl_b32 s6, s6, 7")
        a.raw("s_and_b32 s7, s3, 1")
        a.raw("s_lshl_b32 s7, s7, 2")
        a.raw("s_add_u32 s6, s6, s7")
        a.raw("s_lshl_b32 s6, s6, 10")
        a.raw("s_lshl_b32 s7, s5, 6")
        a.raw("s_add_u32 s6, s6, s7")
        a.raw("s_barrier")
        for i in range(4):
            bload(WOR + 4 * i, 4, 160, R_D, soff="s6", flags=NF)
            if i < 3:
                a.raw("s_add_u32 s6, s6, 8192")
        a.raw("s_barrier")

    a.label("L_tail")
    a.raw("s_mul_i32 s6, s4, 14")
    a.raw(f"s_add_u32 s{S_PHI}, s6, s5")
    a.raw("s_cmp_lt_u32 s3, 2")
    a.raw("s_cbranch_scc1 L_t01")
    a.raw("s_cmp_eq_u32 s3, 4")
    a.raw("s_cbranch_scc1 L_t4")
    a.raw("s_cmp_eq_u32 s3, 5")
    a.raw("s_cbranch_scc1 L_t5")
    a.raw("s_branch L_t67")

    a.label("L_t01")
    XS, XA = 8, 16
    RAW, PO0, PO1 = 32, 96, 32
    AM = 64
    a.op2("v_lshrrev_b32", 2, "2", 0)
    a.op2("v_and_b32", 3, "1", 0)
    a.op3("v_lshl_add_u32", 2, 2, "1", 3)
    a.op2("v_lshlrev_b32", 2, "4", 2)
    a.op2("v_and_b32", 6, "2", 0)
    a.op3("v_lshl_add_u32", 4, 6, "9", 2)
    a.op2("v_lshrrev_b32", 2, "4", 0)
    a.op3("v_lshl_add_u32", 7, 2, "1", 3)
    a.op2("v_lshlrev_b32", 7, "4", 7)
    a.op3("v_lshl_add_u32", 5, 6, "9", 7)
    a.op2("v_lshrrev_b32", 7, "3", 0)
    a.op2("v_lshlrev_b32", 7, "16", 7)
    a.op2("v_and_b32", 3, "7", 0)
    a.op3("v_lshl_add_u32", 6, 3, "4", 7)
    a.raw("s_lshr_b32 s10, s5, 3")
    a.raw("s_lshl_b32 s10, s10, 1")
    a.raw("s_add_u32 s10, s10, s3")
    a.raw("s_and_b32 s11, s5, 7")
    a.raw("s_lshl_b32 s8, s4, 10")
    a.raw("s_lshl_b32 s9, s11, 7")
    a.raw("s_add_u32 s8, s8, s9")
    a.raw("s_lshl_b32 s9, s10, 20")
    a.raw("s_add_u32 s8, s8, s9")
    a.raw("s_lshl_b32 s12, s10, 8")
    a.op2("v_lshlrev_b32", 7, "4", 0)
    for r in range(4):
        a.op1("v_mov_b32", 24 + r, "-1")
    a.raw("s_lshl_b32 s6, s4, 4")
    a.raw("s_add_u32 s6, s6, s5")
    a.raw("s_lshl_b32 s13, s6, 11")
    a.raw(f"s_add_u32 s13, s13, {OB}")
    a.raw("s_lshl_b32 s14, s6, 8")
    a.raw(f"s_add_u32 s14, s14, {AB}")
    a.raw("s_waitcnt lgkmcnt(0)")
    srd(R_A, P_X, 2048)
    srd(R_B, P_WQ, 512 * 8192)
    a.raw("s_barrier")
    for s in range(2):
        bload(XS + 4 * s, 4, 4, R_A, imm=512 * s)
    for s in range(2):
        bload(XA + 4 * s, 4, 5, R_A, soff="s12", imm=128 * s)
    for s in range(2):
        for i in range(8):
            a.raw(f"s_add_u32 s9, s8, {(s * 64 + i) * 8192}")
            bload(RAW + (s * 8 + i) * 4, 4, 6, R_B, soff="s9", flags=SF)
    srd_ws()
    srd(R_C, P_DBG, 256)
    a.raw("s_cmp_eq_u32 s3, 0")
    a.raw("s_cbranch_scc1 L_t0c")
    a.raw("s_mov_b64 exec, 0xff")
    bstore(24, 4, 7, R_WS, soff="s14", flags="sc1")
    bstore(24, 4, 7, R_WS, soff="s14", imm=128, flags="sc1")
    a.raw("s_mov_b64 exec, -1")
    a.raw("s_branch L_t01c")
    a.label("L_t0c")
    bstore(24, 4, 7, R_WS, soff="s13", flags="sc1")
    bstore(24, 4, 7, R_WS, soff="s13", imm=1024, flags="sc1")
    a.label("L_t01c")
    a.op2("v_lshrrev_b32", 7, "2", 0)
    a.op2("v_and_b32", 7, "3", 7)
    for c in range(4):
        a.cmp("v_cmp_eq_u32", sr(S_MASK + 2 * c, 2), str(c), 7)
    a.raw("s_waitcnt vmcnt(18)")
    V = 96
    unpack(V, XS, 8)
    M, RC = ln_stats(V, 112, ["quad_perm:[1,0,3,2]", "row_ror:4", "row_ror:8", "x16", "x32"])
    unpack(V, XA, 8)
    ln_apply(V, XA, M, RC)
    a.raw("s_lshl_b32 s6, s4, 2")
    a.op1("v_mov_b32", 4, "s6")
    a.raw("s_waitcnt vmcnt(10)")
    perm_half(RAW, PO0)
    a.raw("s_waitcnt vmcnt(2)")
    bload(5, 1, 4, R_C, imm=64, flags="sc1")
    stamp(1)
    perm_half(RAW + 32, PO1)
    for s in range(2):
        for c in range(4):
            for x in range(4):
                a.cndmask(AM + (s * 4 + c) * 4 + x, "0", XA + 4 * s + x, sr(S_MASK + 2 * c, 2))
    D0 = 8
    first = [True, True]
    for s, B in ((0, PO0), (1, PO1)):
        for c in range(4):
            for t in range(2):
                a.mfma16(D0 + 4 * t, AM + (s * 4 + c) * 4, B + 4 * (2 * c + t), None if first[t] else D0 + 4 * t)
                first[t] = False
    a.op2("v_and_b32", 2, "8", 0)
    a.cmp("v_cmp_ne_u32", sr(S_MASK, 2), "0", 2)
    QV = 16
    for t in range(2):
        for b in range(2):
            a.cndmask(QV + 2 * b + t, D0 + 4 * t + 2 * b, D0 + 4 * t + 2 * b + 1, sr(S_MASK, 2))
    a.allreduce("v_add_f32", [QV, QV + 1, QV + 2, QV + 3], ["row_ror:8"], [])
    for t in range(2):
        a.cndmask(QV + t, QV + t, QV + 2 + t, sr(S_MASK, 2))
    for t in range(2):
        a.op2("v_min_u32", QV + t, "-2", QV + t)
    a.op2("v_lshrrev_b32", 3, "4", 0)
    a.op2("v_and_b32", 6, "7", 0)
    a.op3("v_lshl_add_u32", 3, 3, "3", 6)
    a.op2("v_lshlrev_b32", 3, "3", 3)
    a.op3("v_lshl_add_u32", 3, 2, "10", 3)
    a.raw("s_lshl_b32 s8, s4, 14")
    a.raw("s_lshl_b32 s9, s10, 11")
    a.raw("s_add_u32 s9, s9, s8")
    a.raw("s_lshl_b32 s13, s11, 8")
    a.raw("s_add_u32 s9, s9, s13")
    a.raw("s_waitcnt vmcnt(0)")
    poll_flags(4, 64, "1", 5, pre_loaded=True)
    bstore(QV, 2, 3, R_WS, soff="s9", flags="sc1")
    stamp(2)
    issue_wo()
    a.raw("s_branch L_tcommon")

    a.label("L_t4")
    narrow_lane(2, 3, 4)
    a.op2("v_lshrrev_b32", 4, "2", 3)
    a.op2("v_lshlrev_b32", 4, "5", 4)
    a.op2("v_and_b32", 5, "3", 3)
    a.op3("v_lshl_add_u32", 4, 5, "1", 4)
    a.op2("v_mul_u32_u24", 4, "3584", 4)
    a.op2("v_and_b32", 5, "1", 0)
    a.op3("v_lshl_add_u32", 4, 5, "4", 4)
    a.raw(f"s_lshl_b32 s8, s{S_PHI}, 5")
    a.raw("s_waitcnt lgkmcnt(0)")
    srd(R_A, P_W1, 512 * 3584)
    srd_ws()
    srd(R_C, P_DBG, 256)
    a.raw("s_barrier")
    issue_wo()
    a.raw("s_cmp_ge_u32 s5, 14")
    a.raw("s_cbranch_scc1 L_tcommon")
    for s in range(2):
        for i in range(8):
            a.raw(f"s_add_u32 s9, s8, {(s * 256 + (i & 3) * 8 + (i >> 2)) * 3584}")
            bload(32 + (s * 8 + i) * 4, 4, 4, R_A, soff="s9", flags=NF)
    a.raw("s_waitcnt vmcnt(8)")
    perm_half(32, 96)
    a.raw("s_waitcnt vmcnt(0)")
    stamp(1)
    perm_half(64, 32)
    a.raw("s_branch L_tcommon")

    a.label("L_t5")
    a.op2("v_and_b32", 2, "15", 0)
    a.op2("v_lshrrev_b32", 3, "4", 0)
    a.op2("v_lshlrev_b32", 7, "12", 3)
    a.op3("v_lshl_add_u32", 4, 2, "4", 7)
    a.raw(f"s_lshl_b32 s8, s{S_PHI}, 14")
    a.raw("s_waitcnt lgkmcnt(0)")
    srd(R_A, P_W2, 1792 * 1024)
    srd_ws()
    srd(R_C, P_DBG, 256)
    a.raw("s_barrier")
    issue_wo()
    a.raw("s_cmp_ge_u32 s5, 14")
    a.raw("s_cbranch_scc1 L_tcommon")
    for pair in range(2):
        for i in range(8):
            bload(32 + (pair * 8 + i) * 4, 4, 4, R_A, soff="s8",
                  imm=(i & 3) * 1024 + (pair * 2 + (i >> 2)) * 256, flags=SF)
    a.raw("s_waitcnt vmcnt(8)")
    perm_half(32, 96)
    a.raw("s_waitcnt vmcnt(0)")
    stamp(1)
    perm_half(64, 32)
    a.raw("s_branch L_tcommon")

    a.label("L_t67")
    a.op2("v_lshlrev_b32", 2, "4", 0)
    for r in range(4):
        a.op1("v_mov_b32", 12 + r, "-1")
    a.raw("s_lshl_b32 s11, s4, 14")
    a.raw("s_waitcnt lgkmcnt(0)")
    srd_ws()
    srd(R_C, P_DBG, 256)
    a.raw("s_cmp_lg_u32 s5, 0")
    a.raw("s_cbranch_scc1 L_t7_nl0")
    a.raw("s_cmp_lg_u32 s3, 7")
    a.raw("s_cbranch_scc1 L_t7_nl0")
    for k in range(16):
        if k % 4 == 0:
            a.raw(f"s_add_u32 s12, s11, {QB + k * 1024}")
        bstore(12, 4, 2, R_WS, soff="s12", imm=(k % 4) * 1024, flags="sc1")
    a.raw("s_barrier")
    a.raw("s_lshl_b32 s6, s4, 2")
    a.op1("v_mov_b32", 3, "s6")
    a.op1("v_mov_b32", 4, "1")
    a.raw("s_waitcnt vmcnt(0)")
    a.raw("s_mov_b64 exec, 1")
    bstore(4, 1, 3, R_C, imm=64, flags="sc1")
    a.raw("s_mov_b64 exec, -1")
    stamp(1)
    a.raw("s_branch L_t7_nl")
    a.label("L_t7_nl0")
    a.raw("s_barrier")
    a.label("L_t7_nl")
    issue_wo()

    a.label("L_tcommon")
    a.fence()
    C = 128
    T = 160
    srd(R_B, P_X, 2048)
    a.op2("v_lshrrev_b32", T, "4", 0)
    a.op2("v_lshlrev_b32", T + 2, "11", T)
    a.op2("v_and_b32", T + 1, "15", 0)
    a.op3("v_lshl_add_u32", T + 30, T + 1, "4", T + 2)
    a.raw("s_lshl_b32 s6, s3, 8")
    a.op3("v_lshl_add_u32", T + 25, T + 1, "3", "s6")
    a.op2("v_and_b32", T + 2, "32", 0)
    a.op3("v_lshl_add_u32", T + 25, T + 2, "2", T + 25)
    a.op2("v_and_b32", T + 2, "1", T)
    a.op3("v_lshl_add_u32", T + 25, T + 2, "2", T + 25)
    a.op2("v_and_b32", T + 2, "3", 0)
    a.op3("v_lshl_add_u32", T + 2, T, "2", T + 2)
    a.op3("v_lshl_add_u32", T + 24, T + 2, "3", "s6")
    a.op2("v_and_b32", T + 3, "4", 0)
    a.op3("v_lshl_add_u32", T + 24, T + 3, "5", T + 24)
    a.op3("v_lshl_add_u32", T + 23, T + 2, "4", "s6")
    a.op2("v_lshrrev_b32", T + 2, "5", 0)
    a.op2("v_lshlrev_b32", T + 2, "12", T + 2)
    a.op2("v_and_b32", T + 1, "31", 0)
    a.op3("v_lshl_add_u32", T + 28, T + 1, "4", T + 2)
    a.op2("v_and_b32", T + 2, "4", T + 1)
    a.op2("v_and_b32", T + 3, "8", T + 1)
    a.op2("v_lshrrev_b32", T + 3, "2", T + 3)
    a.op2("v_add_u32", T + 2, T + 2, T + 3)
    a.op2("v_and_b32", T + 3, "2", T + 1)
    a.op2("v_lshrrev_b32", T + 3, "1", T + 3)
    a.op2("v_add_u32", T + 2, T + 2, T + 3)
    a.op2("v_and_b32", T + 3, "16", T + 1)
    a.op2("v_lshlrev_b32", T + 3, "2", T + 3)
    a.op2("v_and_b32", T + 4, "1", T + 1)
    a.op3("v_lshl_add_u32", T + 3, T + 4, "10", T + 3)
    a.raw("s_lshl_b32 s7, s3, 7")
    a.op2("v_add_u32", T + 3, "s7", T + 3)
    a.op3("v_lshl_add_u32", T + 29, T + 2, "3", T + 3)
    a.op3("v_lshl_add_u32", T + 3, T + 2, "1", T + 3)
    for ch in range(4):
        a.mem(f"buffer_load_ushort v{T + 18 + ch}, v{T + 3}, {sr(R_B, 4)}, 0 offen offset:{16 * ch}",
              src=[T + 3], dst=[T + 18 + ch])
    a.raw("s_lshl_b32 s7, s4, 15")
    a.raw("s_add_u32 s6, s6, s7")
    for k in range(4):
        a.raw(f"s_add_u32 s{8 + k}, s6, {OB + k * 8192}")
    a.raw("s_lshl_b32 s6, s3, 9")
    for k in range(4):
        a.raw(f"s_add_u32 s{12 + k}, s6, {AB + k * 8192}")
    a.op2("v_lshrrev_b32", T + 2, "2", 0)
    a.op2("v_and_b32", T + 2, "3", T + 2)
    for r in (1, 2, 3):
        a.cmp("v_cmp_eq_u32", sr(S_MASK + 2 * (r - 1), 2), str(r), T + 2)
    a.op2("v_and_b32", T + 2, "8", 0)
    a.cmp("v_cmp_ne_u32", sr(S_MASK + 6, 2), "0", T + 2)
    a.op2("v_lshlrev_b32", T + 3, "2", 0)
    a.raw("s_waitcnt vmcnt(0)")
    for j in range(4):
        for x in range(2):
            lo, hi = WOR + (2 * x) * 4 + j, WOR + (2 * x + 1) * 4 + j
            a.op3("v_perm_b32", WOP + (2 * j) * 2 + x, hi, lo, f"s{S_SELLO}")
            a.op3("v_perm_b32", WOP + (2 * j + 1) * 2 + x, hi, lo, f"s{S_SELHI}")
    poll_flags(T + 3, 0, "0xff", T + 4)
    stamp(3)
    poll_masked([(C + 4 * k, T + 30, f"s{8 + k}", 0) for k in range(4)], T + 2, sleep=opts.get("sleep_o", 2))
    stamp(4)
    a.raw("s_mov_b32 s6, 0x0c0c0400")
    LK = T
    for k in range(4):
        a.op3("v_perm_b32", LK + k, C + 4 * k + 1, C + 4 * k, "s6")
        a.op3("v_perm_b32", T + 4 + k, C + 4 * k + 3, C + 4 * k + 2, "s6")
    for k in range(4):
        a.op3("v_perm_b32", LK + k, T + 4 + k, LK + k, f"s{S_SELLO}")
    MM = T + 4
    for b in range(2):
        a.op2("v_max_f32", MM + b, LK + 2 * b, LK + 2 * b + 1)
    a.allreduce("v_max_f32", [MM, MM + 1], ["x16", "x32"], [T + 6, T + 7])
    for k in range(4):
        a.op2("v_sub_f32", LK + k, LK + k, MM + (k >> 1))
    for k in range(4):
        a.op1("v_exp_f32", LK + k, LK + k, kind="trans")
    AC = T + 8
    SS = T + 16
    for b in range(2):
        for r in range(4):
            a.op2("v_mul_f32", AC + 4 * b + r, LK + 2 * b, C + 8 * b + r)
    for b in range(2):
        for r in range(4):
            a.op2("v_fmac_f32", AC + 4 * b + r, LK + 2 * b + 1, C + 8 * b + 4 + r)
        a.op2("v_add_f32", SS + b, LK + 2 * b, LK + 2 * b + 1)
    a.swap32(SS, SS + 1)
    for r in range(4):
        a.swap32(AC + r, AC + 4 + r)
    a.op2("v_add_f32", SS, SS, SS + 1)
    for r in range(4):
        a.op2("v_add_f32", AC + r, AC + r, AC + 4 + r)
    a.op1("v_mov_b32", SS + 1, SS)
    a.swap16(AC, AC + 2)
    a.swap16(AC + 1, AC + 3)
    a.swap16(SS, SS + 1)
    a.op2("v_add_f32", SS, SS, SS + 1)
    a.op2("v_add_f32", AC, AC, AC + 2)
    a.op2("v_add_f32", AC + 1, AC + 1, AC + 3)
    a.op1("v_rcp_f32", SS, SS, kind="trans")
    for r in range(2):
        a.op2("v_mul_f32", AC + r, AC + r, SS)
    a.op2e("v_cvt_pk_bf16_f32", AC, AC, AC + 1)
    dsw(AC, 1, T + 25, L_ON)
    a.raw("s_waitcnt lgkmcnt(0)")
    dsr(T, 2, T + 24, L_ON)
    a.raw("s_waitcnt lgkmcnt(0)")
    for x in range(2):
        a.cndmask(T + 2 + x, T + x, "0", sr(S_MASK + 6, 2))
        a.cndmask(T + 4 + x, "0", T + x, sr(S_MASK + 6, 2))
    for cc in range(2):
        for t in range(4):
            a.mfma16k16(AC3 + 4 * t, T + 2 + 2 * cc, WOP + 2 * (2 * t + cc), None if cc == 0 else AC3 + 4 * t)
    for t in range(4):
        a.cndmask(T + 8 + t, AC3 + 4 * t, AC3 + 4 * t + 1, sr(S_MASK, 2))
        a.cndmask(T + 8 + t, T + 8 + t, AC3 + 4 * t + 2, sr(S_MASK + 2, 2))
        a.cndmask(T + 8 + t, T + 8 + t, AC3 + 4 * t + 3, sr(S_MASK + 4, 2))
    a.allreduce("v_add_f32", [T + 8 + t for t in range(4)], ["row_ror:4", "row_ror:8"], [])
    a.raw("s_mov_b32 exec_lo, 0x000f000f")
    a.raw("s_mov_b32 exec_hi, 0x000f000f")
    dsw(T + 8, 4, T + 23, L_P3)
    a.raw("s_mov_b64 exec, -1")
    a.op2("v_lshlrev_b32", T + 2, "4", 0)
    a.op2("v_lshlrev_b32", T + 3, "2", 0)
    a.raw("s_lshl_b32 s6, s4, 4")
    a.raw("s_add_u32 s6, s6, s5")
    a.raw("s_lshl_b32 s9, s6, 8")
    a.raw(f"s_add_u32 s9, s9, {AB}")
    a.raw("s_waitcnt lgkmcnt(0)")
    a.raw("s_barrier")
    a.raw("s_cmp_lg_u32 s3, 2")
    a.raw("s_cbranch_scc1 L_after_s3")
    dsr(T + 8, 4, T + 2, L_P3)
    dsr(T + 12, 4, T + 2, L_P3 + 1024)
    a.raw("s_waitcnt lgkmcnt(0)")
    for t in range(4):
        a.op2("v_add_f32", T + 8 + t, T + 8 + t, T + 12 + t)
    a.swap32(T + 8, T + 9)
    a.swap32(T + 10, T + 11)
    a.op2("v_add_f32", T + 8, T + 8, T + 9)
    a.op2("v_add_f32", T + 10, T + 10, T + 11)
    a.swap16(T + 8, T + 10)
    a.op2("v_add_f32", T + 8, T + 8, T + 10)
    a.op2("v_min_u32", T + 8, "-2", T + 8)
    bstore(T + 8, 1, T + 3, R_WS, soff="s9", flags="sc1")
    stamp(2)
    a.label("L_after_s3")
    a.fence()
    a.raw("s_cmp_ge_u32 s5, 14")
    a.raw("s_cbranch_scc1 L_exit")
    for r in range(4):
        a.op2("v_lshlrev_b32", T + 18 + r, "16", T + 18 + r)
    narrow_lane(2, 3, 4)
    a.op2("v_lshlrev_b32", 2, "4", 2)
    a.op2("v_and_b32", 3, "8", 0)
    a.op3("v_lshl_add_u32", 2, 3, "7", 2)
    narrow_masks(3, 4)
    poll_masked([(C + 4 * k, T + 28, f"s{12 + k}", 0) for k in range(4)], T + 2, sleep=opts.get("sleep_a", 2))
    stamp(5)
    for r in range(4):
        a.op2("v_add_f32", C + r, C + r, C + 4 + r)
        a.op2("v_add_f32", C + 8 + r, C + 8 + r, C + 12 + r)
    for r in range(4):
        a.op2("v_add_f32", C + r, C + r, C + 8 + r)
    a.allreduce("v_add_f32", [C + r for r in range(4)], ["x32"], [C + 4 + r for r in range(4)])
    a.op2e("v_cvt_pk_bf16_f32", C + 4, C, C + 1)
    a.op2e("v_cvt_pk_bf16_f32", C + 5, C + 2, C + 3)
    unpack(C, C + 4, 2)
    for r in range(4):
        a.op2("v_add_f32", C + r, C + r, T + 18 + r)
    a.op2e("v_cvt_pk_bf16_f32", C + 4, C, C + 1)
    a.op2e("v_cvt_pk_bf16_f32", C + 5, C + 2, C + 3)
    a.raw("s_mov_b32 exec_hi, 0")
    dsw(C + 4, 2, T + 29, L_H)
    a.raw("s_mov_b64 exec, -1")
    a.raw("s_waitcnt lgkmcnt(0)")
    a.raw("s_barrier")
    a.raw("s_cmp_eq_u32 s3, 5")
    a.raw("s_cbranch_scc1 L_s5")
    a.raw("s_cmp_lg_u32 s3, 4")
    a.raw("s_cbranch_scc1 L_exit")
    for s in range(2):
        dsr(16 + 4 * s, 4, 2, L_H + 512 * s)
    a.op2("v_and_b32", 5, "33", 0)
    a.op2("v_and_b32", 6, "1", 0)
    a.op3("v_lshl_add_u32", 5, 6, "4", 5)
    a.op2("v_and_b32", 5, "0x30", 5)
    a.raw("s_waitcnt lgkmcnt(0)")
    V = 64
    unpack(V, 16, 8)
    M, RC = ln_stats(V, 80, ["quad_perm:[1,0,3,2]", "quad_perm:[2,3,0,1]", "row_half_mirror", "x16", "x32"])
    ln_apply(V, 16, M, RC)
    HV, HT = 8, 24
    narrow_mfma([16, 20], [96, 32], 64, HV, HT)
    for d in range(4):
        a.op2e("v_cvt_pk_bf16_f32", HT + d, HV + 2 * d, HV + 2 * d + 1)
    unpack(HV, HT, 4)
    for i in range(8):
        a.op2("v_mul_f32", HT + i, "0xbfb8aa3b", HV + i)
    for i in range(8):
        a.op1("v_exp_f32", HT + i, HT + i, kind="trans")
    for i in range(8):
        a.op2("v_add_f32", HT + i, "1.0", HT + i)
    for i in range(8):
        a.op1("v_rcp_f32", HT + i, HT + i, kind="trans")
    for i in range(8):
        a.op2("v_mul_f32", HV + i, HV + i, HT + i)
    for d in range(4):
        a.op2e("v_cvt_pk_bf16_f32", 16 + d, HV + 2 * d, HV + 2 * d + 1)
    a.raw("s_mov_b32 exec_lo, 3")
    a.raw("s_mov_b32 exec_hi, 3")
    dsw(16, 4, 5, L_G)
    a.raw("s_mov_b64 exec, -1")
    a.raw("s_waitcnt lgkmcnt(0)")
    stamp(6)
    a.raw("s_barrier")
    a.raw("s_branch L_exit")
    a.label("L_s5")
    a.op2("v_lshrrev_b32", 2, "1", 0)
    a.op2("v_and_b32", 2, "7", 2)
    for k in range(8):
        a.cmp("v_cmp_eq_u32", sr(S_PM + 2 * k, 2), str(k), 2)
    a.op2("v_lshrrev_b32", 3, "4", 0)
    a.op2("v_and_b32", 4, "1", 0)
    a.op2("v_lshlrev_b32", 4, "5", 4)
    a.op3("v_lshl_add_u32", 4, 3, "3", 4)
    a.op2("v_and_b32", 5, "15", 0)
    a.op2("v_lshrrev_b32", 5, "2", 5)
    a.op3("v_lshl_add_u32", 5, 3, "2", 5)
    a.op2("v_mul_u32_u24", 5, "7168", 5)
    a.op2("v_and_b32", 6, "3", 0)
    a.op3("v_lshl_add_u32", 5, 6, "4", 5)
    a.raw(f"s_lshl_b32 s8, s{S_PHI}, 6")
    a.raw("s_barrier")
    PP, AMW, ACC = 8, 80, 64
    dsr(PP, 2, 4, L_G)
    a.raw("s_waitcnt lgkmcnt(0)")
    for c in range(4):
        for half in range(2):
            for x in range(2):
                a.cndmask(AMW + 4 * c + 2 * half + x, "0", PP + x, sr(S_PM + 2 * (2 * c + half), 2))
    for pair, B in ((0, 96), (1, 32)):
        for ch in range(2):
            d = ACC + (pair * 2 + ch) * 4
            for c in range(4):
                a.mfma16(d, AMW + 4 * c, B + 4 * (ch * 4 + c), None if c == 0 else d)
    for pair in range(2):
        for ch in range(2):
            d = ACC + (pair * 2 + ch) * 4
            for r in range(4):
                a.op2("v_min_u32", d + r, "-2", d + r)
            a.raw(f"s_add_u32 s6, s8, {FB + (pair * 32 + ch * 16) * 7168}")
            bstore(d, 4, 5, R_WS, soff="s6", flags="sc1")
    stamp(6)
    a.label("L_exit")
    dump_stamps()
    a.label("L_end")
    a.raw("s_endpgm")

    hdr = open(f"cdna_kernels/{NAME}.s.ref").read().split("; Override launch")[0]
    out = hdr
    out += "; Override launch geometry by editing the next line (default: block=256,\n"
    out += "; grid=ceil(out_elems/256), lds=0). Harness parses it; keep it on one line.\n"
    out += f"; @launch grid=(256,1,1) block=(512,1,1) lds={LDS_BYTES}\n"
    out += '.amdgcn_target "amdgcn-amd-amdhsa--gfx950"\n.text\n'
    out += f".globl {NAME}_kernel\n.p2align 8\n.type {NAME}_kernel,@function\n{NAME}_kernel:\n"
    out += a.text()
    out += '.section .rodata,"a"\n.p2align 6\n'
    out += f".amdhsa_kernel {NAME}_kernel\n"
    out += "  .amdhsa_next_free_vgpr 224\n  .amdhsa_next_free_sgpr 102\n  .amdhsa_accum_offset 224\n"
    out += "  .amdhsa_group_segment_fixed_size 0\n  .amdhsa_kernarg_size 88\n  .amdhsa_user_sgpr_count 2\n"
    out += "  .amdhsa_user_sgpr_kernarg_segment_ptr 1\n  .amdhsa_system_sgpr_workgroup_id_x 1\n"
    out += "  .amdhsa_float_denorm_mode_32 3\n"
    out += ".end_amdhsa_kernel\n"
    return out


if __name__ == "__main__":
    debug = "--debug" in sys.argv
    path = [x for x in sys.argv[1:] if not x.startswith("--")]
    path = path[0] if path else f"cdna_kernels/{NAME}.s"
    opts = {}
    for x in sys.argv[1:]:
        if x.startswith("--opt="):
            k, v = x[6:].split(":")
            opts[k] = int(v) if v.lstrip("-").isdigit() else v
    open(path, "w").write(gen(debug, opts))
    print("wrote", path)
```

```python
import sys
from asmlib import Asm, vr, sr

NAME = "sequential_preLN__sliding_block_cached__dense_activation_silu__decode"

QB = 0
OB = 128 * 1024
AB = 384 * 1024
FB = 416 * 1024
WS_BYTES = 1 << 20
TS_BASE = WS_BYTES
WS_SIZE_DBG = WS_BYTES + 256 * 8 * 128

L_Q = 0
L_ST = 1024
L_K = 2048
L_ON = 0
L_H = 2048
L_G = 4096
L_P3 = 4352
LDS_BYTES = 2048 + 65536

LOG2E = "0x3fb8aa3b"
SCALE = "0x3db504f3"
INV512 = "0x3b000000"
EPS = "0x3727c5ac"
POLL_MAX = 1 << 15
CODE_KB = 14

S_WG, S_WAVE, S_G, S_IDX = 2, 3, 4, 5
P_X, P_K, P_V, P_WQ, P_WO, P_W1, P_W2, P_OUT, P_DBG, P_WS = 16, 18, 20, 22, 24, 28, 30, 32, 34, 36
S_CNT = 38
S_PHI = 39
R_WS, R_A, R_B, R_C, R_D = 40, 44, 48, 52, 56
S_SELLO, S_SELHI = 60, 61
S_PM = 62
S_MASK = 78
S_TS = 88


def gen(debug=False, opts=None):
    opts = opts or {}
    SF = opts.get("stream_flags", "nt")
    NF = opts.get("narrow_flags", "nt")
    if NF == "def":
        NF = ""
    a = Asm()
    marks = {}

    def mark(name):
        marks[name] = len(a.lines)

    def stamp(k):
        if debug:
            assert k < 7
            a.raw(f"s_memrealtime {sr(S_TS + 2 * k, 2)}")

    def dump_stamps():
        if not debug:
            return
        a.raw("s_waitcnt vmcnt(0) lgkmcnt(0)")
        a.raw("s_mov_b64 exec, 1")
        a.raw(f"s_lshl_b32 s6, s{S_WG}, 3")
        a.raw(f"s_add_u32 s6, s6, s{S_WAVE}")
        a.raw("s_lshl_b32 s6, s6, 7")
        a.raw(f"s_add_u32 s6, s6, {TS_BASE}")
        a.op1("v_mov_b32", 1, "s6")
        for k in range(7):
            a.op1("v_mov_b32", 2, f"s{S_TS + 2 * k}")
            a.op1("v_mov_b32", 3, f"s{S_TS + 2 * k + 1}")
            a.mem(f"buffer_store_dwordx2 v[2:3], v1, {sr(R_WS, 4)}, 0 offen offset:{8 * k}", src=[1, 2, 3])
            a.nop(2)

    def srd(dst, ptr, size):
        a.raw(f"s_mov_b32 s{dst}, s{ptr}")
        a.raw(f"s_and_b32 s{dst + 1}, s{ptr + 1}, 0xffff")
        a.raw(f"s_mov_b32 s{dst + 2}, {size}")
        a.raw(f"s_mov_b32 s{dst + 3}, 0x20000")

    def bload(d, n, off, srdb, soff="0", imm=0, flags=""):
        op = {1: "buffer_load_dword", 2: "buffer_load_dwordx2", 4: "buffer_load_dwordx4"}[n]
        t = f"{op} {vr(d, n)}, v{off}, {sr(srdb, 4)}, {soff} offen"
        if imm:
            t += f" offset:{imm}"
        if flags:
            t += " " + flags
        a.mem(t, src=[off], dst=list(range(d, d + n)))

    def bstore(s, n, off, srdb, soff="0", imm=0, flags="", op=None):
        op = op or {1: "buffer_store_dword", 2: "buffer_store_dwordx2", 4: "buffer_store_dwordx4"}[n]
        t = f"{op} {vr(s, n)}, v{off}, {sr(srdb, 4)}, {soff} offen"
        if imm:
            t += f" offset:{imm}"
        if flags:
            t += " " + flags
        regs = list(range(s, s + n))
        a.mem(t, src=[off] + regs, wide_store=regs if n == 4 else ())

    def dsr(d, n, addr, off):
        op = {1: "ds_read_b32", 2: "ds_read_b64", 4: "ds_read_b128"}[n]
        a.mem(f"{op} {vr(d, n)}, v{addr} offset:{off}", src=[addr], dst=list(range(d, d + n)))

    def dsw(s, n, addr, off):
        op = {1: "ds_write_b32", 2: "ds_write_b64", 4: "ds_write_b128"}[n]
        a.mem(f"{op} v{addr}, {vr(s, n)} offset:{off}", src=[addr] + list(range(s, s + n)))

    def poll_flags(voff, imm, lanes, tmp, pre_loaded=False):
        lp, dn, ck = a.newlabel("fp"), a.newlabel("fd"), a.newlabel("fc")
        a.raw(f"s_mov_b32 s{S_CNT}, {POLL_MAX}")
        a.raw(f"s_mov_b64 exec, {lanes}")
        if pre_loaded:
            a.raw(f"s_branch {ck}")
        a.label(lp)
        bload(tmp, 1, voff, R_C, imm=imm, flags="sc1")
        a.raw("s_waitcnt vmcnt(0)")
        a.label(ck)
        a.valu(f"v_cmp_ne_u32_e32 vcc, 1, v{tmp}", src=[tmp], sdst=["vcc"])
        a.raw(f"s_cbranch_vccz {dn}")
        a.raw("s_sleep 2")
        a.raw(f"s_sub_u32 s{S_CNT}, s{S_CNT}, 1")
        a.raw(f"s_cmp_eq_u32 s{S_CNT}, 0")
        a.raw(f"s_cbranch_scc0 {lp}")
        a.label(dn)
        a.raw("s_mov_b64 exec, -1")

    def poll_issue(loads, width=4):
        for (d, vo, so, im) in loads:
            bload(d, width, vo, R_WS, soff=so, imm=im, flags="sc1")

    def poll_masked(loads, tmp, sleep=0, issued=False, first_wait=0, width=4):
        n = len(loads)
        lp, dn, ck = a.newlabel("pl"), a.newlabel("pd"), a.newlabel("pc")
        a.raw(f"s_mov_b32 s{S_CNT}, {POLL_MAX}")
        if not issued:
            poll_issue(loads, width)
        if first_wait:
            a.raw(f"s_waitcnt vmcnt({first_wait})")
            a.raw(f"s_branch {ck}")
        a.label(lp)
        a.raw("s_waitcnt vmcnt(0)")
        a.label(ck)
        for k, (d, vo, so, im) in enumerate(loads):
            t = tmp + (k & 1)
            if width == 4:
                a.op3("v_max3_u32", t, d, d + 1, d + 2)
                a.op2("v_max_u32", t, t, d + 3)
            else:
                t = d
            a.cmp("v_cmp_eq_u32", sr(S_PM + 2 * k, 2), "-1", t)
        a.nop(1)
        if n == 1:
            a.raw(f"s_cmp_eq_u64 {sr(S_PM, 2)}, 0")
        else:
            a.raw(f"s_or_b64 s[6:7], {sr(S_PM, 2)}, {sr(S_PM + 2, 2)}")
            for k in range(2, n):
                a.raw(f"s_or_b64 s[6:7], s[6:7], {sr(S_PM + 2 * k, 2)}")
            a.raw("s_cmp_eq_u64 s[6:7], 0")
        a.raw(f"s_cbranch_scc1 {dn}")
        if sleep:
            a.raw(f"s_sleep {sleep}")
        for k, (d, vo, so, im) in enumerate(loads):
            sk = a.newlabel("sk")
            a.raw(f"s_mov_b64 exec, {sr(S_PM + 2 * k, 2)}")
            a.raw(f"s_cbranch_execz {sk}")
            bload(d, width, vo, R_WS, soff=so, imm=im, flags="sc1")
            a.label(sk)
        a.raw("s_mov_b64 exec, -1")
        a.raw(f"s_sub_u32 s{S_CNT}, s{S_CNT}, 1")
        a.raw(f"s_cmp_eq_u32 s{S_CNT}, 0")
        a.raw(f"s_cbranch_scc0 {lp}")
        a.raw("s_waitcnt vmcnt(0)")
        a.label(dn)

    def perm_half(raw, out):
        for x in range(4):
            for j in range(4):
                lo = raw + (2 * x) * 4 + j
                hi = raw + (2 * x + 1) * 4 + j
                a.op3("v_perm_b32", out + (2 * j) * 4 + x, hi, lo, f"s{S_SELLO}")
                a.op3("v_perm_b32", out + (2 * j + 1) * 4 + x, hi, lo, f"s{S_SELHI}")

    def round_bf16(d, s):
        a.op2e("v_cvt_pk_bf16_f32", d, s, s)
        a.op2("v_lshlrev_b32", d, "16", d)

    def unpack(V, R, n):
        for d in range(n):
            a.op2("v_lshlrev_b32", V + 2 * d, "16", R + d)
            a.op2("v_and_b32", V + 2 * d + 1, "0xffff0000", R + d)

    def ln_stats(V, T, steps):
        S, S2, Q, Q2, t0, t1, M, RC = range(T, T + 8)
        a.op2("v_add_f32", S, V + 0, V + 1)
        a.op2("v_add_f32", S2, V + 2, V + 3)
        for i in range(4, 16, 2):
            a.op2("v_add_f32", S, S, V + i)
            a.op2("v_add_f32", S2, S2, V + i + 1)
        a.op2("v_add_f32", S, S, S2)
        a.allreduce("v_add_f32", [S], steps, [t0])
        a.op2("v_mul_f32", S, INV512, S)
        a.op2("v_sub_f32", t0, V + 0, S)
        a.op2("v_sub_f32", t1, V + 1, S)
        a.op2("v_mul_f32", Q, t0, t0)
        a.op2("v_mul_f32", Q2, t1, t1)
        for i in range(2, 16, 2):
            a.op2("v_sub_f32", t0, V + i, S)
            a.op2("v_sub_f32", t1, V + i + 1, S)
            a.op2("v_fmac_f32", Q, t0, t0)
            a.op2("v_fmac_f32", Q2, t1, t1)
        a.op2("v_add_f32", Q, Q, Q2)
        a.allreduce("v_add_f32", [Q], steps, [t0])
        round_bf16(M, S)
        a.op2("v_mul_f32", Q, INV512, Q)
        round_bf16(Q, Q)
        a.op2("v_add_f32", Q, EPS, Q)
        round_bf16(Q, Q)
        a.op1("v_sqrt_f32", Q, Q, kind="trans")
        round_bf16(Q, Q)
        a.op1("v_rcp_f32", RC, Q, kind="trans")
        return M, RC

    def ln_apply(V, A, M, RC):
        for i in range(16):
            a.op2("v_sub_f32", V + i, V + i, M)
        for d in range(8):
            a.op2e("v_cvt_pk_bf16_f32", A + d, V + 2 * d, V + 2 * d + 1)
        unpack(V, A, 8)
        for i in range(16):
            a.op2("v_mul_f32", V + i, V + i, RC)
        for d in range(8):
            a.op2e("v_cvt_pk_bf16_f32", A + d, V + 2 * d, V + 2 * d + 1)

    def narrow_masks(t0, t1):
        a.op2("v_lshrrev_b32", t0, "1", 0)
        a.op2("v_and_b32", t0, "3", t0)
        for r in (1, 2, 3):
            a.cmp("v_cmp_eq_u32", sr(S_MASK + 2 * (r - 1), 2), str(r), t0)
        a.op2("v_lshrrev_b32", t0, "4", 0)
        a.op2("v_lshrrev_b32", t1, "3", 0)
        a.op2("v_xor_b32", t0, t0, t1)
        a.op2("v_and_b32", t0, "1", t0)
        a.cmp("v_cmp_eq_u32", sr(S_MASK + 6, 2), "0", t0)

    def narrow_mfma(As, Bs, ACC, OUT, TMP):
        for s, (A, B) in enumerate(zip(As, Bs)):
            for c in range(8):
                a.mfma16(ACC + 4 * c, A, B + 4 * c, None if s == 0 else ACC + 4 * c)
        for c in range(8):
            a.cndmask(OUT + c, ACC + 4 * c, ACC + 4 * c + 1, sr(S_MASK, 2))
            a.cndmask(OUT + c, OUT + c, ACC + 4 * c + 2, sr(S_MASK + 2, 2))
            a.cndmask(OUT + c, OUT + c, ACC + 4 * c + 3, sr(S_MASK + 4, 2))
            a.cndmask(OUT + c, "0", OUT + c, sr(S_MASK + 6, 2))
        vals = [OUT + c for c in range(8)]
        a.allreduce("v_add_f32", vals, ["row_ror:2", "row_ror:4", "row_ror:8", "x16"],
                    [TMP + c for c in range(8)])

    def narrow_lane(dst_u, dst_un, t):
        a.op2("v_lshrrev_b32", t, "4", 0)
        a.op2("v_and_b32", dst_u, "7", 0)
        a.op3("v_lshl_add_u32", dst_u, t, "3", dst_u)
        a.op2("v_lshrrev_b32", dst_un, "1", 0)
        a.op2("v_and_b32", dst_un, "7", dst_un)
        a.op3("v_lshl_add_u32", dst_un, t, "3", dst_un)

    def srd_ws():
        srd(R_WS, P_WS, WS_SIZE_DBG if debug else WS_BYTES)

    a.raw("s_cmp_ge_u32 s2, 256")
    a.raw("s_cbranch_scc1 L_end")
    a.raw("s_load_dwordx16 s[16:31], s[0:1], 0")
    a.raw("s_load_dwordx4 s[32:35], s[0:1], 64")
    a.raw("s_load_dwordx2 s[36:37], s[0:1], 80")
    stamp(0)
    a.op2("v_lshrrev_b32", 1, "6", 0)
    a.op2("v_and_b32", 0, "63", 0)
    a.nop(1)
    a.valu("v_readfirstlane_b32 s3, v1", src=[1], sdst=["s3"])
    a.raw("s_and_b32 s4, s2, 7")
    a.raw("s_lshr_b32 s5, s2, 4")
    a.raw(f"s_mov_b32 s{S_SELLO}, 0x05040100")
    a.raw(f"s_mov_b32 s{S_SELHI}, 0x07060302")
    a.raw("s_bitcmp1_b32 s2, 3")
    a.raw("s_cbranch_scc0 L_att")
    mark("att0")
    a.label("L_att")

    KOFF, VOFF, QOFF = 4, 5, 6
    KR, VRAW, QR, SACC, PR, PM, OACC = 16, 48, 80, 96, 104, 108, 8
    G0 = 128
    a.op2("v_and_b32", 2, "15", 0)
    a.op2("v_lshrrev_b32", 3, "4", 0)
    a.op2("v_xor_b32", 7, 2, 3)
    a.op2("v_lshlrev_b32", 7, "4", 7)
    for q in range(4):
        a.op2("v_xor_b32", 112 + q, str(64 * q), 7)
        a.op3("v_lshl_add_u32", 116 + q, 2, "8", 112 + q)
        a.op3("v_lshl_add_u32", 112 + q, 3, "8", 112 + q)
    a.raw("s_lshl_b32 s13, s3, 13")
    a.raw(f"s_add_u32 s13, s13, {L_K}")
    for q in range(4):
        a.op2("v_add_u32", 116 + q, "s13", 116 + q)
    a.op2("v_lshlrev_b32", 7, "10", 3)
    a.op3("v_lshl_add_u32", VOFF, 2, "4", 7)
    for t in ["s_lshr_b32 s6, s5, 3", "s_and_b32 s7, s5, 7", "s_lshl_b32 s8, s6, 3", "s_add_u32 s8, s8, s4",
              "s_lshl_b32 s8, s8, 13", "s_lshl_b32 s9, s7, 8", "s_add_u32 s8, s8, s9", "s_lshl_b32 s9, s3, 5",
              "s_add_u32 s8, s8, s9", "s_add_u32 s8, s8, 6144", "s_lshl_b32 s8, s8, 8", "s_add_u32 s9, s8, 4096"]:
        a.raw(t)
    a.op2("v_lshlrev_b32", 7, "4", 0)
    a.raw("s_lshl_b32 s14, s5, 3")
    a.raw("s_add_u32 s14, s14, s4")
    a.raw("s_mul_i32 s15, s14, 7168")
    a.raw(f"s_add_u32 s15, s15, {FB}")
    a.raw("s_waitcnt lgkmcnt(0)")
    srd(R_A, P_K, 0x2000000)
    srd(R_B, P_V, 0x2000000)
    srd_ws()
    srd(R_C, P_DBG, 256)
    a.raw("s_cmp_lg_u32 s3, 1")
    a.raw("s_cbranch_scc1 L_a_nc")
    a.raw("s_cmp_ge_u32 s5, 8")
    a.raw("s_cbranch_scc1 L_a_nc")
    for r in range(4):
        a.op1("v_mov_b32", 12 + r, "-1")
    a.raw("s_add_u32 s6, s15, 4096")
    for k in range(7):
        bstore(12, 4, 7, R_WS, soff="s15" if k < 4 else "s6", imm=(k & 3) * 1024, flags="sc1")
    a.label("L_a_nc")
    for T in range(2):
        if T:
            a.raw("s_add_u32 s13, s13, 4096")
        a.raw("s_mov_b32 m0, s13")
        a.nop(1)
        for q in range(4):
            a.mem(f"buffer_load_dwordx4 v{112 + q}, {sr(R_A, 4)}, s{8 + T} offen offset:{q * 1024} {SF} lds",
                  src=[112 + q])
    a.raw("s_lshl_b32 s6, s4, 2")
    a.op1("v_mov_b32", 124, "s6")
    if opts.get("kbar", 1):
        a.raw("s_barrier")
    bload(125, 1, 124, R_C, imm=64, flags="sc1")
    for i in range(4):
        bload(VRAW + i * 4, 4, VOFF, R_B, soff="s8", imm=i * 256, flags=SF)
    a.raw("s_branch L_att1")
    mark("att1")
    a.label("L_att1")
    a.op2("v_and_b32", 2, "3", 0)
    a.op2("v_lshlrev_b32", 2, "8", 2)
    a.op3("v_lshl_add_u32", QOFF, 3, "4", 2)
    a.op2("v_lshrrev_b32", 2, "2", 0)
    a.op2("v_and_b32", 2, "3", 2)
    for c in range(4):
        a.cmp("v_cmp_eq_u32", sr(S_MASK + 2 * c, 2), str(c), 2)
    a.raw(f"s_mov_b32 s10, {SCALE}")
    a.raw(f"s_mov_b32 s11, {LOG2E}")
    a.raw("s_lshl_b32 s12, s4, 14")
    a.raw("s_lshr_b32 s6, s5, 3")
    a.raw("s_lshl_b32 s6, s6, 13")
    a.raw("s_add_u32 s12, s12, s6")
    a.raw("s_add_u32 s13, s12, 4096")
    a.raw("s_waitcnt vmcnt(4)")
    stamp(1)
    a.raw("s_barrier")
    qloads = [(G0 + 4 * k, 7, "s12" if k < 4 else "s13", (k & 3) * 1024) for k in range(8)]
    a.raw("s_cmp_lg_u32 s3, 0")
    a.raw("s_cbranch_scc1 L_a_nq")
    poll_flags(124, 64, "1", 125, pre_loaded=True)
    poll_issue(qloads)
    a.label("L_a_nq")
    a.raw("s_barrier")
    for i in range(4, 8):
        bload(VRAW + i * 4, 4, VOFF, R_B, soff="s9", imm=(i % 4) * 256, flags=SF)
    for T in range(2):
        for s in range(4):
            dsr(KR + T * 16 + s * 4, 4, 116 + s, T * 4096)
    a.raw("s_cmp_lg_u32 s3, 0")
    a.raw("s_cbranch_scc1 L_a_nq2")
    poll_masked(qloads, 126, sleep=1, issued=True, first_wait=4)
    for h2 in range(2):
        for e in range(4):
            d = G0 + 4 * h2 + e
            a.op2("v_add_f32", d, d, d + 8)
            a.op2("v_add_f32", d + 16, d + 16, d + 24)
        for e in range(4):
            d = G0 + 4 * h2 + e
            a.op2("v_add_f32", d, d, d + 16)
    for h2 in range(2):
        for x in range(2):
            a.op2e("v_cvt_pk_bf16_f32", G0 + 8 + 2 * h2 + x, G0 + 4 * h2 + 2 * x, G0 + 4 * h2 + 2 * x + 1)
    a.op2("v_lshlrev_b32", 2, "7", 3)
    a.op2("v_and_b32", 126, "3", 0)
    a.op3("v_lshl_add_u32", 2, 126, "5", 2)
    a.op2("v_and_b32", 126, "12", 0)
    a.op2("v_add_u32", 2, 2, 126)
    for h2 in range(2):
        for x in range(2):
            dsw(G0 + 8 + 2 * h2 + x, 1, 2, L_Q + 512 * h2 + 16 * x)
    a.raw("s_cmp_lg_u32 s5, 0")
    a.raw("s_cbranch_scc1 L_a_nl")
    a.op1("v_mov_b32", 125, "1")
    a.raw("s_mov_b64 exec, 1")
    bstore(125, 1, 124, R_C, flags="sc1")
    a.raw("s_mov_b64 exec, -1")
    a.label("L_a_nl")
    a.raw("s_waitcnt lgkmcnt(0)")
    a.label("L_a_nq2")
    a.raw("s_barrier")
    stamp(2)
    for s in range(4):
        dsr(QR + 4 * s, 4, QOFF, L_Q + 64 * s)
    a.raw("s_waitcnt lgkmcnt(0)")
    for s in range(4):
        for T in range(2):
            a.mfma16(SACC + 4 * T, KR + T * 16 + s * 4, QR + 4 * s, None if s == 0 else SACC + 4 * T)
    SV = QR
    PK = QR + 8
    for d in range(4):
        a.op2e("v_cvt_pk_bf16_f32", PK + d, SACC + 2 * d, SACC + 2 * d + 1)
    unpack(SV, PK, 4)
    for i in range(8):
        a.op2("v_mul_f32", SV + i, "s10", SV + i)
    for d in range(4):
        a.op2e("v_cvt_pk_bf16_f32", PK + d, SV + 2 * d, SV + 2 * d + 1)
    unpack(SV, PK, 4)
    for i in range(8):
        a.op2("v_mul_f32", SV + i, "s11", SV + i)
    MX, LS, TT = QR + 12, QR + 13, QR + 14
    a.op3("v_max3_f32", MX, SV + 0, SV + 1, SV + 2)
    a.op3("v_max3_f32", TT, SV + 3, SV + 4, SV + 5)
    a.op3("v_max3_f32", MX, MX, SV + 6, SV + 7)
    a.op2("v_max_f32", MX, MX, TT)
    a.allreduce("v_max_f32", [MX], ["x16", "x32"], [TT])
    for i in range(8):
        a.op2("v_sub_f32", SV + i, SV + i, MX)
    for i in range(8):
        a.op1("v_exp_f32", SV + i, SV + i, kind="trans")
    for d in range(4):
        a.op2e("v_cvt_pk_bf16_f32", PR + d, SV + 2 * d, SV + 2 * d + 1)
    a.op2("v_add_f32", LS, SV + 0, SV + 1)
    a.op2("v_add_f32", TT, SV + 2, SV + 3)
    a.op2("v_add_f32", LS, LS, SV + 4)
    a.op2("v_add_f32", TT, TT, SV + 5)
    a.op2("v_add_f32", LS, LS, SV + 6)
    a.op2("v_add_f32", TT, TT, SV + 7)
    a.op2("v_add_f32", LS, LS, TT)
    for c in range(4):
        for x in range(4):
            a.cndmask(PM + 4 * c + x, "0", PR + x, sr(S_MASK + 2 * c, 2))
    a.allreduce("v_add_f32", [LS], ["x16", "x32"], [TT])
    a.raw("s_lshl_b32 s6, s3, 3")
    a.op2("v_lshlrev_b32", 2, "6", 0)
    a.op2("v_add_u32", 2, "s6", 2)
    a.raw("s_mov_b64 exec, 15")
    dsw(MX, 2, 2, L_ST)
    a.raw("s_mov_b64 exec, -1")
    a.op2("v_and_b32", 4, "3", 0)
    a.op2("v_lshlrev_b32", 4, "8", 4)
    a.op2("v_and_b32", 3, "12", 0)
    a.op3("v_lshl_add_u32", 4, 3, "4", 4)
    a.op2("v_and_b32", 3, "16", 0)
    a.op3("v_lshl_add_u32", 4, 3, "6", 4)
    a.op2("v_lshrrev_b32", 3, "5", 0)
    a.raw("s_lshl_b32 s6, s3, 1")
    a.op2("v_add_u32", 3, "s6", 3)
    a.op3("v_lshl_add_u32", 4, 3, "4", 4)
    a.op2("v_lshlrev_b32", 5, "6", 3)
    a.raw("s_lshl_b32 s6, s3, 13")
    a.op2("v_add_u32", 2, "s6", 7)
    a.raw("s_lshl_b32 s6, s4, 4")
    a.raw("s_add_u32 s6, s6, s5")
    a.raw("s_lshl_b32 s6, s6, 1")
    a.raw("s_add_u32 s6, s6, s3")
    a.raw("s_lshl_b32 s6, s6, 10")
    a.raw(f"s_add_u32 s12, s6, {OB}")
    for r in range(4):
        a.raw(f"s_mov_b32 s{8 + r}, {0x07060500 + r:#x}")
    a.raw("s_waitcnt vmcnt(0)")
    stamp(3)
    perm_half(VRAW, KR)
    for ch in range(2):
        for c in range(4):
            a.mfma16(OACC + 4 * ch, KR + 4 * (ch * 4 + c), PM + 4 * c, None if c == 0 else OACC + 4 * ch)
    for ch in range(2):
        dsw(OACC + 4 * ch, 4, 2, L_K + 1024 * ch)
    a.raw("s_waitcnt lgkmcnt(0)")
    a.raw("s_barrier")
    a.raw("s_cmp_ge_u32 s3, 2")
    a.raw("s_cbranch_scc1 L_a_fin")
    OW, STV = 16, 48
    for k in range(4):
        dsr(STV + 4 * k, 4, 5, L_ST + 16 * k)
    for w in range(8):
        dsr(OW + 4 * w, 4, 4, L_K + 8192 * w)
    a.raw("s_waitcnt lgkmcnt(8)")
    Mx, Lx, E0 = 64, 65, 66
    a.op3("v_max3_f32", Mx, STV + 0, STV + 2, STV + 4)
    a.op3("v_max3_f32", Lx, STV + 6, STV + 8, STV + 10)
    a.op3("v_max3_f32", Mx, Mx, STV + 12, STV + 14)
    a.op2("v_max_f32", Mx, Mx, Lx)
    for w in range(8):
        a.op2("v_sub_f32", E0 + w, STV + 2 * w, Mx)
    for w in range(8):
        a.op1("v_exp_f32", E0 + w, E0 + w, kind="trans")
    a.op2("v_mul_f32", Lx, E0 + 0, STV + 1)
    for w in range(1, 8):
        a.op2("v_fmac_f32", Lx, E0 + w, STV + 2 * w + 1)
    a.op1("v_rcp_f32", 74, Lx, kind="trans")
    a.op1("v_log_f32", 75, Lx, kind="trans")
    a.raw("s_waitcnt lgkmcnt(0)")
    for r in range(4):
        a.op2("v_mul_f32", 76 + r, E0 + 0, OW + r)
    for w in range(1, 8):
        for r in range(4):
            a.op2("v_fmac_f32", 76 + r, E0 + w, OW + 4 * w + r)
    a.op2("v_add_f32", 75, 75, Mx)
    for r in range(4):
        a.op2("v_mul_f32", 76 + r, 76 + r, 74)
    for r in range(4):
        a.op3("v_perm_b32", 76 + r, 76 + r, 75, f"s{8 + r}")
    for r in range(4):
        a.op2("v_min_u32", 76 + r, "-2", 76 + r)
    bstore(76, 4, 7, R_WS, soff="s12", flags="sc1")
    stamp(4)
    a.raw("s_branch L_exit")
    a.label("L_a_fin")
    a.raw("s_cmp_lg_u32 s3, 2")
    a.raw("s_cbranch_scc1 L_exit")
    a.raw("s_cmp_ge_u32 s5, 8")
    a.raw("s_cbranch_scc1 L_exit")
    srd(R_A, P_X, 2048)
    srd(R_D, P_OUT, 2048)
    a.raw("s_lshr_b32 s6, s14, 5")
    a.raw("s_lshl_b32 s6, s6, 8")
    a.raw("s_and_b32 s7, s14, 3")
    a.raw("s_lshl_b32 s7, s7, 5")
    a.raw("s_add_u32 s6, s6, s7")
    a.raw("s_bfe_u32 s7, s14, 0x30002")
    a.raw("s_add_u32 s6, s6, s7")
    a.op2("v_and_b32", 2, "3", 0)
    a.op2("v_lshlrev_b32", 2, "3", 2)
    a.op2("v_and_b32", 3, "8", 0)
    a.op3("v_lshl_add_u32", 2, 3, "4", 2)
    a.op2("v_add_u32", 2, "s6", 2)
    a.op2("v_and_b32", 3, "4", 0)
    a.op2("v_lshlrev_b32", 4, "1", 2)
    a.op3("v_lshl_add_u32", 4, 3, "8", 4)
    a.mem(f"buffer_load_ushort v10, v4, {sr(R_A, 4)}, 0 offen", src=[4], dst=[10])
    a.op2("v_lshrrev_b32", 5, "5", 2)
    a.op2("v_lshlrev_b32", 5, "8", 5)
    a.op2("v_and_b32", 6, "2", 2)
    a.op3("v_lshl_add_u32", 5, 6, "6", 5)
    a.op2("v_and_b32", 6, "4", 2)
    a.op3("v_lshl_add_u32", 5, 6, "4", 5)
    a.op2("v_and_b32", 6, "1", 2)
    a.op3("v_lshl_add_u32", 5, 6, "5", 5)
    a.op3("v_lshl_add_u32", 5, 3, "2", 5)
    a.op2("v_and_b32", 6, "24", 2)
    a.op2("v_lshrrev_b32", 6, "1", 6)
    a.op2("v_add_u32", 5, 5, 6)
    a.op2("v_lshrrev_b32", 6, "4", 0)
    a.op3("v_lshl_add_u32", 5, 6, "12", 5)
    a.op2("v_lshrrev_b32", 6, "2", 0)
    a.op2("v_and_b32", 6, "3", 6)
    for r in (1, 2, 3):
        a.cmp("v_cmp_eq_u32", sr(S_MASK + 2 * (r - 1), 2), str(r), 6)
    a.op2("v_lshlrev_b32", 6, "2", 0)
    poll_flags(6, 0, "0xff", 8)
    a.raw(f"s_mov_b32 s8, {AB}")
    a.raw(f"s_mov_b32 s9, {AB + 16384}")
    poll_masked([(12, 5, "s8", 0), (13, 5, "s9", 0)], 8, sleep=4, width=1)
    stamp(4)
    a.op2("v_add_f32", 12, 12, 13)
    a.allreduce("v_add_f32", [12], ["x16", "x32"], [13])
    round_bf16(12, 12)
    a.op2("v_lshlrev_b32", 10, "16", 10)
    a.op2("v_add_f32", 12, 12, 10)
    round_bf16(12, 12)
    a.raw("s_add_u32 s9, s15, 4096")
    F0 = 16
    poll_masked([(F0 + 4 * k, 7, "s15" if k < 4 else "s9", (k & 3) * 1024) for k in range(7)], 8,
                sleep=opts.get("sleep_f", 2))
    stamp(5)
    for r in range(4):
        a.op2("v_add_f32", F0 + r, F0 + r, F0 + 4 + r)
        a.op2("v_add_f32", F0 + 8 + r, F0 + 8 + r, F0 + 12 + r)
        a.op2("v_add_f32", F0 + 16 + r, F0 + 16 + r, F0 + 20 + r)
    for r in range(4):
        a.op2("v_add_f32", F0 + r, F0 + r, F0 + 8 + r)
        a.op2("v_add_f32", F0 + 16 + r, F0 + 16 + r, F0 + 24 + r)
    for r in range(4):
        a.op2("v_add_f32", F0 + r, F0 + r, F0 + 16 + r)
    a.allreduce("v_add_f32", [F0 + r for r in range(4)], ["row_ror:4", "row_ror:8", "x16", "x32"],
                [F0 + 4 + r for r in range(4)])
    for r in (1, 2, 3):
        a.cndmask(F0, F0, F0 + r, sr(S_MASK + 2 * (r - 1), 2))
    round_bf16(F0, F0)
    a.op2("v_add_f32", F0, F0, 12)
    a.op2e("v_cvt_pk_bf16_f32", F0, F0, F0)
    a.raw("s_mov_b64 exec, 0xffff")
    bstore(F0, 1, 4, R_D, op="buffer_store_short")
    a.raw("s_mov_b64 exec, -1")
    stamp(6)
    a.raw("s_branch L_exit")

    WOR, WOP, AC3 = 144, 192, 208

    def issue_wo():
        srd(R_D, P_WO, 4096 * 1024)
        a.op2("v_and_b32", 160, "12", 0)
        a.op2("v_lshlrev_b32", 160, "3", 160)
        a.op2("v_lshrrev_b32", 161, "4", 0)
        a.op2("v_add_u32", 160, 160, 161)
        a.op2("v_lshlrev_b32", 160, "10", 160)
        a.op2("v_and_b32", 161, "3", 0)
        a.op3("v_lshl_add_u32", 160, 161, "4", 160)
        a.raw("s_lshl_b32 s6, s4, 2")
        a.raw("s_lshr_b32 s7, s3, 1")
        a.raw("s_add_u32 s6, s6, s7")
        a.raw("s_lshl_b32 s6, s6, 7")
        a.raw("s_and_b32 s7, s3, 1")
        a.raw("s_lshl_b32 s7, s7, 2")
        a.raw("s_add_u32 s6, s6, s7")
        a.raw("s_lshl_b32 s6, s6, 10")
        a.raw("s_lshl_b32 s7, s5, 6")
        a.raw("s_add_u32 s6, s6, s7")
        a.raw("s_barrier")
        for i in range(4):
            bload(WOR + 4 * i, 4, 160, R_D, soff="s6", flags=NF)
            if i < 3:
                a.raw("s_add_u32 s6, s6, 8192")
        if opts.get("pace", 1):
            a.raw("s_waitcnt vmcnt(0)")
        a.raw("s_barrier")

    mark("tail0")
    a.label("L_tail")
    a.raw("s_mul_i32 s6, s4, 14")
    a.raw(f"s_add_u32 s{S_PHI}, s6, s5")
    a.raw("s_cmp_ge_u32 s3, 2")
    a.raw("s_cbranch_scc1 L_t67")

    a.label("L_t01")
    XS, XA = 8, 16
    RAW, PO0, PO1 = 32, 96, 32
    AM = 64
    a.op2("v_lshrrev_b32", 2, "2", 0)
    a.op2("v_and_b32", 3, "1", 0)
    a.op3("v_lshl_add_u32", 2, 2, "1", 3)
    a.op2("v_lshlrev_b32", 2, "4", 2)
    a.op2("v_and_b32", 6, "2", 0)
    a.op3("v_lshl_add_u32", 4, 6, "9", 2)
    a.op2("v_lshrrev_b32", 2, "4", 0)
    a.op3("v_lshl_add_u32", 7, 2, "1", 3)
    a.op2("v_lshlrev_b32", 7, "4", 7)
    a.op3("v_lshl_add_u32", 5, 6, "9", 7)
    a.op2("v_lshrrev_b32", 7, "3", 0)
    a.op2("v_lshlrev_b32", 7, "16", 7)
    a.op2("v_and_b32", 3, "7", 0)
    a.op3("v_lshl_add_u32", 6, 3, "4", 7)
    a.raw("s_lshr_b32 s10, s5, 3")
    a.raw("s_lshl_b32 s10, s10, 1")
    a.raw("s_add_u32 s10, s10, s3")
    a.raw("s_and_b32 s11, s5, 7")
    a.raw("s_lshl_b32 s8, s4, 10")
    a.raw("s_lshl_b32 s9, s11, 7")
    a.raw("s_add_u32 s8, s8, s9")
    a.raw("s_lshl_b32 s9, s10, 20")
    a.raw("s_add_u32 s8, s8, s9")
    a.raw("s_lshl_b32 s12, s10, 8")
    a.op2("v_lshlrev_b32", 7, "4", 0)
    for r in range(4):
        a.op1("v_mov_b32", 24 + r, "-1")
    a.raw("s_lshl_b32 s6, s4, 4")
    a.raw("s_add_u32 s6, s6, s5")
    a.raw("s_lshl_b32 s13, s6, 11")
    a.raw(f"s_add_u32 s13, s13, {OB}")
    a.raw("s_lshl_b32 s14, s6, 8")
    a.raw(f"s_add_u32 s14, s14, {AB}")
    a.raw("s_waitcnt lgkmcnt(0)")
    srd(R_A, P_X, 2048)
    srd(R_B, P_WQ, 512 * 8192)
    a.raw("s_barrier")
    for s in range(2):
        bload(XS + 4 * s, 4, 4, R_A, imm=512 * s)
    for s in range(2):
        bload(XA + 4 * s, 4, 5, R_A, soff="s12", imm=128 * s)
    for s in range(2):
        for i in range(8):
            a.raw(f"s_add_u32 s9, s8, {(s * 64 + i) * 8192}")
            bload(RAW + (s * 8 + i) * 4, 4, 6, R_B, soff="s9", flags=SF)
    srd_ws()
    srd(R_C, P_DBG, 256)
    a.raw("s_cmp_eq_u32 s3, 0")
    a.raw("s_cbranch_scc1 L_t0c")
    a.raw("s_mov_b64 exec, 0xff")
    bstore(24, 4, 7, R_WS, soff="s14", flags="sc1")
    bstore(24, 4, 7, R_WS, soff="s14", imm=128, flags="sc1")
    a.raw("s_mov_b64 exec, -1")
    a.raw("s_branch L_t01c")
    a.label("L_t0c")
    bstore(24, 4, 7, R_WS, soff="s13", flags="sc1")
    bstore(24, 4, 7, R_WS, soff="s13", imm=1024, flags="sc1")
    a.label("L_t01c")
    a.raw("s_branch L_t01b")
    mark("t01b")
    a.label("L_t01b")
    a.op2("v_lshrrev_b32", 7, "2", 0)
    a.op2("v_and_b32", 7, "3", 7)
    for c in range(4):
        a.cmp("v_cmp_eq_u32", sr(S_MASK + 2 * c, 2), str(c), 7)
    a.raw("s_waitcnt vmcnt(18)")
    V = 96
    unpack(V, XS, 8)
    M, RC = ln_stats(V, 112, ["quad_perm:[1,0,3,2]", "row_ror:4", "row_ror:8", "x16", "x32"])
    unpack(V, XA, 8)
    ln_apply(V, XA, M, RC)
    a.raw("s_lshl_b32 s6, s4, 2")
    a.op1("v_mov_b32", 4, "s6")
    a.raw("s_waitcnt vmcnt(10)")
    perm_half(RAW, PO0)
    a.raw("s_waitcnt vmcnt(2)")
    bload(5, 1, 4, R_C, imm=64, flags="sc1")
    stamp(1)
    perm_half(RAW + 32, PO1)
    for s in range(2):
        for c in range(4):
            for x in range(4):
                a.cndmask(AM + (s * 4 + c) * 4 + x, "0", XA + 4 * s + x, sr(S_MASK + 2 * c, 2))
    D0 = 8
    first = [True, True]
    for s, B in ((0, PO0), (1, PO1)):
        for c in range(4):
            for t in range(2):
                a.mfma16(D0 + 4 * t, AM + (s * 4 + c) * 4, B + 4 * (2 * c + t), None if first[t] else D0 + 4 * t)
                first[t] = False
    a.op2("v_and_b32", 2, "8", 0)
    a.cmp("v_cmp_ne_u32", sr(S_MASK, 2), "0", 2)
    QV = 16
    for t in range(2):
        for b in range(2):
            a.cndmask(QV + 2 * b + t, D0 + 4 * t + 2 * b, D0 + 4 * t + 2 * b + 1, sr(S_MASK, 2))
    a.allreduce("v_add_f32", [QV, QV + 1, QV + 2, QV + 3], ["row_ror:8"], [])
    for t in range(2):
        a.cndmask(QV + t, QV + t, QV + 2 + t, sr(S_MASK, 2))
    for t in range(2):
        a.op2("v_min_u32", QV + t, "-2", QV + t)
    a.op2("v_lshrrev_b32", 3, "4", 0)
    a.op2("v_and_b32", 6, "7", 0)
    a.op3("v_lshl_add_u32", 3, 3, "3", 6)
    a.op2("v_lshlrev_b32", 3, "3", 3)
    a.op3("v_lshl_add_u32", 3, 2, "10", 3)
    a.raw("s_lshl_b32 s8, s4, 14")
    a.raw("s_lshl_b32 s9, s10, 11")
    a.raw("s_add_u32 s9, s9, s8")
    a.raw("s_lshl_b32 s13, s11, 8")
    a.raw("s_add_u32 s9, s9, s13")
    a.raw("s_waitcnt vmcnt(0)")
    poll_flags(4, 64, "1", 5, pre_loaded=True)
    bstore(QV, 2, 3, R_WS, soff="s9", flags="sc1")
    stamp(2)
    issue_wo()
    a.raw("s_branch L_tcommon")

    mark("t4")
    a.label("L_t4")
    narrow_lane(2, 3, 4)
    a.op2("v_lshrrev_b32", 4, "2", 3)
    a.op2("v_lshlrev_b32", 4, "5", 4)
    a.op2("v_and_b32", 5, "3", 3)
    a.op3("v_lshl_add_u32", 4, 5, "1", 4)
    a.op2("v_mul_u32_u24", 4, "3584", 4)
    a.op2("v_and_b32", 5, "1", 0)
    a.op3("v_lshl_add_u32", 4, 5, "4", 4)
    a.raw(f"s_lshl_b32 s8, s{S_PHI}, 5")
    a.raw("s_waitcnt lgkmcnt(0)")
    srd(R_A, P_W1, 512 * 3584)
    issue_wo()
    a.raw("s_cmp_ge_u32 s5, 14")
    a.raw("s_cbranch_scc1 L_tcommon")
    for s in range(2):
        for i in range(8):
            a.raw(f"s_add_u32 s9, s8, {(s * 256 + (i & 3) * 8 + (i >> 2)) * 3584}")
            bload(32 + (s * 8 + i) * 4, 4, 4, R_A, soff="s9", flags=NF)
    a.raw("s_waitcnt vmcnt(8)")
    perm_half(32, 96)
    a.raw("s_waitcnt vmcnt(0)")
    stamp(1)
    perm_half(64, 32)
    a.raw("s_branch L_tcommon")

    a.label("L_t5")
    a.op2("v_and_b32", 2, "15", 0)
    a.op2("v_lshrrev_b32", 3, "4", 0)
    a.op2("v_lshlrev_b32", 7, "12", 3)
    a.op3("v_lshl_add_u32", 4, 2, "4", 7)
    a.raw(f"s_lshl_b32 s8, s{S_PHI}, 14")
    a.raw("s_waitcnt lgkmcnt(0)")
    srd(R_A, P_W2, 1792 * 1024)
    issue_wo()
    a.raw("s_cmp_ge_u32 s5, 14")
    a.raw("s_cbranch_scc1 L_tcommon")
    for pair in range(2):
        for i in range(8):
            bload(32 + (pair * 8 + i) * 4, 4, 4, R_A, soff="s8",
                  imm=(i & 3) * 1024 + (pair * 2 + (i >> 2)) * 256, flags=SF)
    a.raw("s_waitcnt vmcnt(8)")
    perm_half(32, 96)
    a.raw("s_waitcnt vmcnt(0)")
    stamp(1)
    perm_half(64, 32)
    a.raw("s_branch L_tcommon")

    mark("t67")
    a.label("L_t67")
    a.op2("v_lshlrev_b32", 2, "4", 0)
    for r in range(4):
        a.op1("v_mov_b32", 12 + r, "-1")
    a.raw("s_lshl_b32 s11, s4, 14")
    a.raw("s_waitcnt lgkmcnt(0)")
    srd_ws()
    srd(R_C, P_DBG, 256)
    a.raw("s_cmp_lg_u32 s5, 0")
    a.raw("s_cbranch_scc1 L_t7_nl0")
    a.raw("s_cmp_lg_u32 s3, 7")
    a.raw("s_cbranch_scc1 L_t7_nl0")
    for k in range(16):
        if k % 4 == 0:
            a.raw(f"s_add_u32 s12, s11, {QB + k * 1024}")
        bstore(12, 4, 2, R_WS, soff="s12", imm=(k % 4) * 1024, flags="sc1")
    a.raw("s_barrier")
    a.raw("s_lshl_b32 s6, s4, 2")
    a.op1("v_mov_b32", 3, "s6")
    a.op1("v_mov_b32", 4, "1")
    a.raw("s_waitcnt vmcnt(0)")
    a.raw("s_mov_b64 exec, 1")
    bstore(4, 1, 3, R_C, imm=64, flags="sc1")
    a.raw("s_mov_b64 exec, -1")
    stamp(1)
    a.raw("s_branch L_t7_nl")
    a.label("L_t7_nl0")
    a.raw("s_barrier")
    a.raw("s_cmp_eq_u32 s3, 4")
    a.raw("s_cbranch_scc1 L_t4")
    a.raw("s_cmp_eq_u32 s3, 5")
    a.raw("s_cbranch_scc1 L_t5")
    if opts.get("touch", 1):
        a.raw("s_cmp_lg_u32 s3, 6")
        a.raw("s_cbranch_scc1 L_t7_nl")
        a.raw("s_cmp_lg_u32 s5, 15")
        a.raw("s_cbranch_scc1 L_t7_nl")
        a.raw("s_getpc_b64 s[6:7]")
        a.label("L_pc")
        a.raw(f"s_sub_u32 s6, s6, L_pc - {NAME}_kernel")
        a.raw("s_subb_u32 s7, s7, 0")
        for k in range(CODE_KB):
            if k % 4 == 0 and k:
                a.op2("v_add_u32", 2, "4096", 2)
            a.mem(f"global_load_dwordx4 v[12:15], v2, s[6:7] offset:{(k % 4) * 1024}", src=[2], dst=[12, 13, 14, 15])
    a.raw("s_branch L_t7_nl")
    mark("t67b")
    a.label("L_t7_nl")
    issue_wo()

    a.label("L_tcommon")
    a.fence()
    C = 128
    T = 160
    srd(R_B, P_X, 2048)
    a.op2("v_lshrrev_b32", T, "4", 0)
    a.op2("v_lshlrev_b32", T + 2, "11", T)
    a.op2("v_and_b32", T + 1, "15", 0)
    a.op3("v_lshl_add_u32", T + 30, T + 1, "4", T + 2)
    a.raw("s_lshl_b32 s6, s3, 8")
    a.op3("v_lshl_add_u32", T + 25, T + 1, "3", "s6")
    a.op2("v_and_b32", T + 2, "32", 0)
    a.op3("v_lshl_add_u32", T + 25, T + 2, "2", T + 25)
    a.op2("v_and_b32", T + 2, "1", T)
    a.op3("v_lshl_add_u32", T + 25, T + 2, "2", T + 25)
    a.op2("v_and_b32", T + 2, "3", 0)
    a.op3("v_lshl_add_u32", T + 2, T, "2", T + 2)
    a.op3("v_lshl_add_u32", T + 24, T + 2, "3", "s6")
    a.op2("v_and_b32", T + 3, "4", 0)
    a.op3("v_lshl_add_u32", T + 24, T + 3, "5", T + 24)
    a.op3("v_lshl_add_u32", T + 23, T + 2, "4", "s6")
    a.op2("v_lshrrev_b32", T + 2, "5", 0)
    a.op2("v_lshlrev_b32", T + 2, "12", T + 2)
    a.op2("v_and_b32", T + 1, "31", 0)
    a.op3("v_lshl_add_u32", T + 28, T + 1, "4", T + 2)
    a.op2("v_and_b32", T + 2, "4", T + 1)
    a.op2("v_and_b32", T + 3, "8", T + 1)
    a.op2("v_lshrrev_b32", T + 3, "2", T + 3)
    a.op2("v_add_u32", T + 2, T + 2, T + 3)
    a.op2("v_and_b32", T + 3, "2", T + 1)
    a.op2("v_lshrrev_b32", T + 3, "1", T + 3)
    a.op2("v_add_u32", T + 2, T + 2, T + 3)
    a.op2("v_and_b32", T + 3, "16", T + 1)
    a.op2("v_lshlrev_b32", T + 3, "2", T + 3)
    a.op2("v_and_b32", T + 4, "1", T + 1)
    a.op3("v_lshl_add_u32", T + 3, T + 4, "10", T + 3)
    a.raw("s_lshl_b32 s7, s3, 7")
    a.op2("v_add_u32", T + 3, "s7", T + 3)
    a.op3("v_lshl_add_u32", T + 29, T + 2, "3", T + 3)
    a.op3("v_lshl_add_u32", T + 3, T + 2, "1", T + 3)
    for ch in range(4):
        a.mem(f"buffer_load_ushort v{T + 18 + ch}, v{T + 3}, {sr(R_B, 4)}, 0 offen offset:{16 * ch}",
              src=[T + 3], dst=[T + 18 + ch])
    a.raw("s_lshl_b32 s7, s4, 15")
    a.raw("s_add_u32 s6, s6, s7")
    for k in range(4):
        a.raw(f"s_add_u32 s{8 + k}, s6, {OB + k * 8192}")
    a.raw("s_lshl_b32 s6, s3, 9")
    for k in range(4):
        a.raw(f"s_add_u32 s{12 + k}, s6, {AB + k * 8192}")
    a.op2("v_lshrrev_b32", T + 2, "2", 0)
    a.op2("v_and_b32", T + 2, "3", T + 2)
    for r in (1, 2, 3):
        a.cmp("v_cmp_eq_u32", sr(S_MASK + 2 * (r - 1), 2), str(r), T + 2)
    a.op2("v_and_b32", T + 2, "8", 0)
    a.cmp("v_cmp_ne_u32", sr(S_MASK + 6, 2), "0", T + 2)
    a.op2("v_lshlrev_b32", T + 3, "2", 0)
    a.raw("s_waitcnt vmcnt(0)")
    for j in range(4):
        for x in range(2):
            lo, hi = WOR + (2 * x) * 4 + j, WOR + (2 * x + 1) * 4 + j
            a.op3("v_perm_b32", WOP + (2 * j) * 2 + x, hi, lo, f"s{S_SELLO}")
            a.op3("v_perm_b32", WOP + (2 * j + 1) * 2 + x, hi, lo, f"s{S_SELHI}")
    poll_flags(T + 3, 0, "0xff", T + 4)
    stamp(3)
    poll_masked([(C + 4 * k, T + 30, f"s{8 + k}", 0) for k in range(4)], T + 2, sleep=opts.get("sleep_o", 2))
    stamp(4)
    a.raw("s_mov_b32 s6, 0x0c0c0400")
    LK = T
    for k in range(4):
        a.op3("v_perm_b32", LK + k, C + 4 * k + 1, C + 4 * k, "s6")
        a.op3("v_perm_b32", T + 4 + k, C + 4 * k + 3, C + 4 * k + 2, "s6")
    for k in range(4):
        a.op3("v_perm_b32", LK + k, T + 4 + k, LK + k, f"s{S_SELLO}")
    MM = T + 4
    for b in range(2):
        a.op2("v_max_f32", MM + b, LK + 2 * b, LK + 2 * b + 1)
    a.allreduce("v_max_f32", [MM, MM + 1], ["x16", "x32"], [T + 6, T + 7])
    for k in range(4):
        a.op2("v_sub_f32", LK + k, LK + k, MM + (k >> 1))
    for k in range(4):
        a.op1("v_exp_f32", LK + k, LK + k, kind="trans")
    AC = T + 8
    SS = T + 16
    for b in range(2):
        for r in range(4):
            a.op2("v_mul_f32", AC + 4 * b + r, LK + 2 * b, C + 8 * b + r)
    for b in range(2):
        for r in range(4):
            a.op2("v_fmac_f32", AC + 4 * b + r, LK + 2 * b + 1, C + 8 * b + 4 + r)
        a.op2("v_add_f32", SS + b, LK + 2 * b, LK + 2 * b + 1)
    a.swap32(SS, SS + 1)
    for r in range(4):
        a.swap32(AC + r, AC + 4 + r)
    a.op2("v_add_f32", SS, SS, SS + 1)
    for r in range(4):
        a.op2("v_add_f32", AC + r, AC + r, AC + 4 + r)
    a.op1("v_mov_b32", SS + 1, SS)
    a.swap16(AC, AC + 2)
    a.swap16(AC + 1, AC + 3)
    a.swap16(SS, SS + 1)
    a.op2("v_add_f32", SS, SS, SS + 1)
    a.op2("v_add_f32", AC, AC, AC + 2)
    a.op2("v_add_f32", AC + 1, AC + 1, AC + 3)
    a.op1("v_rcp_f32", SS, SS, kind="trans")
    for r in range(2):
        a.op2("v_mul_f32", AC + r, AC + r, SS)
    a.op2e("v_cvt_pk_bf16_f32", AC, AC, AC + 1)
    dsw(AC, 1, T + 25, L_ON)
    a.raw("s_waitcnt lgkmcnt(0)")
    dsr(T, 2, T + 24, L_ON)
    a.raw("s_waitcnt lgkmcnt(0)")
    for x in range(2):
        a.cndmask(T + 2 + x, T + x, "0", sr(S_MASK + 6, 2))
        a.cndmask(T + 4 + x, "0", T + x, sr(S_MASK + 6, 2))
    for cc in range(2):
        for t in range(4):
            a.mfma16k16(AC3 + 4 * t, T + 2 + 2 * cc, WOP + 2 * (2 * t + cc), None if cc == 0 else AC3 + 4 * t)
    for t in range(4):
        a.cndmask(T + 8 + t, AC3 + 4 * t, AC3 + 4 * t + 1, sr(S_MASK, 2))
        a.cndmask(T + 8 + t, T + 8 + t, AC3 + 4 * t + 2, sr(S_MASK + 2, 2))
        a.cndmask(T + 8 + t, T + 8 + t, AC3 + 4 * t + 3, sr(S_MASK + 4, 2))
    a.allreduce("v_add_f32", [T + 8 + t for t in range(4)], ["row_ror:4", "row_ror:8"], [])
    a.raw("s_mov_b32 exec_lo, 0x000f000f")
    a.raw("s_mov_b32 exec_hi, 0x000f000f")
    dsw(T + 8, 4, T + 23, L_P3)
    a.raw("s_mov_b64 exec, -1")
    a.op2("v_lshlrev_b32", T + 2, "4", 0)
    a.op2("v_lshlrev_b32", T + 3, "2", 0)
    a.raw("s_lshl_b32 s6, s4, 4")
    a.raw("s_add_u32 s6, s6, s5")
    a.raw("s_lshl_b32 s9, s6, 8")
    a.raw(f"s_add_u32 s9, s9, {AB}")
    a.raw("s_waitcnt lgkmcnt(0)")
    a.raw("s_barrier")
    a.raw("s_cmp_lg_u32 s3, 2")
    a.raw("s_cbranch_scc1 L_after_s3")
    dsr(T + 8, 4, T + 2, L_P3)
    dsr(T + 12, 4, T + 2, L_P3 + 1024)
    a.raw("s_waitcnt lgkmcnt(0)")
    for t in range(4):
        a.op2("v_add_f32", T + 8 + t, T + 8 + t, T + 12 + t)
    a.swap32(T + 8, T + 9)
    a.swap32(T + 10, T + 11)
    a.op2("v_add_f32", T + 8, T + 8, T + 9)
    a.op2("v_add_f32", T + 10, T + 10, T + 11)
    a.swap16(T + 8, T + 10)
    a.op2("v_add_f32", T + 8, T + 8, T + 10)
    a.op2("v_min_u32", T + 8, "-2", T + 8)
    bstore(T + 8, 1, T + 3, R_WS, soff="s9", flags="sc1")
    stamp(2)
    a.label("L_after_s3")
    a.fence()
    a.raw("s_cmp_ge_u32 s5, 14")
    a.raw("s_cbranch_scc1 L_exit")
    for r in range(4):
        a.op2("v_lshlrev_b32", T + 18 + r, "16", T + 18 + r)
    narrow_lane(2, 3, 4)
    a.op2("v_lshlrev_b32", 2, "4", 2)
    a.op2("v_and_b32", 3, "8", 0)
    a.op3("v_lshl_add_u32", 2, 3, "7", 2)
    narrow_masks(3, 4)
    poll_masked([(C + 4 * k, T + 28, f"s{12 + k}", 0) for k in range(4)], T + 2, sleep=opts.get("sleep_a", 2))
    stamp(5)
    for r in range(4):
        a.op2("v_add_f32", C + r, C + r, C + 4 + r)
        a.op2("v_add_f32", C + 8 + r, C + 8 + r, C + 12 + r)
    for r in range(4):
        a.op2("v_add_f32", C + r, C + r, C + 8 + r)
    a.allreduce("v_add_f32", [C + r for r in range(4)], ["x32"], [C + 4 + r for r in range(4)])
    a.op2e("v_cvt_pk_bf16_f32", C + 4, C, C + 1)
    a.op2e("v_cvt_pk_bf16_f32", C + 5, C + 2, C + 3)
    unpack(C, C + 4, 2)
    for r in range(4):
        a.op2("v_add_f32", C + r, C + r, T + 18 + r)
    a.op2e("v_cvt_pk_bf16_f32", C + 4, C, C + 1)
    a.op2e("v_cvt_pk_bf16_f32", C + 5, C + 2, C + 3)
    a.raw("s_mov_b32 exec_hi, 0")
    dsw(C + 4, 2, T + 29, L_H)
    a.raw("s_mov_b64 exec, -1")
    a.raw("s_waitcnt lgkmcnt(0)")
    a.raw("s_barrier")
    a.raw("s_cmp_eq_u32 s3, 5")
    a.raw("s_cbranch_scc1 L_s5")
    a.raw("s_cmp_lg_u32 s3, 4")
    a.raw("s_cbranch_scc1 L_exit")
    for s in range(2):
        dsr(16 + 4 * s, 4, 2, L_H + 512 * s)
    a.op2("v_and_b32", 5, "33", 0)
    a.op2("v_and_b32", 6, "1", 0)
    a.op3("v_lshl_add_u32", 5, 6, "4", 5)
    a.op2("v_and_b32", 5, "0x30", 5)
    a.raw("s_waitcnt lgkmcnt(0)")
    V = 64
    unpack(V, 16, 8)
    M, RC = ln_stats(V, 80, ["quad_perm:[1,0,3,2]", "quad_perm:[2,3,0,1]", "row_half_mirror", "x16", "x32"])
    ln_apply(V, 16, M, RC)
    HV, HT = 8, 24
    narrow_mfma([16, 20], [96, 32], 64, HV, HT)
    for d in range(4):
        a.op2e("v_cvt_pk_bf16_f32", HT + d, HV + 2 * d, HV + 2 * d + 1)
    unpack(HV, HT, 4)
    for i in range(8):
        a.op2("v_mul_f32", HT + i, "0xbfb8aa3b", HV + i)
    for i in range(8):
        a.op1("v_exp_f32", HT + i, HT + i, kind="trans")
    for i in range(8):
        a.op2("v_add_f32", HT + i, "1.0", HT + i)
    for i in range(8):
        a.op1("v_rcp_f32", HT + i, HT + i, kind="trans")
    for i in range(8):
        a.op2("v_mul_f32", HV + i, HV + i, HT + i)
    for d in range(4):
        a.op2e("v_cvt_pk_bf16_f32", 16 + d, HV + 2 * d, HV + 2 * d + 1)
    a.raw("s_mov_b32 exec_lo, 3")
    a.raw("s_mov_b32 exec_hi, 3")
    dsw(16, 4, 5, L_G)
    a.raw("s_mov_b64 exec, -1")
    a.raw("s_waitcnt lgkmcnt(0)")
    stamp(6)
    a.raw("s_barrier")
    a.raw("s_branch L_exit")
    a.label("L_s5")
    a.op2("v_lshrrev_b32", 2, "1", 0)
    a.op2("v_and_b32", 2, "7", 2)
    for k in range(8):
        a.cmp("v_cmp_eq_u32", sr(S_PM + 2 * k, 2), str(k), 2)
    a.op2("v_lshrrev_b32", 3, "4", 0)
    a.op2("v_and_b32", 4, "1", 0)
    a.op2("v_lshlrev_b32", 4, "5", 4)
    a.op3("v_lshl_add_u32", 4, 3, "3", 4)
    a.op2("v_and_b32", 5, "15", 0)
    a.op2("v_lshrrev_b32", 5, "2", 5)
    a.op3("v_lshl_add_u32", 5, 3, "2", 5)
    a.op2("v_mul_u32_u24", 5, "7168", 5)
    a.op2("v_and_b32", 6, "3", 0)
    a.op3("v_lshl_add_u32", 5, 6, "4", 5)
    a.raw(f"s_lshl_b32 s8, s{S_PHI}, 6")
    a.raw("s_barrier")
    PP, AMW, ACC = 8, 80, 64
    dsr(PP, 2, 4, L_G)
    a.raw("s_waitcnt lgkmcnt(0)")
    for c in range(4):
        for half in range(2):
            for x in range(2):
                a.cndmask(AMW + 4 * c + 2 * half + x, "0", PP + x, sr(S_PM + 2 * (2 * c + half), 2))
    for pair, B in ((0, 96), (1, 32)):
        for ch in range(2):
            d = ACC + (pair * 2 + ch) * 4
            for c in range(4):
                a.mfma16(d, AMW + 4 * c, B + 4 * (ch * 4 + c), None if c == 0 else d)
    for pair in range(2):
        for ch in range(2):
            d = ACC + (pair * 2 + ch) * 4
            for r in range(4):
                a.op2("v_min_u32", d + r, "-2", d + r)
            a.raw(f"s_add_u32 s6, s8, {FB + (pair * 32 + ch * 16) * 7168}")
            bstore(d, 4, 5, R_WS, soff="s6", flags="sc1")
    stamp(6)
    a.label("L_exit")
    dump_stamps()
    a.label("L_end")
    a.raw("s_endpgm")

    L = a.lines
    m = marks
    end = len(L)
    pro = L[:m["att0"]]
    att0 = L[m["att0"]:m["att1"]]
    att1 = L[m["att1"]:m["tail0"]]
    t01a = L[m["tail0"]:m["t01b"]]
    t01b = L[m["t01b"]:m["t4"]]
    t45 = L[m["t4"]:m["t67"]]
    t67a = L[m["t67"]:m["t67b"]]
    rest = L[m["t67b"]:]
    a.lines = pro + t01a + t67a + att0 + t01b + att1 + t45 + rest
    hdr = open(f"cdna_kernels/{NAME}.s.ref").read().split("; Override launch")[0]
    out = hdr
    out += "; Override launch geometry by editing the next line (default: block=256,\n"
    out += "; grid=ceil(out_elems/256), lds=0). Harness parses it; keep it on one line.\n"
    out += f"; @launch grid=(256,1,1) block=(512,1,1) lds={LDS_BYTES}\n"
    out += '.amdgcn_target "amdgcn-amd-amdhsa--gfx950"\n.text\n'
    out += f".globl {NAME}_kernel\n.p2align 8\n.type {NAME}_kernel,@function\n{NAME}_kernel:\n"
    out += a.text()
    out += '.section .rodata,"a"\n.p2align 6\n'
    out += f".amdhsa_kernel {NAME}_kernel\n"
    out += "  .amdhsa_next_free_vgpr 224\n  .amdhsa_next_free_sgpr 102\n  .amdhsa_accum_offset 224\n"
    out += "  .amdhsa_group_segment_fixed_size 0\n  .amdhsa_kernarg_size 88\n  .amdhsa_user_sgpr_count 2\n"
    out += "  .amdhsa_user_sgpr_kernarg_segment_ptr 1\n  .amdhsa_system_sgpr_workgroup_id_x 1\n"
    out += "  .amdhsa_float_denorm_mode_32 3\n"
    out += ".end_amdhsa_kernel\n"
    return out


if __name__ == "__main__":
    debug = "--debug" in sys.argv
    path = [x for x in sys.argv[1:] if not x.startswith("--")]
    path = path[0] if path else f"cdna_kernels/{NAME}.s"
    opts = {}
    for x in sys.argv[1:]:
        if x.startswith("--opt="):
            k, v = x[6:].split(":")
            opts[k] = int(v) if v.lstrip("-").isdigit() else v
    open(path, "w").write(gen(debug, opts))
    print("wrote", path)
```

```python
import sys
from asmlib import Asm, vr, sr

NAME = "sequential_preLN__sliding_block_cached__dense_activation_silu__decode"

QB = 0
OB = 64 * 1024
AB = 384 * 1024
FB = 416 * 1024
WS_BYTES = 1 << 20
TS_BASE = WS_BYTES
WS_SIZE_DBG = WS_BYTES + 256 * 8 * 128

L_Q = 0
L_ST = 1024
L_K = 2048
L_ON = 0
L_H = 2048
L_G = 4096
L_P3 = 4352
LDS_BYTES = 2048 + 65536

LOG2E = "0x3fb8aa3b"
SCALE = "0x3db504f3"
INV512 = "0x3b000000"
EPS = "0x3727c5ac"
POLL_MAX = 1 << 15

S_WG, S_WAVE, S_G, S_IDX = 2, 3, 4, 5
P_X, P_K, P_V, P_WQ, P_WO, P_W1, P_W2, P_OUT, P_DBG, P_WS = 16, 18, 20, 22, 24, 28, 30, 32, 34, 36
S_CNT = 38
S_PHI = 39
R_WS, R_A, R_B, R_C, R_D = 40, 44, 48, 52, 56
S_SELLO, S_SELHI = 60, 61
S_PM = 64
S_MASK = 80
S_TS = 88


def gen(debug=False, opts=None):
    opts = opts or {}
    SF = opts.get("stream_flags", "nt")
    a = Asm()
    marks = {}

    def mark(name):
        marks[name] = len(a.lines)

    def stamp(k):
        if debug:
            a.raw(f"s_memrealtime {sr(S_TS + 2 * k, 2)}")

    def dump_stamps():
        if not debug:
            return
        a.raw("s_waitcnt vmcnt(0) lgkmcnt(0)")
        a.raw("s_mov_b64 exec, 1")
        a.raw(f"s_lshl_b32 s6, s{S_WG}, 3")
        a.raw(f"s_add_u32 s6, s6, s{S_WAVE}")
        a.raw("s_lshl_b32 s6, s6, 7")
        a.raw(f"s_add_u32 s6, s6, {TS_BASE}")
        a.op1("v_mov_b32", 1, "s6")
        for k in range(7):
            a.op1("v_mov_b32", 2, f"s{S_TS + 2 * k}")
            a.op1("v_mov_b32", 3, f"s{S_TS + 2 * k + 1}")
            a.mem(f"buffer_store_dwordx2 v[2:3], v1, {sr(R_WS, 4)}, 0 offen offset:{8 * k}", src=[1, 2, 3])
            a.nop(2)

    def srd(dst, ptr, size):
        a.raw(f"s_mov_b32 s{dst}, s{ptr}")
        a.raw(f"s_and_b32 s{dst + 1}, s{ptr + 1}, 0xffff")
        a.raw(f"s_mov_b32 s{dst + 2}, {size}")
        a.raw(f"s_mov_b32 s{dst + 3}, 0x20000")

    def srd_ws():
        srd(R_WS, P_WS, WS_SIZE_DBG if debug else WS_BYTES)

    def bload(d, n, off, srdb, soff="0", imm=0, flags=""):
        op = {1: "buffer_load_dword", 2: "buffer_load_dwordx2", 4: "buffer_load_dwordx4"}[n]
        t = f"{op} {vr(d, n)}, v{off}, {sr(srdb, 4)}, {soff} offen"
        if imm:
            t += f" offset:{imm}"
        if flags:
            t += " " + flags
        a.mem(t, src=[off], dst=list(range(d, d + n)))

    def bstore(s, n, off, srdb, soff="0", imm=0, flags="", op=None):
        op = op or {1: "buffer_store_dword", 2: "buffer_store_dwordx2", 4: "buffer_store_dwordx4"}[n]
        t = f"{op} {vr(s, n)}, v{off}, {sr(srdb, 4)}, {soff} offen"
        if imm:
            t += f" offset:{imm}"
        if flags:
            t += " " + flags
        regs = list(range(s, s + n))
        a.mem(t, src=[off] + regs, wide_store=regs if n == 4 else ())

    def dsr(d, n, addr, off):
        op = {1: "ds_read_b32", 2: "ds_read_b64", 4: "ds_read_b128"}[n]
        a.mem(f"{op} {vr(d, n)}, v{addr} offset:{off}", src=[addr], dst=list(range(d, d + n)))

    def dsw(s, n, addr, off, op=None):
        op = op or {1: "ds_write_b32", 2: "ds_write_b64", 4: "ds_write_b128"}[n]
        a.mem(f"{op} v{addr}, {vr(s, n)} offset:{off}", src=[addr] + list(range(s, s + n)))

    def poll_flags(voff, imm, lanes, tmp, pre_loaded=False, sleep=4):
        lp, dn, ck = a.newlabel("fp"), a.newlabel("fd"), a.newlabel("fc")
        a.raw(f"s_mov_b32 s{S_CNT}, {POLL_MAX}")
        a.raw(f"s_mov_b64 exec, {lanes}")
        if pre_loaded:
            a.raw(f"s_branch {ck}")
        a.label(lp)
        bload(tmp, 1, voff, R_C, imm=imm, flags="sc1")
        a.raw("s_waitcnt vmcnt(0)")
        a.label(ck)
        a.valu(f"v_cmp_ne_u32_e32 vcc, 1, v{tmp}", src=[tmp], sdst=["vcc"])
        a.raw(f"s_cbranch_vccz {dn}")
        a.raw(f"s_sleep {sleep}")
        a.raw(f"s_sub_u32 s{S_CNT}, s{S_CNT}, 1")
        a.raw(f"s_cmp_eq_u32 s{S_CNT}, 0")
        a.raw(f"s_cbranch_scc0 {lp}")
        a.label(dn)
        a.raw("s_mov_b64 exec, -1")

    def poll_masked(loads, tmp, sleep=2, width=4, last_hi=None):
        n = len(loads)
        lp, dn = a.newlabel("pl"), a.newlabel("pd")
        a.raw(f"s_mov_b32 s{S_CNT}, {POLL_MAX}")
        for k, (d, vo, so, im) in enumerate(loads):
            if last_hi is not None and k == n - 1:
                a.raw(f"s_mov_b32 exec_hi, {last_hi}")
            bload(d, width, vo, R_WS, soff=so, imm=im, flags="sc1")
        if last_hi is not None:
            a.raw("s_mov_b64 exec, -1")
        a.label(lp)
        a.raw("s_waitcnt vmcnt(0)")
        for k, (d, vo, so, im) in enumerate(loads):
            t = tmp + (k & 1)
            if width == 4:
                a.op3("v_max3_u32", t, d, d + 1, d + 2)
                a.op2("v_max_u32", t, t, d + 3)
            else:
                t = d
            a.cmp("v_cmp_eq_u32", sr(S_PM + 2 * k, 2), "-1", t)
        a.nop(1)
        if n == 1:
            a.raw(f"s_cmp_eq_u64 {sr(S_PM, 2)}, 0")
        else:
            a.raw(f"s_or_b64 s[6:7], {sr(S_PM, 2)}, {sr(S_PM + 2, 2)}")
            for k in range(2, n):
                a.raw(f"s_or_b64 s[6:7], s[6:7], {sr(S_PM + 2 * k, 2)}")
            a.raw("s_cmp_eq_u64 s[6:7], 0")
        a.raw(f"s_cbranch_scc1 {dn}")
        if sleep:
            a.raw(f"s_sleep {sleep}")
        for k, (d, vo, so, im) in enumerate(loads):
            sk = a.newlabel("sk")
            a.raw(f"s_mov_b64 exec, {sr(S_PM + 2 * k, 2)}")
            a.raw(f"s_cbranch_execz {sk}")
            bload(d, width, vo, R_WS, soff=so, imm=im, flags="sc1")
            a.label(sk)
        a.raw("s_mov_b64 exec, -1")
        a.raw(f"s_sub_u32 s{S_CNT}, s{S_CNT}, 1")
        a.raw(f"s_cmp_eq_u32 s{S_CNT}, 0")
        a.raw(f"s_cbranch_scc0 {lp}")
        a.raw("s_waitcnt vmcnt(0)")
        a.label(dn)

    def perm8(raw, out):
        for x in range(4):
            for j in range(4):
                lo, hi = raw + (2 * x) * 4 + j, raw + (2 * x + 1) * 4 + j
                a.op3("v_perm_b32", out + (2 * j) * 4 + x, hi, lo, f"s{S_SELLO}")
                a.op3("v_perm_b32", out + (2 * j + 1) * 4 + x, hi, lo, f"s{S_SELHI}")

    def perm4(raw, out):
        for j in range(4):
            for x in range(2):
                lo, hi = raw + (2 * x) * 4 + j, raw + (2 * x + 1) * 4 + j
                a.op3("v_perm_b32", out + (2 * j) * 2 + x, hi, lo, f"s{S_SELLO}")
                a.op3("v_perm_b32", out + (2 * j + 1) * 2 + x, hi, lo, f"s{S_SELHI}")

    def round_bf16(d, s):
        a.op2e("v_cvt_pk_bf16_f32", d, s, s)
        a.op2("v_lshlrev_b32", d, "16", d)

    def unpack(V, R, n):
        for d in range(n):
            a.op2("v_lshlrev_b32", V + 2 * d, "16", R + d)
            a.op2("v_and_b32", V + 2 * d + 1, "0xffff0000", R + d)

    LN_STEPS = ["quad_perm:[1,0,3,2]", "quad_perm:[2,3,0,1]", "row_ror:8", "x16", "x32"]

    def pk(op, d, x, y, z=None):
        regs = [x, x + 1, y, y + 1] + ([z, z + 1] if z is not None else [])
        t = f"{op} {vr(d, 2)}, {vr(x, 2)}, {vr(y, 2)}" + (f", {vr(z, 2)}" if z is not None else "")
        a.valu(t, dst=[d, d + 1], src=regs)

    def ln_norm4(R, XA, V, T, nA=2, steps=None):
        S, Q, MN, t0, M, RC = T, T + 2, T + 4, T + 6, T + 8, T + 9
        unpack(V, R, 8)
        pk("v_pk_add_f32", S, V, V + 2)
        pk("v_pk_add_f32", Q, V + 4, V + 6)
        pk("v_pk_add_f32", S, S, V + 8)
        pk("v_pk_add_f32", Q, Q, V + 10)
        pk("v_pk_add_f32", S, S, V + 12)
        pk("v_pk_add_f32", Q, Q, V + 14)
        pk("v_pk_add_f32", S, S, Q)
        a.op2("v_add_f32", S, S, S + 1)
        a.allreduce("v_add_f32", [S], steps or LN_STEPS, [t0])
        a.op2("v_mul_f32", MN, "0xbb000000", S)
        a.op1("v_mov_b32", MN + 1, MN)
        for i in range(0, 16, 2):
            pk("v_pk_add_f32", V + i, V + i, MN)
        pk("v_pk_mul_f32", Q, V, V)
        pk("v_pk_mul_f32", S, V + 2, V + 2)
        for i in range(4, 16, 4):
            pk("v_pk_fma_f32", Q, V + i, V + i, Q)
            pk("v_pk_fma_f32", S, V + i + 2, V + i + 2, S)
        pk("v_pk_add_f32", Q, Q, S)
        a.op2("v_add_f32", Q, Q, Q + 1)
        a.allreduce("v_add_f32", [Q], steps or LN_STEPS, [t0])
        round_bf16(M, MN)
        unpack(V, XA, nA)
        a.op2("v_mul_f32", Q, INV512, Q)
        round_bf16(Q, Q)
        a.op2("v_add_f32", Q, EPS, Q)
        round_bf16(Q, Q)
        a.op1("v_sqrt_f32", Q, Q, kind="trans")
        for i in range(2 * nA):
            a.op2("v_add_f32", V + i, V + i, M)
        round_bf16(Q, Q)
        a.op1("v_rcp_f32", RC, Q, kind="trans")
        for d in range(nA):
            a.op2e("v_cvt_pk_bf16_f32", XA + d, V + 2 * d, V + 2 * d + 1)
        unpack(V, XA, nA)
        for i in range(2 * nA):
            a.op2("v_mul_f32", V + i, V + i, RC)
        for d in range(nA):
            a.op2e("v_cvt_pk_bf16_f32", XA + d, V + 2 * d, V + 2 * d + 1)

    def n32_masks(t):
        a.op2("v_lshrrev_b32", t, "2", 0)
        a.op2("v_and_b32", t, "3", t)
        for r in (1, 2, 3):
            a.cmp("v_cmp_eq_u32", sr(S_MASK + 2 * (r - 1), 2), str(r), t)
        a.op2("v_and_b32", t, "8", 0)
        a.cmp("v_cmp_ne_u32", sr(S_MASK + 6, 2), "0", t)

    def n32_core(PA, WP, ACC, T, P3ADDR):
        for x in range(2):
            a.cndmask(T + x, PA + x, "0", sr(S_MASK + 6, 2))
            a.cndmask(T + 2 + x, "0", PA + x, sr(S_MASK + 6, 2))
        for cc in range(2):
            for t in range(4):
                a.mfma16k16(ACC + 4 * t, T + 2 * cc, WP + 2 * (2 * t + cc), None if cc == 0 else ACC + 4 * t)
        for t in range(4):
            a.cndmask(T + 4 + t, ACC + 4 * t, ACC + 4 * t + 1, sr(S_MASK, 2))
            a.cndmask(T + 4 + t, T + 4 + t, ACC + 4 * t + 2, sr(S_MASK + 2, 2))
            a.cndmask(T + 4 + t, T + 4 + t, ACC + 4 * t + 3, sr(S_MASK + 4, 2))
        a.allreduce("v_add_f32", [T + 4 + t for t in range(4)], ["row_ror:4", "row_ror:8"], [])
        a.raw("s_mov_b32 exec_lo, 0x000f000f")
        a.raw("s_mov_b32 exec_hi, 0x000f000f")
        dsw(T + 4, 4, P3ADDR, L_P3)
        a.raw("s_mov_b64 exec, -1")

    def n32_final(L16, T):
        dsr(T, 4, L16, L_P3)
        dsr(T + 4, 4, L16, L_P3 + 1024)
        a.raw("s_waitcnt lgkmcnt(0)")
        for t in range(4):
            a.op2("v_add_f32", T + t, T + t, T + 4 + t)
        a.swap32(T, T + 1)
        a.swap32(T + 2, T + 3)
        a.op2("v_add_f32", T, T, T + 1)
        a.op2("v_add_f32", T + 2, T + 2, T + 3)
        a.swap16(T, T + 2)
        a.op2("v_add_f32", T, T, T + 2)

    def n32_out_addr(d, t):
        a.op2("v_and_b32", d, "3", 0)
        a.op2("v_lshlrev_b32", d, "4", d)
        a.op2("v_and_b32", t, "4", 0)
        a.op3("v_lshl_add_u32", d, t, "4", d)
        a.op2("v_and_b32", t, "8", 0)
        a.op2("v_lshrrev_b32", t, "2", t)
        a.op2("v_add_u32", d, d, t)
        a.op2("v_and_b32", t, "16", 0)
        a.op2("v_lshrrev_b32", t, "1", t)
        a.op2("v_add_u32", d, d, t)
        a.op2("v_and_b32", t, "32", 0)
        a.op2("v_lshrrev_b32", t, "3", t)
        a.op2("v_add_u32", d, d, t)

    a.raw("s_cmp_ge_u32 s2, 256")
    a.raw("s_cbranch_scc1 L_end")
    a.raw("s_load_dwordx16 s[16:31], s[0:1], 0")
    a.raw("s_load_dwordx4 s[32:35], s[0:1], 64")
    a.raw("s_load_dwordx2 s[36:37], s[0:1], 80")
    stamp(0)
    a.op2("v_lshrrev_b32", 1, "6", 0)
    a.op2("v_and_b32", 0, "63", 0)
    a.op2("v_lshrrev_b32", 3, "4", 0)
    a.valu("v_readfirstlane_b32 s3, v1", src=[1], sdst=["s3"])
    a.raw("s_and_b32 s4, s2, 7")
    a.raw("s_lshr_b32 s5, s2, 4")
    a.op2("v_lshlrev_b32", 7, "4", 0)
    a.raw("s_bitcmp1_b32 s2, 3")
    a.raw("s_cbranch_scc0 L_att")

    mark("tail0")
    XS, XA = 8, 16
    WR1, WP1 = 24, 56
    a.raw("s_lshl_b32 s14, s4, 4")
    a.raw("s_add_u32 s14, s14, s5")
    a.raw("s_cmp_ge_u32 s3, 4")
    a.raw("s_cbranch_scc1 L_t_aux")
    a.op2("v_lshrrev_b32", 2, "3", 0)
    a.op2("v_lshlrev_b32", 2, "16", 2)
    a.op2("v_and_b32", 4, "7", 0)
    a.op3("v_lshl_add_u32", 6, 4, "4", 2)
    a.raw("s_lshr_b32 s10, s5, 3")
    a.raw("s_and_b32 s11, s5, 7")
    a.raw("s_lshl_b32 s8, s4, 10")
    a.raw("s_lshl_b32 s9, s11, 7")
    a.raw("s_add_u32 s8, s8, s9")
    a.raw("s_lshl_b32 s9, s10, 2")
    a.raw("s_add_u32 s9, s9, s3")
    a.raw("s_lshl_b32 s9, s9, 19")
    a.raw("s_add_u32 s8, s8, s9")
    a.raw("s_waitcnt lgkmcnt(0)")
    srd(R_B, P_WQ, 512 * 8192)
    a.raw("s_barrier")
    for i in range(8):
        bload(WR1 + 4 * i, 4, 6, R_B, soff="s8", flags=SF)
        if i < 7:
            a.raw("s_add_u32 s8, s8, 8192")
    a.raw("s_branch L_tail1")
    a.label("L_t_aux")
    for r in range(4):
        a.op1("v_mov_b32", 124 + r, "-1")
    a.raw("s_waitcnt lgkmcnt(0)")
    srd_ws()
    srd(R_A, P_X, 2048)
    a.raw("s_cmp_eq_u32 s3, 4")
    a.raw("s_cbranch_scc1 L_t_x")
    a.raw("s_cmp_eq_u32 s3, 5")
    a.raw("s_cbranch_scc1 L_t_co")
    a.raw("s_cmp_eq_u32 s3, 6")
    a.raw("s_cbranch_scc1 L_t_ca")
    a.raw("s_cmp_lg_u32 s5, 0")
    a.raw("s_cbranch_scc1 L_t_auxb")
    a.raw("s_lshl_b32 s6, s4, 13")
    a.raw("s_add_u32 s7, s6, 4096")
    for k in range(8):
        bstore(124, 4, 7, R_WS, soff="s6" if k < 4 else "s7", imm=QB + (k & 3) * 1024, flags="sc1")
    a.raw("s_branch L_t_auxb")
    a.label("L_t_x")
    bload(XS, 4, 7, R_A)
    bload(XS + 4, 4, 7, R_A, imm=1024)
    a.raw("s_branch L_t_auxb")
    a.label("L_t_co")
    a.raw("s_lshl_b32 s9, s14, 11")
    a.raw(f"s_add_u32 s9, s9, {OB}")
    bstore(124, 4, 7, R_WS, soff="s9", flags="sc1")
    bstore(124, 4, 7, R_WS, soff="s9", imm=1024, flags="sc1")
    a.raw("s_branch L_t_auxb")
    a.label("L_t_ca")
    a.raw("s_cmp_ge_u32 s5, 8")
    a.raw("s_cbranch_scc1 L_t_auxb")
    a.raw("s_lshl_b32 s10, s4, 3")
    a.raw("s_add_u32 s10, s10, s5")
    a.raw("s_lshl_b32 s10, s10, 9")
    a.raw(f"s_add_u32 s10, s10, {AB}")
    a.raw("s_mov_b32 exec_hi, 0")
    bstore(124, 4, 7, R_WS, soff="s10", flags="sc1")
    a.raw("s_mov_b64 exec, -1")
    a.label("L_t_auxb")
    a.raw("s_barrier")
    a.raw("s_branch L_tail1")

    mark("att0")
    a.label("L_att")
    VOFF, QOFF = 5, 6
    KR, VRAW, QR, SACC, PR, PM, OACC = 16, 48, 80, 96, 104, 108, 8
    a.op2("v_and_b32", 2, "15", 0)
    a.op2("v_xor_b32", 4, 2, 3)
    a.op2("v_lshlrev_b32", 4, "4", 4)
    for q in range(4):
        a.op2("v_xor_b32", 116 + q, str(64 * q), 4)
        a.op3("v_lshl_add_u32", 112 + q, 3, "8", 116 + q)
    a.op2("v_lshlrev_b32", 4, "10", 3)
    a.op3("v_lshl_add_u32", VOFF, 2, "4", 4)
    for t in ["s_lshr_b32 s6, s5, 3", "s_and_b32 s7, s5, 7", "s_lshl_b32 s8, s6, 3", "s_add_u32 s8, s8, s4",
              "s_lshl_b32 s8, s8, 13", "s_lshl_b32 s9, s7, 8", "s_add_u32 s8, s8, s9", "s_lshl_b32 s9, s3, 5",
              "s_add_u32 s8, s8, s9", "s_add_u32 s8, s8, 6144", "s_lshl_b32 s8, s8, 8", "s_add_u32 s9, s8, 4096",
              "s_lshl_b32 s13, s3, 13", f"s_add_u32 s13, s13, {L_K}", "s_add_u32 s12, s13, 4096", "s_mov_b32 m0, s13"]:
        a.raw(t)
    a.raw("s_waitcnt lgkmcnt(0)")
    srd(R_A, P_K, 0x2000000)
    for T in range(2):
        if T:
            a.raw("s_mov_b32 m0, s12")
            a.nop(1)
        for q in range(4):
            a.mem(f"buffer_load_dwordx4 v{112 + q}, {sr(R_A, 4)}, s{8 + T} offen offset:{q * 1024} {SF} lds",
                  src=[112 + q])
    srd(R_B, P_V, 0x2000000)
    if opts.get("kbar", 1):
        a.raw("s_barrier")
    NV1 = opts.get("nv1", 6)
    srd(R_C, P_DBG, 256)
    a.raw("s_lshl_b32 s6, s4, 2")
    a.op1("v_mov_b32", 124, "s6")
    a.raw("s_cmp_lg_u32 s3, 0")
    a.raw("s_cbranch_scc1 L_a_nfs")
    a.raw("s_mov_b64 exec, 1")
    bload(125, 1, 124, R_C, imm=128, flags="sc1")
    a.raw("s_mov_b64 exec, -1")
    a.label("L_a_nfs")
    for i in range(NV1):
        bload(VRAW + i * 4, 4, VOFF, R_B, soff=f"s{8 + i // 4}", imm=(i % 4) * 256, flags=SF)
    a.raw("s_branch L_att1")

    mark("tail1")
    a.label("L_tail1")
    a.raw(f"s_mov_b32 s{S_SELLO}, 0x05040100")
    a.raw(f"s_mov_b32 s{S_SELHI}, 0x07060302")
    srd_ws()
    srd(R_A, P_X, 2048)
    srd(R_C, P_DBG, 256)
    a.raw("s_lshl_b32 s6, s4, 2")
    a.op1("v_mov_b32", 123, "s6")
    a.raw("s_cmp_lt_u32 s3, 4")
    a.raw("s_cbranch_scc1 L_t_main")
    a.raw("s_waitcnt vmcnt(0)")
    a.raw("s_cmp_lg_u32 s3, 4")
    a.raw("s_cbranch_scc1 L_t_a1")
    dsw(XS, 4, 7, L_H)
    dsw(XS + 4, 4, 7, L_H + 1024)
    a.raw("s_waitcnt lgkmcnt(0)")
    stamp(3)
    a.raw("s_barrier")
    a.raw("s_barrier")
    a.raw("s_branch L_t_np")
    a.label("L_t_a1")
    a.raw("s_lshl_b32 s6, s5, 3")
    a.raw("s_add_u32 s6, s6, s3")
    a.raw("s_cmp_lg_u32 s6, 7")
    a.raw("s_cbranch_scc1 L_t_a2")
    a.op1("v_mov_b32", 4, "1")
    a.raw("s_mov_b64 exec, 1")
    bstore(4, 1, 123, R_C, imm=128, flags="sc1")
    a.raw("s_mov_b64 exec, -1")
    a.label("L_t_a2")
    stamp(5)
    a.raw("s_barrier")
    a.raw("s_barrier")
    a.raw("s_branch L_t_np")
    a.label("L_t_main")
    a.op2("v_lshrrev_b32", 2, "2", 0)
    a.op2("v_and_b32", 5, "1", 0)
    a.op3("v_lshl_add_u32", 2, 2, "1", 5)
    a.op2("v_lshlrev_b32", 2, "4", 2)
    a.op2("v_and_b32", 6, "2", 0)
    a.op3("v_lshl_add_u32", 20, 6, "9", 2)
    a.op3("v_lshl_add_u32", 2, 3, "1", 5)
    a.raw("s_lshl_b32 s6, s10, 2")
    a.raw("s_add_u32 s6, s6, s3")
    a.raw("s_lshl_b32 s6, s6, 7")
    a.op3("v_lshl_add_u32", 21, 2, "4", "s6")
    a.op3("v_lshl_add_u32", 21, 6, "9", 21)
    a.op3("v_lshl_add_u32", 2, 3, "3", 4)
    a.raw("s_lshl_b32 s7, s3, 9")
    a.op3("v_lshl_add_u32", 22, 2, "4", "s7")
    a.op2("v_and_b32", 2, "31", 0)
    a.op2("v_lshlrev_b32", 2, "4", 2)
    a.op2("v_and_b32", 5, "32", 0)
    a.op3("v_lshl_add_u32", 23, 5, "5", 2)
    a.op2("v_lshrrev_b32", 2, "2", 0)
    a.op2("v_and_b32", 2, "3", 2)
    for c in range(4):
        a.cmp("v_cmp_eq_u32", sr(S_MASK + 2 * c, 2), str(c), 2)
    a.op2("v_and_b32", 2, "8", 0)
    a.cmp("v_cmp_ne_u32", "s[12:13]", "0", 2)
    a.raw("s_lshl_b32 s8, s14, 9")
    a.op2("v_lshlrev_b32", 6, "3", 0)
    a.raw("s_barrier")
    for s_ in range(2):
        dsr(XS + 4 * s_, 4, 20, L_H + 512 * s_)
    dsr(XA, 4, 21, L_H)
    a.raw("s_waitcnt lgkmcnt(0)")
    ln_norm4(XS, XA, 88, 104, nA=4, steps=["quad_perm:[1,0,3,2]", "row_ror:4", "row_ror:8", "x16", "x32"])
    for c in range(4):
        for x in range(4):
            a.cndmask(88 + 4 * c + x, "0", XA + x, sr(S_MASK + 2 * c, 2))
    stamp(2)
    a.raw("s_waitcnt vmcnt(0)")
    stamp(1)
    a.raw("s_cmp_lg_u32 s3, 0")
    a.raw("s_cbranch_scc1 L_t_nfs")
    a.raw("s_mov_b64 exec, 1")
    bload(5, 1, 123, R_C, imm=128, flags="sc1")
    a.raw("s_mov_b64 exec, -1")
    a.label("L_t_nfs")
    perm8(WR1, WP1)
    for c in range(4):
        for t in range(2):
            a.mfma16(8 + 4 * t, 88 + 4 * c, WP1 + 4 * (2 * c + t), None if c == 0 else 8 + 4 * t)
    for b in range(2):
        for t in range(2):
            a.cndmask(16 + 2 * b + t, 8 + 4 * t + 2 * b, 8 + 4 * t + 2 * b + 1, "s[12:13]")
    a.allreduce("v_add_f32", [16, 17, 18, 19], ["row_ror:8"], [])
    a.raw("s_mov_b32 exec_lo, 0x00ff00ff")
    a.raw("s_mov_b32 exec_hi, 0x00ff00ff")
    dsw(16, 4, 22, L_P3)
    a.raw("s_mov_b64 exec, -1")
    a.raw("s_waitcnt lgkmcnt(0)")
    a.raw("s_barrier")
    stamp(4)
    a.raw("s_cmp_lg_u32 s3, 0")
    a.raw("s_cbranch_scc1 L_t_np")
    dsr(8, 4, 23, L_P3)
    dsr(12, 4, 23, L_P3 + 512)
    a.raw("s_waitcnt lgkmcnt(0)")
    for r in range(4):
        a.op2("v_add_f32", 8 + r, 8 + r, 12 + r)
    a.swap32(8, 10)
    a.swap32(9, 11)
    a.op2("v_add_f32", 8, 8, 10)
    a.op2("v_add_f32", 9, 9, 11)
    for r in range(2):
        a.op2("v_min_u32", 8 + r, "-2", 8 + r)
    a.raw("s_waitcnt vmcnt(0)")
    poll_flags(123, 128, "1", 5, pre_loaded=True)
    bstore(8, 2, 6, R_WS, soff="s8", imm=QB, flags="sc1")
    stamp(2)
    a.label("L_t_np")
    a.raw("s_barrier")
    a.raw("s_cmp_lt_u32 s5, 8")
    a.raw("s_cbranch_scc1 L_s3")
    a.raw("s_cmp_lt_u32 s5, 15")
    a.raw("s_cbranch_scc1 L_ffn")
    a.raw("s_cmp_eq_u32 s3, 1")
    a.raw("s_cbranch_scc1 L_touch")
    a.raw("s_cmp_lg_u32 s3, 0")
    a.raw("s_cbranch_scc1 L_exit")
    a.raw("s_lshl_b32 s8, s4, 13")
    a.raw("s_add_u32 s9, s8, 4096")
    a.op2("v_and_b32", 2, "15", 0)
    a.op2("v_lshlrev_b32", 2, "4", 2)
    a.op3("v_lshl_add_u32", 2, 3, "9", 2)
    poll_masked([(8 + 4 * k, 2, "s8" if k < 2 else "s9", QB + (k & 1) * 2048) for k in range(4)], 24, sleep=2)
    a.op1("v_mov_b32", 4, "1")
    a.raw("s_mov_b64 exec, 1")
    bstore(4, 1, 123, R_C, flags="sc1")
    a.raw("s_mov_b64 exec, -1")
    stamp(3)
    a.raw("s_branch L_exit")
    a.label("L_touch")
    a.raw("s_getpc_b64 s[6:7]")
    a.label("L_pc")
    a.raw(f"s_sub_u32 s6, s6, L_pc - {NAME}_kernel")
    a.raw("s_subb_u32 s7, s7, 0")
    for k in range(opts.get("code_kb", 10)):
        if k % 4 == 0 and k:
            a.op2("v_add_u32", 7, "4096", 7)
        a.mem(f"global_load_dwordx4 v[12:15], v7, s[6:7] offset:{(k % 4) * 1024}", src=[7], dst=[12, 13, 14, 15])
    a.raw("s_branch L_exit")

    a.label("L_att1")
    a.raw(f"s_mov_b32 s{S_SELLO}, 0x05040100")
    a.raw(f"s_mov_b32 s{S_SELHI}, 0x07060302")
    srd_ws()
    srd(R_A, P_X, 2048)
    srd(R_D, P_OUT, 2048)
    a.raw("s_lshl_b32 s14, s5, 3")
    a.raw("s_add_u32 s14, s14, s4")
    a.raw("s_lshl_b32 s15, s14, 12")
    a.raw(f"s_add_u32 s15, s15, {FB}")
    a.raw("s_lshl_b32 s12, s4, 13")
    a.raw("s_lshr_b32 s7, s5, 3")
    a.raw("s_lshl_b32 s7, s7, 8")
    a.raw("s_add_u32 s12, s12, s7")
    a.raw("s_add_u32 s62, s12, 4096")
    a.op2("v_lshlrev_b32", 126, "4", 2)
    a.op3("v_lshl_add_u32", 144, 3, "9", 126)
    a.op2("v_lshlrev_b32", 145, "7", 3)
    a.op2("v_and_b32", 126, "3", 0)
    a.op3("v_lshl_add_u32", 145, 126, "5", 145)
    a.op2("v_and_b32", 126, "12", 0)
    a.op2("v_add_u32", 145, 145, 126)
    qloads = [(128 + 4 * k, 144, "s12" if k < 2 else "s62", QB + (k & 1) * 2048) for k in range(4)]

    def q_finish():
        for k in range(2):
            pk("v_pk_add_f32", 128 + 4 * k, 128 + 4 * k, 136 + 4 * k)
            pk("v_pk_add_f32", 130 + 4 * k, 130 + 4 * k, 138 + 4 * k)
        for k in range(2):
            for x in range(2):
                a.op2e("v_cvt_pk_bf16_f32", 136 + 2 * k + x, 128 + 4 * k + 2 * x, 128 + 4 * k + 2 * x + 1)
        for k in range(2):
            for x in range(2):
                dsw(136 + 2 * k + x, 1, 145, L_Q + 512 * k + 16 * x)
    for q in range(4):
        a.op3("v_lshl_add_u32", 116 + q, 2, "8", 116 + q)
        a.op2("v_add_u32", 116 + q, "s13", 116 + q)
    a.op2("v_and_b32", 2, "3", 0)
    a.op2("v_lshlrev_b32", 2, "8", 2)
    a.op3("v_lshl_add_u32", QOFF, 3, "4", 2)
    a.op2("v_lshrrev_b32", 2, "2", 0)
    a.op2("v_and_b32", 2, "3", 2)
    for c in range(4):
        a.cmp("v_cmp_eq_u32", sr(S_MASK + 2 * c, 2), str(c), 2)
    a.raw(f"s_mov_b32 s10, {SCALE}")
    a.raw(f"s_mov_b32 s11, {LOG2E}")
    for r in range(4):
        a.op1("v_mov_b32", 12 + r, "-1")
    a.raw(f"s_waitcnt vmcnt({NV1})")
    stamp(1)
    a.raw("s_barrier")
    HOLD = opts.get("hold", 0)
    a.raw("s_cmp_lg_u32 s3, 0")
    a.raw("s_cbranch_scc1 L_a_nq")
    poll_flags(124, 128, "1", 125, pre_loaded=True)
    if HOLD:
        poll_masked(qloads, 126, sleep=1)
        q_finish()
    else:
        for (d, vo, so, im) in qloads:
            bload(d, 4, vo, R_WS, soff=so, imm=im, flags="sc1")
    a.label("L_a_nq")
    for T in range(2):
        for s in range(4):
            dsr(KR + T * 16 + s * 4, 4, 116 + s, T * 4096)
    if HOLD:
        a.raw("s_waitcnt lgkmcnt(0)")
    a.raw("s_barrier")
    for i in range(NV1, 8):
        bload(VRAW + i * 4, 4, VOFF, R_B, soff=f"s{8 + i // 4}", imm=(i % 4) * 256, flags=SF)
    a.raw("s_cmp_lg_u32 s3, 1")
    a.raw("s_cbranch_scc1 L_a_nc")
    a.raw("s_cmp_ge_u32 s5, 8")
    a.raw("s_cbranch_scc1 L_a_nc")
    for k in range(4):
        bstore(12, 4, 7, R_WS, soff="s15", imm=k * 1024, flags="sc1")
    a.label("L_a_nc")
    if not HOLD:
        a.raw("s_cmp_lg_u32 s3, 0")
        a.raw("s_cbranch_scc1 L_a_nq2")
        a.raw(f"s_waitcnt vmcnt({8 - NV1})")
        a.op3("v_max3_u32", 126, 128, 129, 130)
        for r in range(131, 143, 2):
            a.op3("v_max3_u32", 126, 126, r, r + 1)
        a.op2("v_max_u32", 126, 126, 143)
        a.valu("v_cmp_eq_u32_e32 vcc, -1, v126", src=[126], sdst=["vcc"])
        a.raw("s_cbranch_vccz L_a_qok")
        poll_masked(qloads, 126, sleep=1)
        a.label("L_a_qok")
        q_finish()
        a.label("L_a_nq2")
        a.raw("s_waitcnt lgkmcnt(0)")
    if not HOLD:
        a.raw("s_barrier")
    stamp(2)
    for s in range(4):
        dsr(QR + 4 * s, 4, QOFF, L_Q + 64 * s)
    a.raw("s_waitcnt lgkmcnt(0)")
    for s in range(4):
        for T in range(2):
            a.mfma16(SACC + 4 * T, KR + T * 16 + s * 4, QR + 4 * s, None if s == 0 else SACC + 4 * T)
    SV = QR
    PK = QR + 8
    for d in range(4):
        a.op2e("v_cvt_pk_bf16_f32", PK + d, SACC + 2 * d, SACC + 2 * d + 1)
    unpack(SV, PK, 4)
    for i in range(8):
        a.op2("v_mul_f32", SV + i, "s10", SV + i)
    for d in range(4):
        a.op2e("v_cvt_pk_bf16_f32", PK + d, SV + 2 * d, SV + 2 * d + 1)
    unpack(SV, PK, 4)
    for i in range(8):
        a.op2("v_mul_f32", SV + i, "s11", SV + i)
    MX, LS, TT = QR + 12, QR + 13, QR + 14
    a.op3("v_max3_f32", MX, SV + 0, SV + 1, SV + 2)
    a.op3("v_max3_f32", TT, SV + 3, SV + 4, SV + 5)
    a.op3("v_max3_f32", MX, MX, SV + 6, SV + 7)
    a.op2("v_max_f32", MX, MX, TT)
    a.allreduce("v_max_f32", [MX], ["x16", "x32"], [TT])
    for i in range(8):
        a.op2("v_sub_f32", SV + i, SV + i, MX)
    for i in range(8):
        a.op1("v_exp_f32", SV + i, SV + i, kind="trans")
    for d in range(4):
        a.op2e("v_cvt_pk_bf16_f32", PR + d, SV + 2 * d, SV + 2 * d + 1)
    a.op2("v_add_f32", LS, SV + 0, SV + 1)
    a.op2("v_add_f32", TT, SV + 2, SV + 3)
    a.op2("v_add_f32", LS, LS, SV + 4)
    a.op2("v_add_f32", TT, TT, SV + 5)
    a.op2("v_add_f32", LS, LS, SV + 6)
    a.op2("v_add_f32", TT, TT, SV + 7)
    a.op2("v_add_f32", LS, LS, TT)
    for c in range(4):
        for x in range(4):
            a.cndmask(PM + 4 * c + x, "0", PR + x, sr(S_MASK + 2 * c, 2))
    a.allreduce("v_add_f32", [LS], ["x16", "x32"], [TT])
    a.raw("s_lshl_b32 s6, s3, 3")
    a.op2("v_lshlrev_b32", 2, "6", 0)
    a.op2("v_add_u32", 2, "s6", 2)
    a.raw("s_mov_b64 exec, 15")
    dsw(MX, 2, 2, L_ST)
    a.raw("s_mov_b64 exec, -1")
    a.op2("v_and_b32", 4, "3", 0)
    a.op2("v_lshlrev_b32", 4, "8", 4)
    a.op2("v_and_b32", 3, "12", 0)
    a.op3("v_lshl_add_u32", 4, 3, "4", 4)
    a.op2("v_and_b32", 3, "16", 0)
    a.op3("v_lshl_add_u32", 4, 3, "6", 4)
    a.op2("v_lshrrev_b32", 3, "5", 0)
    a.raw("s_lshl_b32 s6, s3, 1")
    a.op2("v_add_u32", 3, "s6", 3)
    a.op3("v_lshl_add_u32", 4, 3, "4", 4)
    a.op2("v_lshlrev_b32", 5, "6", 3)
    a.raw("s_lshl_b32 s6, s3, 13")
    a.op2("v_add_u32", 2, "s6", 7)
    a.raw("s_lshl_b32 s6, s4, 4")
    a.raw("s_add_u32 s6, s6, s5")
    a.raw("s_lshl_b32 s6, s6, 1")
    a.raw("s_add_u32 s6, s6, s3")
    a.raw("s_lshl_b32 s6, s6, 10")
    a.raw(f"s_add_u32 s12, s6, {OB}")
    for r in range(4):
        a.raw(f"s_mov_b32 s{8 + r}, {0x07060500 + r:#x}")
    a.raw("s_waitcnt vmcnt(0)")
    stamp(3)
    perm8(VRAW, KR)
    for ch in range(2):
        for c in range(4):
            a.mfma16(OACC + 4 * ch, KR + 4 * (ch * 4 + c), PM + 4 * c, None if c == 0 else OACC + 4 * ch)
    for ch in range(2):
        dsw(OACC + 4 * ch, 4, 2, L_K + 1024 * ch)
    a.raw("s_waitcnt lgkmcnt(0)")
    a.raw("s_barrier")
    a.raw("s_cmp_ge_u32 s3, 2")
    a.raw("s_cbranch_scc1 L_a_fin")
    OW, STV = 16, 48
    for k in range(4):
        dsr(STV + 4 * k, 4, 5, L_ST + 16 * k)
    for w in range(8):
        dsr(OW + 4 * w, 4, 4, L_K + 8192 * w)
    a.raw("s_waitcnt lgkmcnt(8)")
    Mx, Lx, E0 = 64, 65, 66
    a.op3("v_max3_f32", Mx, STV + 0, STV + 2, STV + 4)
    a.op3("v_max3_f32", Lx, STV + 6, STV + 8, STV + 10)
    a.op3("v_max3_f32", Mx, Mx, STV + 12, STV + 14)
    a.op2("v_max_f32", Mx, Mx, Lx)
    for w in range(8):
        a.op2("v_sub_f32", E0 + w, STV + 2 * w, Mx)
    for w in range(8):
        a.op1("v_exp_f32", E0 + w, E0 + w, kind="trans")
    a.op2("v_mul_f32", Lx, E0 + 0, STV + 1)
    for w in range(1, 8):
        a.op2("v_fmac_f32", Lx, E0 + w, STV + 2 * w + 1)
    a.op1("v_rcp_f32", 74, Lx, kind="trans")
    a.op1("v_log_f32", 75, Lx, kind="trans")
    a.raw("s_waitcnt lgkmcnt(0)")
    for r in range(4):
        a.op2("v_mul_f32", 76 + r, E0 + 0, OW + r)
    for w in range(1, 8):
        for r in range(4):
            a.op2("v_fmac_f32", 76 + r, E0 + w, OW + 4 * w + r)
    a.op2("v_add_f32", 75, 75, Mx)
    for r in range(4):
        a.op2("v_mul_f32", 76 + r, 76 + r, 74)
    for r in range(4):
        a.op3("v_perm_b32", 76 + r, 76 + r, 75, f"s{8 + r}")
    for r in range(4):
        a.op2("v_min_u32", 76 + r, "-2", 76 + r)
    bstore(76, 4, 7, R_WS, soff="s12", flags="sc1")
    stamp(4)
    a.raw("s_branch L_exit")
    a.label("L_a_fin")
    a.raw("s_cmp_lg_u32 s3, 2")
    a.raw("s_cbranch_scc1 L_exit")
    a.raw("s_cmp_ge_u32 s5, 8")
    a.raw("s_cbranch_scc1 L_exit")
    a.raw("s_lshr_b32 s6, s14, 4")
    a.raw("s_lshl_b32 s6, s6, 7")
    a.raw("s_and_b32 s7, s14, 3")
    a.raw("s_lshl_b32 s7, s7, 5")
    a.raw("s_add_u32 s6, s6, s7")
    a.raw("s_bfe_u32 s7, s14, 0x20002")
    a.raw("s_lshl_b32 s7, s7, 1")
    a.raw("s_add_u32 s6, s6, s7")
    a.op2("v_and_b32", 2, "3", 0)
    a.op2("v_lshlrev_b32", 2, "3", 2)
    a.op2("v_bfe_u32" if False else "v_lshrrev_b32", 3, "3", 0)
    a.op2("v_and_b32", 3, "1", 3)
    a.op3("v_add3_u32", 2, 2, 3, "s6")
    a.op2("v_and_b32", 3, "4", 0)
    a.op2("v_lshlrev_b32", 4, "1", 2)
    a.op3("v_lshl_add_u32", 4, 3, "8", 4)
    a.mem(f"buffer_load_ushort v10, v4, {sr(R_A, 4)}, 0 offen", src=[4], dst=[10])
    a.op2("v_lshrrev_b32", 5, "6", 2)
    a.op2("v_lshlrev_b32", 5, "9", 5)
    a.op3("v_lshl_add_u32", 5, 3, "6", 5)
    a.op2("v_and_b32", 6, "6", 2)
    a.op3("v_lshl_add_u32", 5, 6, "5", 5)
    a.op2("v_and_b32", 6, "56", 2)
    a.op2("v_add_u32", 5, 5, 6)
    a.op2("v_and_b32", 6, "1", 2)
    a.op3("v_lshl_add_u32", 5, 6, "2", 5)
    a.op2("v_lshrrev_b32", 6, "4", 0)
    a.op3("v_lshl_add_u32", 5, 6, "12", 5)
    a.op2("v_lshrrev_b32", 6, "2", 0)
    a.op2("v_and_b32", 6, "3", 6)
    for r in (1, 2, 3):
        a.cmp("v_cmp_eq_u32", sr(S_MASK + 2 * (r - 1), 2), str(r), 6)
    a.op2("v_lshlrev_b32", 6, "2", 0)
    F0 = 16
    for r in range(4):
        a.op1("v_mov_b32", F0 + 12 + r, "0")
    poll_flags(6, 0, "0xff", 8)
    a.raw(f"s_mov_b32 s8, {AB}")
    a.raw(f"s_mov_b32 s9, {AB + 16384}")
    poll_masked([(12, 5, "s8", 0), (13, 5, "s9", 0)], 8, sleep=4, width=1)
    stamp(4)
    a.op2("v_add_f32", 12, 12, 13)
    a.allreduce("v_add_f32", [12], ["x16", "x32"], [13])
    round_bf16(12, 12)
    a.op2("v_lshlrev_b32", 10, "16", 10)
    a.op2("v_add_f32", 12, 12, 10)
    round_bf16(12, 12)
    poll_masked([(F0 + 4 * k, 7, "s15", k * 1024) for k in range(4)], 8, sleep=opts.get("sleep_f", 2), last_hi="0")
    stamp(5)
    for r in range(4):
        a.op2("v_add_f32", F0 + r, F0 + r, F0 + 4 + r)
        a.op2("v_add_f32", F0 + 8 + r, F0 + 8 + r, F0 + 12 + r)
    for r in range(4):
        a.op2("v_add_f32", F0 + r, F0 + r, F0 + 8 + r)
    a.allreduce("v_add_f32", [F0 + r for r in range(4)], ["row_ror:4", "row_ror:8"], [])
    for r in (1, 2, 3):
        a.cndmask(F0, F0, F0 + r, sr(S_MASK + 2 * (r - 1), 2))
    a.allreduce("v_add_f32", [F0], ["x16", "x32"], [F0 + 4])
    round_bf16(F0, F0)
    a.op2("v_add_f32", F0, F0, 12)
    a.op2e("v_cvt_pk_bf16_f32", F0, F0, F0)
    a.raw("s_mov_b64 exec, 0xffff")
    bstore(F0, 1, 4, R_D, op="buffer_store_short")
    a.raw("s_mov_b64 exec, -1")
    stamp(6)
    a.raw("s_branch L_exit")

    a.label("L_s3")
    WR3, WP3, C, T = 16, 48, 80, 96
    srd(R_D, P_WO, 4096 * 1024)
    a.op2("v_and_b32", 2, "8", 0)
    a.op3("v_lshl_add_u32", 2, 2, "3", 3)
    a.op2("v_lshlrev_b32", 2, "10", 2)
    a.op2("v_and_b32", 4, "7", 0)
    a.op3("v_lshl_add_u32", 2, 4, "4", 2)
    a.raw("s_lshl_b32 s6, s4, 2")
    a.raw("s_lshr_b32 s7, s3, 1")
    a.raw("s_add_u32 s6, s6, s7")
    a.raw("s_lshl_b32 s6, s6, 7")
    a.raw("s_and_b32 s7, s3, 1")
    a.raw("s_lshl_b32 s7, s7, 2")
    a.raw("s_add_u32 s6, s6, s7")
    a.raw("s_lshl_b32 s6, s6, 10")
    a.raw("s_lshl_b32 s7, s5, 7")
    a.raw("s_add_u32 s6, s6, s7")
    for i in range(8):
        bload(WR3 + 4 * i, 4, 2, R_D, soff="s6", flags=SF)
        if i < 7:
            a.raw("s_add_u32 s6, s6, 8192")
    a.op2("v_lshlrev_b32", 5, "11", 3)
    a.op2("v_and_b32", 6, "15", 0)
    a.op3("v_lshl_add_u32", 8, 6, "4", 5)
    a.raw("s_lshl_b32 s6, s3, 8")
    a.op3("v_lshl_add_u32", 9, 6, "3", "s6")
    a.op2("v_and_b32", 5, "32", 0)
    a.op3("v_lshl_add_u32", 9, 5, "2", 9)
    a.op2("v_and_b32", 5, "1", 3)
    a.op3("v_lshl_add_u32", 9, 5, "2", 9)
    a.op2("v_and_b32", 5, "1", 0)
    a.op3("v_lshl_add_u32", 5, 3, "1", 5)
    a.op3("v_lshl_add_u32", 10, 5, "4", "s6")
    a.op2("v_and_b32", 5, "2", 0)
    a.op3("v_lshl_add_u32", 10, 5, "6", 10)
    a.op3("v_lshl_add_u32", 5, 3, "3", 4)
    a.raw("s_lshl_b32 s7, s3, 9")
    a.op3("v_lshl_add_u32", 11, 5, "4", "s7")
    a.op2("v_and_b32", 5, "31", 0)
    a.op2("v_lshlrev_b32", 5, "4", 5)
    a.op2("v_and_b32", 6, "32", 0)
    a.op3("v_lshl_add_u32", 12, 6, "6", 5)
    a.op2("v_lshlrev_b32", 13, "3", 0)
    a.raw("s_lshl_b32 s7, s4, 15")
    a.raw("s_add_u32 s6, s6, s7")
    for k in range(4):
        a.raw(f"s_add_u32 s{8 + k}, s6, {OB + k * 8192}")
    a.raw("s_lshl_b32 s6, s4, 3")
    a.raw("s_add_u32 s6, s6, s5")
    a.raw("s_lshl_b32 s12, s6, 9")
    a.raw(f"s_add_u32 s12, s12, {AB}")
    a.op2("v_lshrrev_b32", 5, "2", 0)
    a.op2("v_and_b32", 5, "3", 5)
    for c in range(4):
        a.cmp("v_cmp_eq_u32", sr(S_MASK + 2 * c, 2), str(c), 5)
    a.op2("v_and_b32", 5, "8", 0)
    a.cmp("v_cmp_ne_u32", "s[14:15]", "0", 5)
    a.raw("s_mov_b32 s13, 0x0c0c0400")
    a.raw("s_waitcnt vmcnt(0)")
    stamp(1)
    perm8(WR3, WP3)
    a.raw("s_cmp_lg_u32 s3, 0")
    a.raw("s_cbranch_scc1 L_s3_nf")
    poll_flags(123, 0, "1", 5, sleep=8)
    a.label("L_s3_nf")
    a.raw("s_barrier")
    stamp(3)
    poll_masked([(C + 4 * k, 8, f"s{8 + k}", 0) for k in range(4)], 5, sleep=opts.get("sleep_o", 2))
    stamp(4)
    LK = T
    for k in range(4):
        a.op3("v_perm_b32", LK + k, C + 4 * k + 1, C + 4 * k, "s13")
        a.op3("v_perm_b32", T + 4 + k, C + 4 * k + 3, C + 4 * k + 2, "s13")
    for k in range(4):
        a.op3("v_perm_b32", LK + k, T + 4 + k, LK + k, f"s{S_SELLO}")
    MM = T + 4
    for b in range(2):
        a.op2("v_max_f32", MM + b, LK + 2 * b, LK + 2 * b + 1)
    a.allreduce("v_max_f32", [MM, MM + 1], ["x16", "x32"], [T + 6, T + 7])
    for k in range(4):
        a.op2("v_sub_f32", LK + k, LK + k, MM + (k >> 1))
    for k in range(4):
        a.op1("v_exp_f32", LK + k, LK + k, kind="trans")
    AC = T + 8
    SS = T + 16
    for b in range(2):
        for r in range(4):
            a.op2("v_mul_f32", AC + 4 * b + r, LK + 2 * b, C + 8 * b + r)
    for b in range(2):
        for r in range(4):
            a.op2("v_fmac_f32", AC + 4 * b + r, LK + 2 * b + 1, C + 8 * b + 4 + r)
        a.op2("v_add_f32", SS + b, LK + 2 * b, LK + 2 * b + 1)
    a.swap32(SS, SS + 1)
    for r in range(4):
        a.swap32(AC + r, AC + 4 + r)
    a.op2("v_add_f32", SS, SS, SS + 1)
    for r in range(4):
        a.op2("v_add_f32", AC + r, AC + r, AC + 4 + r)
    a.op1("v_mov_b32", SS + 1, SS)
    a.swap16(AC, AC + 2)
    a.swap16(AC + 1, AC + 3)
    a.swap16(SS, SS + 1)
    a.op2("v_add_f32", SS, SS, SS + 1)
    a.op2("v_add_f32", AC, AC, AC + 2)
    a.op2("v_add_f32", AC + 1, AC + 1, AC + 3)
    a.op1("v_rcp_f32", SS, SS, kind="trans")
    for r in range(2):
        a.op2("v_mul_f32", AC + r, AC + r, SS)
    a.op2e("v_cvt_pk_bf16_f32", AC, AC, AC + 1)
    dsw(AC, 1, 9, L_ON)
    a.raw("s_waitcnt lgkmcnt(0)")
    dsr(T, 4, 10, L_ON)
    a.raw("s_waitcnt lgkmcnt(0)")
    AM, D0 = 16, 32
    for c in range(4):
        for x in range(4):
            a.cndmask(AM + 4 * c + x, "0", T + x, sr(S_MASK + 2 * c, 2))
        for t in range(2):
            a.mfma16(D0 + 4 * t, AM + 4 * c, WP3 + 4 * (2 * c + t), None if c == 0 else D0 + 4 * t)
    for b in range(2):
        for t in range(2):
            a.cndmask(T + 2 * b + t, D0 + 4 * t + 2 * b, D0 + 4 * t + 2 * b + 1, "s[14:15]")
    a.allreduce("v_add_f32", [T, T + 1, T + 2, T + 3], ["row_ror:8"], [])
    a.raw("s_mov_b32 exec_lo, 0x00ff00ff")
    a.raw("s_mov_b32 exec_hi, 0x00ff00ff")
    dsw(T, 4, 11, L_P3)
    a.raw("s_mov_b64 exec, -1")
    a.raw("s_waitcnt lgkmcnt(0)")
    a.raw("s_barrier")
    a.raw("s_cmp_lg_u32 s3, 2")
    a.raw("s_cbranch_scc1 L_exit")
    for w in range(4):
        dsr(T + 4 * w, 4, 12, L_P3 + 512 * w)
    a.raw("s_waitcnt lgkmcnt(0)")
    for r in range(4):
        a.op2("v_add_f32", T + r, T + r, T + 4 + r)
        a.op2("v_add_f32", T + 8 + r, T + 8 + r, T + 12 + r)
    for r in range(4):
        a.op2("v_add_f32", T + r, T + r, T + 8 + r)
    a.swap32(T, T + 2)
    a.swap32(T + 1, T + 3)
    a.op2("v_add_f32", T, T, T + 2)
    a.op2("v_add_f32", T + 1, T + 1, T + 3)
    for r in range(2):
        a.op2("v_min_u32", T + r, "-2", T + r)
    bstore(T, 2, 13, R_WS, soff="s12", flags="sc1")
    stamp(2)
    a.raw("s_branch L_exit")

    a.label("L_ffn")
    a.op2("v_lshrrev_b32", 2, "3", 0)
    a.op2("v_and_b32", 4, "3", 0)
    a.op3("v_lshl_add_u32", 2, 2, "2", 4)
    a.op2("v_lshlrev_b32", 2, "4", 2)
    a.op2("v_and_b32", 5, "4", 0)
    a.op3("v_lshl_add_u32", 120, 5, "8", 2)
    a.op3("v_lshl_add_u32", 2, 3, "2", 4)
    a.raw("s_lshl_b32 s6, s3, 7")
    a.op3("v_lshl_add_u32", 121, 2, "3", "s6")
    a.op3("v_lshl_add_u32", 121, 5, "8", 121)
    a.raw("s_lshl_b32 s6, s3, 8")
    a.op3("v_lshl_add_u32", 122, 2, "4", "s6")
    n32_masks(2)
    n32_out_addr(119, 2)
    W1R, W1P, W2R, W2P, C, T = 20, 36, 128, 160, 96, 64
    a.raw("s_mul_i32 s6, s4, 7")
    a.raw("s_add_u32 s6, s6, s5")
    a.raw(f"s_sub_u32 s{S_PHI}, s6, 8")
    srd(R_D, P_W1, 512 * 3584)
    srd(R_B, P_W2, 1792 * 1024)
    a.op2("v_and_b32", 2, "12", 0)
    a.op2("v_lshlrev_b32", 2, "2", 2)
    a.op3("v_lshl_add_u32", 2, 3, "1", 2)
    a.op2("v_mul_u32_u24", 2, "3584", 2)
    a.op2("v_and_b32", 4, "3", 0)
    a.op3("v_lshl_add_u32", 2, 4, "4", 2)
    a.raw(f"s_mul_i32 s6, s3, {64 * 3584}")
    a.raw(f"s_lshl_b32 s7, s{S_PHI}, 6")
    a.raw("s_add_u32 s6, s6, s7")
    for i in range(4):
        a.raw(f"s_add_u32 s7, s6, {((i >> 1) * 8 + (i & 1)) * 3584}")
        bload(W1R + 4 * i, 4, 2, R_D, soff="s7", flags=SF)
    a.raw("s_cmp_ge_u32 s3, 4")
    a.raw("s_cbranch_scc1 L_f_n2")
    a.op2("v_lshlrev_b32", 2, "13", 3)
    a.op2("v_and_b32", 4, "15", 0)
    a.op3("v_lshl_add_u32", 2, 4, "4", 2)
    a.raw(f"s_lshl_b32 s6, s{S_PHI}, 15")
    a.raw("s_lshl_b32 s7, s3, 8")
    a.raw("s_add_u32 s6, s6, s7")
    a.raw("s_add_u32 s7, s6, 4096")
    for i in range(8):
        bload(W2R + 4 * i, 4, 2, R_B, soff="s6" if i < 4 else "s7", imm=(i & 3) * 1024, flags=SF)
    a.label("L_f_n2")
    a.op2("v_and_b32", 4, "31", 0)
    a.op2("v_and_b32", 5, "32", 0)
    a.op2("v_lshlrev_b32", 5, "7", 5)
    a.op3("v_lshl_add_u32", 8, 4, "4", 5)
    a.op2("v_and_b32", 5, "15", 0)
    a.raw("s_lshl_b32 s6, s3, 7")
    a.op3("v_lshl_add_u32", 9, 5, "3", "s6")
    a.op2("v_and_b32", 5, "16", 0)
    a.op3("v_lshl_add_u32", 9, 5, "6", 9)
    a.op2("v_and_b32", 6, "3", 0)
    a.op3("v_lshl_add_u32", 6, 6, "5", "s6")
    a.op3("v_lshl_add_u32", 6, 5, "6", 6)
    a.op2("v_and_b32", 5, "12", 0)
    a.op2("v_add_u32", 6, 6, 5)
    bload(10, 1, 6, R_A)
    bload(11, 1, 6, R_A, imm=16)
    a.raw("s_lshl_b32 s6, s3, 9")
    for k in range(4):
        a.raw(f"s_add_u32 s{8 + k}, s6, {AB + k * 8192}")
    a.op2("v_and_b32", 5, "1", 0)
    a.op2("v_lshlrev_b32", 5, "6", 5)
    a.op3("v_lshl_add_u32", 5, 3, "4", 5)
    a.op2("v_lshrrev_b32", 6, "1", 0)
    a.op2("v_and_b32", 6, "7", 6)
    a.op1("v_mov_b32", 4, "0x80")
    for c in range(8):
        a.cmp("v_cmp_eq_u32", "vcc", str(c), 6)
        a.cndmask(192 + c, 4, 5, "vcc")
    for r in range(4):
        a.op1("v_mov_b32", 12 + r, "0")
    dsw(12, 4, 4, L_G)
    a.op2("v_and_b32", 5, "15", 0)
    a.op2("v_lshrrev_b32", 5, "2", 5)
    a.op3("v_lshl_add_u32", 5, 3, "2", 5)
    a.op2("v_lshlrev_b32", 5, "12", 5)
    a.op2("v_and_b32", 6, "3", 0)
    a.op3("v_lshl_add_u32", 200, 6, "4", 5)
    a.raw("s_lshl_b32 s12, s3, 16")
    a.raw(f"s_lshl_b32 s6, s{S_PHI}, 6")
    a.raw("s_add_u32 s12, s12, s6")
    a.raw(f"s_add_u32 s12, s12, {FB}")
    a.op2("v_lshlrev_b32", 6, "2", 0)
    a.raw("s_waitcnt vmcnt(0)")
    stamp(1)
    perm4(W1R, W1P)
    perm8(W2R, W2P)
    unpack(12, 10, 2)
    a.raw("s_cmp_lg_u32 s3, 0")
    a.raw("s_cbranch_scc1 L_f_nf")
    poll_flags(6, 0, "0xff", 5, sleep=16)
    a.label("L_f_nf")
    a.raw("s_barrier")
    stamp(3)
    poll_masked([(C + 4 * k, 8, f"s{8 + k}", 0) for k in range(4)], 4, sleep=opts.get("sleep_a", 2))
    stamp(5)
    pk("v_pk_add_f32", C, C, C + 4)
    pk("v_pk_add_f32", C + 2, C + 2, C + 6)
    pk("v_pk_add_f32", C + 8, C + 8, C + 12)
    pk("v_pk_add_f32", C + 10, C + 10, C + 14)
    pk("v_pk_add_f32", C, C, C + 8)
    pk("v_pk_add_f32", C + 2, C + 2, C + 10)
    a.allreduce("v_add_f32", [C + r for r in range(4)], ["x32"], [C + 4 + r for r in range(4)])
    a.op2e("v_cvt_pk_bf16_f32", C + 4, C, C + 1)
    a.op2e("v_cvt_pk_bf16_f32", C + 5, C + 2, C + 3)
    unpack(C, C + 4, 2)
    pk("v_pk_add_f32", C, C, 12)
    pk("v_pk_add_f32", C + 2, C + 2, 14)
    a.op2e("v_cvt_pk_bf16_f32", C + 4, C, C + 1)
    a.op2e("v_cvt_pk_bf16_f32", C + 5, C + 2, C + 3)
    a.raw("s_mov_b32 exec_hi, 0")
    dsw(C + 4, 2, 9, L_H)
    a.raw("s_mov_b64 exec, -1")
    a.raw("s_waitcnt lgkmcnt(0)")
    a.raw("s_barrier")
    for s in range(2):
        dsr(XS + 4 * s, 4, 120, L_H + 512 * s)
    dsr(XA, 2, 121, L_H)
    a.raw("s_waitcnt lgkmcnt(0)")
    ln_norm4(XS, XA, 64, 80)
    n32_core(XA, W1P, 64, 80, 122)
    a.raw("s_waitcnt lgkmcnt(0)")
    a.raw("s_barrier")
    a.raw("s_cmp_ge_u32 s3, 4")
    a.raw("s_cbranch_scc1 L_exit")
    n32_final(7, 80)
    round_bf16(80, 80)
    a.op2("v_mul_f32", 81, "0xbfb8aa3b", 80)
    a.op1("v_exp_f32", 81, 81, kind="trans")
    a.op2("v_add_f32", 81, "1.0", 81)
    a.op1("v_rcp_f32", 81, 81, kind="trans")
    a.op2("v_mul_f32", 80, 80, 81)
    a.op2e("v_cvt_pk_bf16_f32", 80, 80, 80)
    dsw(80, 1, 119, L_G, op="ds_write_b16")
    a.raw("s_waitcnt lgkmcnt(0)")
    stamp(4)
    for c in range(8):
        dsr(84 + 4 * c, 4, 192 + c, L_G)
    for c in range(8):
        a.raw(f"s_waitcnt lgkmcnt({7 - c})")
        a.mfma16(64, 84 + 4 * c, W2P + 4 * c, None if c == 0 else 64)
    for r in range(4):
        a.op2("v_min_u32", 64 + r, "-2", 64 + r)
    bstore(64, 4, 200, R_WS, soff="s12", flags="sc1")
    stamp(6)
    a.label("L_exit")
    dump_stamps()
    a.label("L_end")
    a.raw("s_endpgm")

    if opts.get("order", 0) == 1:
        L, m = a.lines, marks
        pro, t0, a0, rest = L[:m["tail0"]], L[m["tail0"]:m["att0"]], L[m["att0"]:m["tail1"]], L[m["tail1"]:]
        pro[-1] = "    s_cbranch_scc1 L_tail0"
        a.lines = pro + a0 + ["L_tail0:"] + t0 + rest

    hdr = open(f"cdna_kernels/{NAME}.s.ref").read().split("; Override launch")[0]
    out = hdr
    out += "; Override launch geometry by editing the next line (default: block=256,\n"
    out += "; grid=ceil(out_elems/256), lds=0). Harness parses it; keep it on one line.\n"
    out += f"; @launch grid=(256,1,1) block=(512,1,1) lds={LDS_BYTES}\n"
    out += '.amdgcn_target "amdgcn-amd-amdhsa--gfx950"\n.text\n'
    out += f".globl {NAME}_kernel\n.p2align 8\n.type {NAME}_kernel,@function\n{NAME}_kernel:\n"
    out += a.text()
    out += '.section .rodata,"a"\n.p2align 6\n'
    out += f".amdhsa_kernel {NAME}_kernel\n"
    out += "  .amdhsa_next_free_vgpr 208\n  .amdhsa_next_free_sgpr 102\n  .amdhsa_accum_offset 208\n"
    out += "  .amdhsa_group_segment_fixed_size 0\n  .amdhsa_kernarg_size 88\n  .amdhsa_user_sgpr_count 2\n"
    out += "  .amdhsa_user_sgpr_kernarg_segment_ptr 1\n  .amdhsa_system_sgpr_workgroup_id_x 1\n"
    out += "  .amdhsa_float_denorm_mode_32 3\n"
    out += ".end_amdhsa_kernel\n"
    return out


if __name__ == "__main__":
    debug = "--debug" in sys.argv
    path = [x for x in sys.argv[1:] if not x.startswith("--")]
    path = path[0] if path else f"cdna_kernels/{NAME}.s"
    opts = {}
    for x in sys.argv[1:]:
        if x.startswith("--opt="):
            k, v = x[6:].split(":")
            opts[k] = int(v) if v.lstrip("-").isdigit() else v
    open(path, "w").write(gen(debug, opts))
    print("wrote", path)
```

```python
import sys
from asmlib import Asm, vr, sr

NAME = "sequential_preLN__sliding_block_cached__dense_activation_silu__decode"

QB = 0
OB = 64 * 1024
AB = 384 * 1024
FB = 416 * 1024
OX = 704 * 1024
WS_BYTES = 1 << 20
TS_BASE = WS_BYTES
WS_SIZE_DBG = WS_BYTES + 256 * 8 * 128

L_Q = 0
L_ST = 1024
L_K = 2048
L_ON = 0
L_H = 2048
L_G = 4096
L_P3 = 4352
LDS_BYTES = 2048 + 65536

LOG2E = "0x3fb8aa3b"
SCALE = "0x3db504f3"
INV512 = "0x3b000000"
EPS = "0x3727c5ac"
POLL_MAX = 1 << 15

S_WG, S_WAVE, S_G, S_IDX = 2, 3, 4, 5
P_X, P_K, P_V, P_WQ, P_WO, P_W1, P_W2, P_OUT, P_DBG, P_WS = 16, 18, 20, 22, 24, 28, 30, 32, 34, 36
S_CNT = 38
S_PHI = 39
R_WS, R_A, R_B, R_C, R_D = 40, 44, 48, 52, 56
S_SELLO, S_SELHI = 60, 61
S_PM = 64
S_MASK = 80
S_TS = 88


def gen(debug=False, opts=None):
    opts = opts or {}
    SF = opts.get("stream_flags", "nt")
    a = Asm()
    marks = {}

    def mark(name):
        marks[name] = len(a.lines)

    def stamp(k):
        if debug:
            a.raw(f"s_memrealtime {sr(S_TS + 2 * k, 2)}")

    def dump_stamps():
        if not debug:
            return
        a.raw("s_waitcnt vmcnt(0) lgkmcnt(0)")
        a.raw("s_mov_b64 exec, 1")
        a.raw(f"s_lshl_b32 s6, s{S_WG}, 3")
        a.raw(f"s_add_u32 s6, s6, s{S_WAVE}")
        a.raw("s_lshl_b32 s6, s6, 7")
        a.raw(f"s_add_u32 s6, s6, {TS_BASE}")
        a.op1("v_mov_b32", 1, "s6")
        for k in range(7):
            a.op1("v_mov_b32", 2, f"s{S_TS + 2 * k}")
            a.op1("v_mov_b32", 3, f"s{S_TS + 2 * k + 1}")
            a.mem(f"buffer_store_dwordx2 v[2:3], v1, {sr(R_WS, 4)}, 0 offen offset:{8 * k}", src=[1, 2, 3])
            a.nop(2)

    def srd(dst, ptr, size):
        a.raw(f"s_mov_b32 s{dst}, s{ptr}")
        a.raw(f"s_and_b32 s{dst + 1}, s{ptr + 1}, 0xffff")
        a.raw(f"s_mov_b32 s{dst + 2}, {size}")
        a.raw(f"s_mov_b32 s{dst + 3}, 0x20000")

    def srd_ws():
        srd(R_WS, P_WS, WS_SIZE_DBG if debug else WS_BYTES)

    def bload(d, n, off, srdb, soff="0", imm=0, flags=""):
        op = {1: "buffer_load_dword", 2: "buffer_load_dwordx2", 4: "buffer_load_dwordx4"}[n]
        t = f"{op} {vr(d, n)}, v{off}, {sr(srdb, 4)}, {soff} offen"
        if imm:
            t += f" offset:{imm}"
        if flags:
            t += " " + flags
        a.mem(t, src=[off], dst=list(range(d, d + n)))

    def bstore(s, n, off, srdb, soff="0", imm=0, flags="", op=None):
        op = op or {1: "buffer_store_dword", 2: "buffer_store_dwordx2", 4: "buffer_store_dwordx4"}[n]
        t = f"{op} {vr(s, n)}, v{off}, {sr(srdb, 4)}, {soff} offen"
        if imm:
            t += f" offset:{imm}"
        if flags:
            t += " " + flags
        regs = list(range(s, s + n))
        a.mem(t, src=[off] + regs, wide_store=regs if n == 4 else ())

    def dsr(d, n, addr, off):
        op = {1: "ds_read_b32", 2: "ds_read_b64", 4: "ds_read_b128"}[n]
        a.mem(f"{op} {vr(d, n)}, v{addr} offset:{off}", src=[addr], dst=list(range(d, d + n)))

    def dsw(s, n, addr, off, op=None):
        op = op or {1: "ds_write_b32", 2: "ds_write_b64", 4: "ds_write_b128"}[n]
        a.mem(f"{op} v{addr}, {vr(s, n)} offset:{off}", src=[addr] + list(range(s, s + n)))

    def poll_flags(voff, imm, lanes, tmp, pre_loaded=False, sleep=4):
        lp, dn, ck = a.newlabel("fp"), a.newlabel("fd"), a.newlabel("fc")
        a.raw(f"s_mov_b32 s{S_CNT}, {POLL_MAX}")
        a.raw(f"s_mov_b64 exec, {lanes}")
        if pre_loaded:
            a.raw(f"s_branch {ck}")
        a.label(lp)
        bload(tmp, 1, voff, R_C, imm=imm, flags="sc1")
        a.raw("s_waitcnt vmcnt(0)")
        a.label(ck)
        a.valu(f"v_cmp_ne_u32_e32 vcc, 1, v{tmp}", src=[tmp], sdst=["vcc"])
        a.raw(f"s_cbranch_vccz {dn}")
        a.raw(f"s_sleep {sleep}")
        a.raw(f"s_sub_u32 s{S_CNT}, s{S_CNT}, 1")
        a.raw(f"s_cmp_eq_u32 s{S_CNT}, 0")
        a.raw(f"s_cbranch_scc0 {lp}")
        a.label(dn)
        a.raw("s_mov_b64 exec, -1")

    def poll_masked(loads, tmp, sleep=2, width=4, last_hi=None, alt=None):
        n = len(loads)
        lp, dn = a.newlabel("pl"), a.newlabel("pd")
        a.raw(f"s_mov_b32 s{S_CNT}, {POLL_MAX}")
        for k, (d, vo, so, im) in enumerate(loads):
            if last_hi is not None and k == n - 1:
                a.raw(f"s_mov_b32 exec_hi, {last_hi}")
            bload(d, width, vo, R_WS, soff=so, imm=im, flags="sc1")
        if last_hi is not None:
            a.raw("s_mov_b64 exec, -1")
        a.label(lp)
        a.raw("s_waitcnt vmcnt(0)")
        for k, (d, vo, so, im) in enumerate(loads):
            t = tmp + (k & 1)
            if width == 4:
                a.op3("v_max3_u32", t, d, d + 1, d + 2)
                a.op2("v_max_u32", t, t, d + 3)
            else:
                t = d
            a.cmp("v_cmp_eq_u32", sr(S_PM + 2 * k, 2), "-1", t)
        a.nop(1)
        if n == 1:
            a.raw(f"s_cmp_eq_u64 {sr(S_PM, 2)}, 0")
        else:
            a.raw(f"s_or_b64 s[6:7], {sr(S_PM, 2)}, {sr(S_PM + 2, 2)}")
            for k in range(2, n):
                a.raw(f"s_or_b64 s[6:7], s[6:7], {sr(S_PM + 2 * k, 2)}")
            a.raw("s_cmp_eq_u64 s[6:7], 0")
        a.raw(f"s_cbranch_scc1 {dn}")
        if sleep:
            a.raw(f"s_sleep {sleep}")
        if alt is not None:
            a.raw(f"s_and_b32 s6, s{S_CNT}, {opts.get('altm', 3)}")
            a.raw("s_cmp_eq_u32 s6, 1")
            a.raw(f"s_cselect_b32 s7, {alt}, 0")
            a.raw("s_cmp_eq_u32 s6, 0")
            a.raw(f"s_cselect_b32 s7, {-alt & 0xffffffff:#x}, s7")
            a.raw(f"s_cmp_eq_u32 s{S_CNT}, {POLL_MAX}")
            a.raw("s_cselect_b32 s7, 0, s7")
            for so_ in dict.fromkeys(l[2] for l in loads):
                a.raw(f"s_add_u32 {so_}, {so_}, s7")
        for k, (d, vo, so, im) in enumerate(loads):
            sk = a.newlabel("sk")
            a.raw(f"s_mov_b64 exec, {sr(S_PM + 2 * k, 2)}")
            a.raw(f"s_cbranch_execz {sk}")
            bload(d, width, vo, R_WS, soff=so, imm=im, flags="sc1")
            a.label(sk)
        a.raw("s_mov_b64 exec, -1")
        a.raw(f"s_sub_u32 s{S_CNT}, s{S_CNT}, 1")
        a.raw(f"s_cmp_eq_u32 s{S_CNT}, 0")
        a.raw(f"s_cbranch_scc0 {lp}")
        a.raw("s_waitcnt vmcnt(0)")
        a.label(dn)

    def perm8(raw, out, xs=(0, 1, 2, 3)):
        for x in xs:
            for j in range(4):
                lo, hi = raw + (2 * x) * 4 + j, raw + (2 * x + 1) * 4 + j
                a.op3("v_perm_b32", out + (2 * j) * 4 + x, hi, lo, f"s{S_SELLO}")
                a.op3("v_perm_b32", out + (2 * j + 1) * 4 + x, hi, lo, f"s{S_SELHI}")

    def perm4(raw, out):
        for j in range(4):
            for x in range(2):
                lo, hi = raw + (2 * x) * 4 + j, raw + (2 * x + 1) * 4 + j
                a.op3("v_perm_b32", out + (2 * j) * 2 + x, hi, lo, f"s{S_SELLO}")
                a.op3("v_perm_b32", out + (2 * j + 1) * 2 + x, hi, lo, f"s{S_SELHI}")

    def round_bf16(d, s):
        a.op2e("v_cvt_pk_bf16_f32", d, s, s)
        a.op2("v_lshlrev_b32", d, "16", d)

    def unpack(V, R, n):
        for d in range(n):
            a.op2("v_lshlrev_b32", V + 2 * d, "16", R + d)
            a.op2("v_and_b32", V + 2 * d + 1, "0xffff0000", R + d)

    LN_STEPS = ["quad_perm:[1,0,3,2]", "quad_perm:[2,3,0,1]", "row_ror:8", "x16", "x32"]

    def pk(op, d, x, y, z=None):
        regs = [x, x + 1, y, y + 1] + ([z, z + 1] if z is not None else [])
        t = f"{op} {vr(d, 2)}, {vr(x, 2)}, {vr(y, 2)}" + (f", {vr(z, 2)}" if z is not None else "")
        a.valu(t, dst=[d, d + 1], src=regs)

    def ln_norm4(R, XA, V, T, nA=2, steps=None):
        S, Q, MN, t0, M, RC = T, T + 2, T + 4, T + 6, T + 8, T + 9
        unpack(V, R, 8)
        pk("v_pk_add_f32", S, V, V + 2)
        pk("v_pk_add_f32", Q, V + 4, V + 6)
        pk("v_pk_add_f32", S, S, V + 8)
        pk("v_pk_add_f32", Q, Q, V + 10)
        pk("v_pk_add_f32", S, S, V + 12)
        pk("v_pk_add_f32", Q, Q, V + 14)
        pk("v_pk_add_f32", S, S, Q)
        a.op2("v_add_f32", S, S, S + 1)
        a.allreduce("v_add_f32", [S], steps or LN_STEPS, [t0])
        a.op2("v_mul_f32", MN, "0xbb000000", S)
        a.op1("v_mov_b32", MN + 1, MN)
        for i in range(0, 16, 2):
            pk("v_pk_add_f32", V + i, V + i, MN)
        pk("v_pk_mul_f32", Q, V, V)
        pk("v_pk_mul_f32", S, V + 2, V + 2)
        for i in range(4, 16, 4):
            pk("v_pk_fma_f32", Q, V + i, V + i, Q)
            pk("v_pk_fma_f32", S, V + i + 2, V + i + 2, S)
        pk("v_pk_add_f32", Q, Q, S)
        a.op2("v_add_f32", Q, Q, Q + 1)
        a.allreduce("v_add_f32", [Q], steps or LN_STEPS, [t0])
        round_bf16(M, MN)
        unpack(V, XA, nA)
        a.op2("v_mul_f32", Q, INV512, Q)
        round_bf16(Q, Q)
        a.op2("v_add_f32", Q, EPS, Q)
        round_bf16(Q, Q)
        a.op1("v_sqrt_f32", Q, Q, kind="trans")
        for i in range(2 * nA):
            a.op2("v_add_f32", V + i, V + i, M)
        round_bf16(Q, Q)
        a.op1("v_rcp_f32", RC, Q, kind="trans")
        for d in range(nA):
            a.op2e("v_cvt_pk_bf16_f32", XA + d, V + 2 * d, V + 2 * d + 1)
        unpack(V, XA, nA)
        for i in range(2 * nA):
            a.op2("v_mul_f32", V + i, V + i, RC)
        for d in range(nA):
            a.op2e("v_cvt_pk_bf16_f32", XA + d, V + 2 * d, V + 2 * d + 1)

    def n32_masks(t):
        a.op2("v_lshrrev_b32", t, "2", 0)
        a.op2("v_and_b32", t, "3", t)
        for r in (1, 2, 3):
            a.cmp("v_cmp_eq_u32", sr(S_MASK + 2 * (r - 1), 2), str(r), t)
        a.op2("v_and_b32", t, "8", 0)
        a.cmp("v_cmp_ne_u32", sr(S_MASK + 6, 2), "0", t)

    def n32_core(PA, WP, ACC, T, P3ADDR):
        for x in range(2):
            a.cndmask(T + x, PA + x, "0", sr(S_MASK + 6, 2))
            a.cndmask(T + 2 + x, "0", PA + x, sr(S_MASK + 6, 2))
        for cc in range(2):
            for t in range(4):
                a.mfma16k16(ACC + 4 * t, T + 2 * cc, WP + 2 * (2 * t + cc), None if cc == 0 else ACC + 4 * t)
        for t in range(4):
            a.cndmask(T + 4 + t, ACC + 4 * t, ACC + 4 * t + 1, sr(S_MASK, 2))
            a.cndmask(T + 4 + t, T + 4 + t, ACC + 4 * t + 2, sr(S_MASK + 2, 2))
            a.cndmask(T + 4 + t, T + 4 + t, ACC + 4 * t + 3, sr(S_MASK + 4, 2))
        a.allreduce("v_add_f32", [T + 4 + t for t in range(4)], ["row_ror:4", "row_ror:8"], [])
        a.raw("s_mov_b32 exec_lo, 0x000f000f")
        a.raw("s_mov_b32 exec_hi, 0x000f000f")
        dsw(T + 4, 4, P3ADDR, L_P3)
        a.raw("s_mov_b64 exec, -1")

    def n32_final(L16, T):
        dsr(T, 4, L16, L_P3)
        dsr(T + 4, 4, L16, L_P3 + 1024)
        a.raw("s_waitcnt lgkmcnt(0)")
        for t in range(4):
            a.op2("v_add_f32", T + t, T + t, T + 4 + t)
        a.swap32(T, T + 1)
        a.swap32(T + 2, T + 3)
        a.op2("v_add_f32", T, T, T + 1)
        a.op2("v_add_f32", T + 2, T + 2, T + 3)
        a.swap16(T, T + 2)
        a.op2("v_add_f32", T, T, T + 2)

    def n32_out_addr(d, t):
        a.op2("v_and_b32", d, "3", 0)
        a.op2("v_lshlrev_b32", d, "4", d)
        a.op2("v_and_b32", t, "4", 0)
        a.op3("v_lshl_add_u32", d, t, "4", d)
        a.op2("v_and_b32", t, "8", 0)
        a.op2("v_lshrrev_b32", t, "2", t)
        a.op2("v_add_u32", d, d, t)
        a.op2("v_and_b32", t, "16", 0)
        a.op2("v_lshrrev_b32", t, "1", t)
        a.op2("v_add_u32", d, d, t)
        a.op2("v_and_b32", t, "32", 0)
        a.op2("v_lshrrev_b32", t, "3", t)
        a.op2("v_add_u32", d, d, t)

    a.raw("s_cmp_ge_u32 s2, 256")
    a.raw("s_cbranch_scc1 L_end")
    a.raw("s_load_dwordx16 s[16:31], s[0:1], 0")
    a.raw("s_load_dwordx4 s[32:35], s[0:1], 64")
    a.raw("s_load_dwordx2 s[36:37], s[0:1], 80")
    stamp(0)
    a.op2("v_lshrrev_b32", 1, "6", 0)
    a.op2("v_and_b32", 0, "63", 0)
    a.op2("v_lshrrev_b32", 3, "4", 0)
    a.valu("v_readfirstlane_b32 s3, v1", src=[1], sdst=["s3"])
    a.raw("s_and_b32 s4, s2, 7")
    a.raw("s_lshr_b32 s5, s2, 4")
    a.op2("v_lshlrev_b32", 7, "4", 0)
    a.raw("s_bitcmp1_b32 s2, 3")
    a.raw("s_cbranch_scc0 L_att")

    mark("tail0")
    XS, XA = 8, 16
    WR1, WP1 = 24, 56
    a.raw("s_lshl_b32 s14, s4, 4")
    a.raw("s_add_u32 s14, s14, s5")
    a.raw("s_cmp_ge_u32 s3, 4")
    a.raw("s_cbranch_scc1 L_t_aux")
    a.op2("v_lshrrev_b32", 2, "3", 0)
    a.op2("v_lshlrev_b32", 2, "16", 2)
    a.op2("v_and_b32", 4, "7", 0)
    a.op3("v_lshl_add_u32", 6, 4, "4", 2)
    a.raw("s_lshr_b32 s10, s5, 3")
    a.raw("s_and_b32 s11, s5, 7")
    a.raw("s_lshl_b32 s8, s4, 10")
    a.raw("s_lshl_b32 s9, s11, 7")
    a.raw("s_add_u32 s8, s8, s9")
    a.raw("s_lshl_b32 s9, s10, 2")
    a.raw("s_add_u32 s9, s9, s3")
    a.raw("s_lshl_b32 s9, s9, 19")
    a.raw("s_add_u32 s8, s8, s9")
    a.raw("s_waitcnt lgkmcnt(0)")
    srd(R_B, P_WQ, 512 * 8192)
    a.raw("s_barrier")
    for i in range(8):
        bload(WR1 + 4 * i, 4, 6, R_B, soff="s8", flags=SF)
        if i < 7:
            a.raw("s_add_u32 s8, s8, 8192")
    a.raw("s_branch L_tail1")
    a.label("L_t_aux")
    for r in range(4):
        a.op1("v_mov_b32", 124 + r, "-1")
    a.raw("s_waitcnt lgkmcnt(0)")
    srd_ws()
    srd(R_A, P_X, 2048)
    a.raw("s_cmp_eq_u32 s3, 4")
    a.raw("s_cbranch_scc1 L_t_x")
    a.raw("s_cmp_eq_u32 s3, 5")
    a.raw("s_cbranch_scc1 L_t_co")
    a.raw("s_cmp_eq_u32 s3, 6")
    a.raw("s_cbranch_scc1 L_t_ca")
    a.raw("s_cmp_lg_u32 s5, 0")
    a.raw("s_cbranch_scc1 L_t_auxb")
    a.raw("s_lshl_b32 s6, s4, 13")
    a.raw("s_add_u32 s7, s6, 4096")
    for k in range(8):
        bstore(124, 4, 7, R_WS, soff="s6" if k < 4 else "s7", imm=QB + (k & 3) * 1024, flags="sc1")
    a.raw("s_branch L_t_auxb")
    a.label("L_t_x")
    bload(XS, 4, 7, R_A)
    bload(XS + 4, 4, 7, R_A, imm=1024)
    a.raw("s_branch L_t_auxb")
    a.label("L_t_co")
    a.raw("s_lshl_b32 s9, s14, 11")
    a.raw(f"s_add_u32 s9, s9, {OB}")
    bstore(124, 4, 7, R_WS, soff="s9", flags="sc1")
    bstore(124, 4, 7, R_WS, soff="s9", imm=1024, flags="sc1")
    if opts.get("dual", 1):
        a.raw(f"s_add_u32 s9, s9, {OX - OB}")
        bstore(124, 4, 7, R_WS, soff="s9", flags="sc1")
        bstore(124, 4, 7, R_WS, soff="s9", imm=1024, flags="sc1")
    a.raw("s_branch L_t_auxb")
    a.label("L_t_ca")
    a.raw("s_cmp_ge_u32 s5, 8")
    a.raw("s_cbranch_scc1 L_t_auxb")
    a.raw("s_lshl_b32 s10, s4, 3")
    a.raw("s_add_u32 s10, s10, s5")
    a.raw("s_lshl_b32 s10, s10, 9")
    a.raw(f"s_add_u32 s10, s10, {AB}")
    a.raw("s_mov_b32 exec_hi, 0")
    bstore(124, 4, 7, R_WS, soff="s10", flags="sc1")
    a.raw("s_mov_b64 exec, -1")
    a.label("L_t_auxb")
    a.raw("s_barrier")
    a.raw("s_branch L_tail1")

    mark("att0")
    a.label("L_att")
    VOFF, QOFF = 5, 6
    KR, VRAW, QR, SACC, PR, PM, OACC = 16, 48, 80, 96, 104, 108, 8
    a.op2("v_and_b32", 2, "15", 0)
    a.op2("v_xor_b32", 4, 2, 3)
    a.op2("v_lshlrev_b32", 4, "4", 4)
    for q in range(4):
        a.op2("v_xor_b32", 116 + q, str(64 * q), 4)
        a.op3("v_lshl_add_u32", 112 + q, 3, "8", 116 + q)
    a.op2("v_lshlrev_b32", 4, "10", 3)
    a.op3("v_lshl_add_u32", VOFF, 2, "4", 4)
    for t in ["s_lshr_b32 s6, s5, 3", "s_and_b32 s7, s5, 7", "s_lshl_b32 s8, s6, 3", "s_add_u32 s8, s8, s4",
              "s_lshl_b32 s8, s8, 13", "s_lshl_b32 s9, s7, 8", "s_add_u32 s8, s8, s9", "s_lshl_b32 s9, s3, 5",
              "s_add_u32 s8, s8, s9", "s_add_u32 s8, s8, 6144", "s_lshl_b32 s8, s8, 8", "s_add_u32 s9, s8, 4096",
              "s_lshl_b32 s13, s3, 13", f"s_add_u32 s13, s13, {L_K}", "s_add_u32 s12, s13, 4096", "s_mov_b32 m0, s13"]:
        a.raw(t)
    a.raw("s_waitcnt lgkmcnt(0)")
    srd(R_A, P_K, 0x2000000)
    for T in range(2):
        if T:
            a.raw("s_mov_b32 m0, s12")
            a.nop(1)
        for q in range(4):
            a.mem(f"buffer_load_dwordx4 v{112 + q}, {sr(R_A, 4)}, s{8 + T} offen offset:{q * 1024} {SF} lds",
                  src=[112 + q])
    srd(R_B, P_V, 0x2000000)
    if opts.get("kbar", 1):
        a.raw("s_barrier")
    NV1 = opts.get("nv1", 6)
    srd(R_C, P_DBG, 256)
    a.raw("s_lshl_b32 s6, s4, 2")
    a.op1("v_mov_b32", 124, "s6")
    a.raw("s_cmp_lg_u32 s3, 0")
    a.raw("s_cbranch_scc1 L_a_nfs")
    a.raw("s_mov_b64 exec, 1")
    bload(125, 1, 124, R_C, imm=128, flags="sc1")
    a.raw("s_mov_b64 exec, -1")
    a.label("L_a_nfs")
    for i in range(NV1):
        bload(VRAW + i * 4, 4, VOFF, R_B, soff=f"s{8 + i // 4}", imm=(i % 4) * 256, flags=SF)
    a.raw("s_branch L_att1")

    mark("tail1")
    a.label("L_tail1")
    a.raw(f"s_mov_b32 s{S_SELLO}, 0x05040100")
    a.raw(f"s_mov_b32 s{S_SELHI}, 0x07060302")
    srd_ws()
    srd(R_A, P_X, 2048)
    srd(R_C, P_DBG, 256)
    a.raw("s_lshl_b32 s6, s4, 2")
    a.op1("v_mov_b32", 123, "s6")
    a.raw("s_cmp_lt_u32 s3, 4")
    a.raw("s_cbranch_scc1 L_t_main")
    a.raw("s_waitcnt vmcnt(0)")
    a.raw("s_cmp_lg_u32 s3, 4")
    a.raw("s_cbranch_scc1 L_t_a1")
    dsw(XS, 4, 7, L_H)
    dsw(XS + 4, 4, 7, L_H + 1024)
    a.raw("s_waitcnt lgkmcnt(0)")
    stamp(3)
    a.raw("s_barrier")
    a.raw("s_barrier")
    a.raw("s_branch L_t_np")
    a.label("L_t_a1")
    a.raw("s_lshl_b32 s6, s5, 3")
    a.raw("s_add_u32 s6, s6, s3")
    a.raw("s_cmp_lg_u32 s6, 7")
    a.raw("s_cbranch_scc1 L_t_a2")
    a.op1("v_mov_b32", 4, "1")
    a.raw("s_mov_b64 exec, 1")
    bstore(4, 1, 123, R_C, imm=128, flags="sc1")
    a.raw("s_mov_b64 exec, -1")
    a.label("L_t_a2")
    stamp(5)
    a.raw("s_barrier")
    a.raw("s_barrier")
    a.raw("s_branch L_t_np")
    a.label("L_t_main")
    a.op2("v_lshrrev_b32", 2, "2", 0)
    a.op2("v_and_b32", 5, "1", 0)
    a.op3("v_lshl_add_u32", 2, 2, "1", 5)
    a.op2("v_lshlrev_b32", 2, "4", 2)
    a.op2("v_and_b32", 6, "2", 0)
    a.op3("v_lshl_add_u32", 20, 6, "9", 2)
    a.op3("v_lshl_add_u32", 2, 3, "1", 5)
    a.raw("s_lshl_b32 s6, s10, 2")
    a.raw("s_add_u32 s6, s6, s3")
    a.raw("s_lshl_b32 s6, s6, 7")
    a.op3("v_lshl_add_u32", 21, 2, "4", "s6")
    a.op3("v_lshl_add_u32", 21, 6, "9", 21)
    a.op3("v_lshl_add_u32", 2, 3, "3", 4)
    a.raw("s_lshl_b32 s7, s3, 9")
    a.op3("v_lshl_add_u32", 22, 2, "4", "s7")
    a.op2("v_and_b32", 2, "31", 0)
    a.op2("v_lshlrev_b32", 2, "4", 2)
    a.op2("v_and_b32", 5, "32", 0)
    a.op3("v_lshl_add_u32", 23, 5, "5", 2)
    a.op2("v_lshrrev_b32", 2, "2", 0)
    a.op2("v_and_b32", 2, "3", 2)
    for c in range(4):
        a.cmp("v_cmp_eq_u32", sr(S_MASK + 2 * c, 2), str(c), 2)
    a.op2("v_and_b32", 2, "8", 0)
    a.cmp("v_cmp_ne_u32", "s[12:13]", "0", 2)
    a.raw("s_lshl_b32 s8, s14, 9")
    a.op2("v_lshlrev_b32", 6, "3", 0)
    a.raw("s_barrier")
    for s_ in range(2):
        dsr(XS + 4 * s_, 4, 20, L_H + 512 * s_)
    dsr(XA, 4, 21, L_H)
    a.raw("s_waitcnt lgkmcnt(0)")
    ln_norm4(XS, XA, 88, 104, nA=4, steps=["quad_perm:[1,0,3,2]", "row_ror:4", "row_ror:8", "x16", "x32"])
    for c in range(4):
        for x in range(4):
            a.cndmask(88 + 4 * c + x, "0", XA + x, sr(S_MASK + 2 * c, 2))
    stamp(2)
    a.raw("s_waitcnt vmcnt(4)")
    a.raw("s_cmp_lg_u32 s3, 0")
    a.raw("s_cbranch_scc1 L_t_nfs")
    a.raw("s_mov_b64 exec, 1")
    bload(5, 1, 123, R_C, imm=128, flags="sc1")
    a.raw("s_mov_b64 exec, -1")
    perm8(WR1, WP1, (0, 1))
    a.raw("s_waitcnt vmcnt(1)")
    a.raw("s_branch L_t_nfs2")
    a.label("L_t_nfs")
    perm8(WR1, WP1, (0, 1))
    a.raw("s_waitcnt vmcnt(0)")
    a.label("L_t_nfs2")
    stamp(1)
    perm8(WR1, WP1, (2, 3))
    for c in range(4):
        for t in range(2):
            a.mfma16(8 + 4 * t, 88 + 4 * c, WP1 + 4 * (2 * c + t), None if c == 0 else 8 + 4 * t)
    for b in range(2):
        for t in range(2):
            a.cndmask(16 + 2 * b + t, 8 + 4 * t + 2 * b, 8 + 4 * t + 2 * b + 1, "s[12:13]")
    a.allreduce("v_add_f32", [16, 17, 18, 19], ["row_ror:8"], [])
    a.raw("s_mov_b32 exec_lo, 0x00ff00ff")
    a.raw("s_mov_b32 exec_hi, 0x00ff00ff")
    dsw(16, 4, 22, L_P3)
    a.raw("s_mov_b64 exec, -1")
    a.raw("s_waitcnt lgkmcnt(0)")
    a.raw("s_barrier")
    stamp(4)
    a.raw("s_cmp_lg_u32 s3, 0")
    a.raw("s_cbranch_scc1 L_t_np")
    dsr(8, 4, 23, L_P3)
    dsr(12, 4, 23, L_P3 + 512)
    a.raw("s_waitcnt lgkmcnt(0)")
    for r in range(4):
        a.op2("v_add_f32", 8 + r, 8 + r, 12 + r)
    a.swap32(8, 10)
    a.swap32(9, 11)
    a.op2("v_add_f32", 8, 8, 10)
    a.op2("v_add_f32", 9, 9, 11)
    for r in range(2):
        a.op2("v_min_u32", 8 + r, "-2", 8 + r)
    a.raw("s_waitcnt vmcnt(0)")
    poll_flags(123, 128, "1", 5, pre_loaded=True)
    bstore(8, 2, 6, R_WS, soff="s8", imm=QB, flags="sc1")
    stamp(2)
    a.label("L_t_np")
    a.raw("s_barrier")
    a.raw("s_cmp_lt_u32 s5, 8")
    a.raw("s_cbranch_scc1 L_s3")
    a.raw("s_cmp_lt_u32 s5, 15")
    a.raw("s_cbranch_scc1 L_ffn")
    a.raw("s_cmp_eq_u32 s3, 1")
    a.raw("s_cbranch_scc1 L_touch")
    a.raw("s_cmp_lg_u32 s3, 0")
    a.raw("s_cbranch_scc1 L_exit")
    a.raw("s_lshl_b32 s8, s4, 13")
    a.raw("s_add_u32 s9, s8, 4096")
    a.op2("v_and_b32", 2, "15", 0)
    a.op2("v_lshlrev_b32", 2, "4", 2)
    a.op3("v_lshl_add_u32", 2, 3, "9", 2)
    poll_masked([(8 + 4 * k, 2, "s8" if k < 2 else "s9", QB + (k & 1) * 2048) for k in range(4)], 24, sleep=2)
    a.op1("v_mov_b32", 4, "1")
    a.raw("s_mov_b64 exec, 1")
    bstore(4, 1, 123, R_C, flags="sc1")
    a.raw("s_mov_b64 exec, -1")
    stamp(3)
    a.raw("s_branch L_exit")
    a.label("L_touch")
    a.raw("s_getpc_b64 s[6:7]")
    a.label("L_pc")
    a.raw(f"s_sub_u32 s6, s6, L_pc - {NAME}_kernel")
    a.raw("s_subb_u32 s7, s7, 0")
    for k in range(opts.get("code_kb", 10)):
        if k % 4 == 0 and k:
            a.op2("v_add_u32", 7, "4096", 7)
        a.mem(f"global_load_dwordx4 v[12:15], v7, s[6:7] offset:{(k % 4) * 1024}", src=[7], dst=[12, 13, 14, 15])
    a.raw("s_branch L_exit")

    a.label("L_att1")
    a.raw(f"s_mov_b32 s{S_SELLO}, 0x05040100")
    a.raw(f"s_mov_b32 s{S_SELHI}, 0x07060302")
    srd_ws()
    srd(R_A, P_X, 2048)
    srd(R_D, P_OUT, 2048)
    a.raw("s_lshl_b32 s14, s5, 3")
    a.raw("s_add_u32 s14, s14, s4")
    a.raw("s_lshl_b32 s15, s14, 12")
    a.raw(f"s_add_u32 s15, s15, {FB}")
    a.raw("s_lshl_b32 s12, s4, 13")
    a.raw("s_lshr_b32 s7, s5, 3")
    a.raw("s_lshl_b32 s7, s7, 8")
    a.raw("s_add_u32 s12, s12, s7")
    a.op2("v_lshlrev_b32", 126, "4", 2)
    a.op3("v_lshl_add_u32", 144, 3, "9", 126)
    a.op2("v_lshlrev_b32", 145, "7", 3)
    a.op2("v_and_b32", 126, "3", 0)
    a.op3("v_lshl_add_u32", 145, 126, "5", 145)
    a.op2("v_and_b32", 126, "12", 0)
    a.op2("v_add_u32", 145, 145, 126)
    for q in range(4):
        a.op3("v_lshl_add_u32", 116 + q, 2, "8", 116 + q)
        a.op2("v_add_u32", 116 + q, "s13", 116 + q)
    a.op2("v_and_b32", 2, "3", 0)
    a.op2("v_lshlrev_b32", 2, "8", 2)
    a.op3("v_lshl_add_u32", QOFF, 3, "4", 2)
    a.op2("v_lshrrev_b32", 2, "2", 0)
    a.op2("v_and_b32", 2, "3", 2)
    for c in range(4):
        a.cmp("v_cmp_eq_u32", sr(S_MASK + 2 * c, 2), str(c), 2)
    VOP = 160
    a.raw(f"s_mov_b32 s10, {SCALE}")
    a.raw(f"s_mov_b32 s11, {SCALE}")
    a.raw(f"s_mov_b32 s62, {LOG2E}")
    a.raw(f"s_mov_b32 s63, {LOG2E}")
    a.raw("s_add_u32 s39, s12, 4096")
    for r in range(4):
        a.op1("v_mov_b32", 12 + r, "-1")
    a.raw("s_lshl_b32 s6, s3, 3")
    a.op2("v_lshlrev_b32", 146, "6", 0)
    a.op2("v_add_u32", 146, "s6", 146)
    a.raw("s_lshl_b32 s6, s3, 13")
    a.op2("v_add_u32", 147, "s6", 7)
    a.op2("v_and_b32", 148, "3", 0)
    a.op2("v_lshlrev_b32", 148, "8", 148)
    a.op2("v_and_b32", 126, "12", 0)
    a.op3("v_lshl_add_u32", 148, 126, "4", 148)
    a.op2("v_and_b32", 126, "16", 0)
    a.op3("v_lshl_add_u32", 148, 126, "6", 148)
    a.op2("v_lshrrev_b32", 126, "5", 0)
    a.raw("s_lshl_b32 s6, s3, 1")
    a.op2("v_add_u32", 126, "s6", 126)
    a.op3("v_lshl_add_u32", 148, 126, "4", 148)
    a.op2("v_lshlrev_b32", 149, "6", 126)
    a.raw("s_lshl_b32 s6, s4, 4")
    a.raw("s_add_u32 s6, s6, s5")
    a.raw("s_lshl_b32 s6, s6, 1")
    a.raw("s_add_u32 s6, s6, s3")
    a.raw("s_lshl_b32 s6, s6, 10")
    a.raw(f"s_add_u32 s13, s6, {OB}")
    for r in range(4):
        a.raw(f"s_mov_b32 s{16 + r}, {0x07060500 + r:#x}")
    q1 = [(128 + 4 * k, 144, "s12" if k < 2 else "s39", QB + (k & 1) * 2048) for k in range(4)]
    q2 = [(192 + 4 * k, 144, "s12" if k < 2 else "s39", QB + (k & 1) * 2048) for k in range(4)]

    def q_check(base, lab):
        a.op3("v_max3_u32", 126, base, base + 1, base + 2)
        for r in range(base + 3, base + 15, 2):
            a.op3("v_max3_u32", 126, 126, r, r + 1)
        a.op2("v_max_u32", 126, 126, base + 15)
        a.valu("v_cmp_eq_u32_e32 vcc, -1, v126", src=[126], sdst=["vcc"])
        a.raw(f"s_cbranch_vccz {lab}")

    def q_fin(base):
        for k in range(2):
            pk("v_pk_add_f32", base + 4 * k, base + 4 * k, base + 8 + 4 * k)
            pk("v_pk_add_f32", base + 2 + 4 * k, base + 2 + 4 * k, base + 10 + 4 * k)
        for k in range(2):
            for x in range(2):
                a.op2e("v_cvt_pk_bf16_f32", base + 8 + 2 * k + x, base + 4 * k + 2 * x, base + 4 * k + 2 * x + 1)
        for k in range(2):
            for x in range(2):
                dsw(base + 8 + 2 * k + x, 1, 145, L_Q + 512 * k + 16 * x)

    def vload(i):
        bload(VRAW + i * 4, 4, VOFF, R_B, soff=f"s{8 + i // 4}", imm=(i % 4) * 256, flags=SF)

    NV2 = opts.get("nv2", 6)
    a.raw(f"s_waitcnt vmcnt({NV1})")
    stamp(1)
    a.raw("s_barrier")
    a.raw("s_cmp_lg_u32 s3, 0")
    a.raw("s_cbranch_scc1 L_a_nq")
    poll_flags(124, 128, "1", 125, pre_loaded=True)
    for (d, vo, so, im) in q1:
        bload(d, 4, vo, R_WS, soff=so, imm=im, flags="sc1")
    a.label("L_a_nq")
    for T in range(2):
        for s in range(4):
            dsr(KR + T * 16 + s * 4, 4, 116 + s, T * 4096)
    a.raw("s_barrier")
    for i in range(NV1, NV2):
        vload(i)
    if NV2 > NV1:
        a.raw("s_barrier")
        a.raw("s_cmp_lg_u32 s3, 0")
        a.raw("s_cbranch_scc1 L_a_nq1")
        for (d, vo, so, im) in q2:
            bload(d, 4, vo, R_WS, soff=so, imm=im, flags="sc1")
        a.label("L_a_nq1")
        a.raw("s_barrier")
    for i in range(NV2, 8):
        vload(i)
    a.raw("s_cmp_eq_u32 s3, 0")
    a.raw("s_cbranch_scc1 L_a_q")
    a.raw("s_cmp_lg_u32 s3, 1")
    a.raw("s_cbranch_scc1 L_a_nc")
    a.raw("s_cmp_ge_u32 s5, 8")
    a.raw("s_cbranch_scc1 L_a_nc")
    a.raw(f"s_waitcnt vmcnt({8 - NV1})")
    for k in range(4):
        bstore(12, 4, 7, R_WS, soff="s15", imm=k * 1024, flags="sc1")
    perm8(VRAW, VOP, tuple(range(NV1 // 2)))
    a.raw("s_branch L_a_nq2")
    a.label("L_a_nc")
    a.raw(f"s_waitcnt vmcnt({8 - NV1})")
    perm8(VRAW, VOP, tuple(range(NV1 // 2)))
    a.raw("s_branch L_a_nq2")
    a.label("L_a_q")
    nq2 = 4 if NV2 > NV1 else 0
    a.raw(f"s_waitcnt vmcnt({8 - NV1 + nq2})")
    q_check(128, "L_a_q1ok")
    if nq2:
        a.raw(f"s_waitcnt vmcnt({8 - NV2})")
        q_check(192, "L_a_q2ok")
    poll_masked(q1, 126, sleep=1)
    a.label("L_a_q1ok")
    q_fin(128)
    a.raw("s_branch L_a_q3")
    a.label("L_a_q2ok")
    q_fin(192)
    a.label("L_a_q3")
    a.raw("s_waitcnt lgkmcnt(0)")
    a.raw("s_barrier")
    for s in range(4):
        dsr(QR + 4 * s, 4, QOFF, L_Q + 64 * s)
    perm8(VRAW, VOP, tuple(range(NV1 // 2)))
    a.raw("s_branch L_a_qk")
    a.label("L_a_nq2")
    a.raw("s_waitcnt lgkmcnt(0)")
    a.raw("s_barrier")
    for s in range(4):
        dsr(QR + 4 * s, 4, QOFF, L_Q + 64 * s)
    a.label("L_a_qk")
    stamp(2)
    a.raw("s_waitcnt lgkmcnt(0)")
    for s in range(4):
        for T in range(2):
            a.mfma16(SACC + 4 * T, KR + T * 16 + s * 4, QR + 4 * s, None if s == 0 else SACC + 4 * T)
    SV = QR
    PK = QR + 8
    for d in range(4):
        a.op2e("v_cvt_pk_bf16_f32", PK + d, SACC + 2 * d, SACC + 2 * d + 1)
    unpack(SV, PK, 4)
    for i in range(0, 8, 2):
        a.valu(f"v_pk_mul_f32 {vr(SV + i, 2)}, {vr(SV + i, 2)}, s[10:11]", dst=[SV + i, SV + i + 1], src=[SV + i, SV + i + 1])
    for d in range(4):
        a.op2e("v_cvt_pk_bf16_f32", PK + d, SV + 2 * d, SV + 2 * d + 1)
    unpack(SV, PK, 4)
    MX, LS, TT, NM = QR + 12, QR + 13, QR + 14, SACC
    a.op3("v_max3_f32", MX, SV + 0, SV + 1, SV + 2)
    a.op3("v_max3_f32", TT, SV + 3, SV + 4, SV + 5)
    a.op3("v_max3_f32", MX, MX, SV + 6, SV + 7)
    a.op2("v_max_f32", MX, MX, TT)
    a.allreduce("v_max_f32", [MX], ["x16", "x32"], [TT])
    a.op2("v_mul_f32", MX, "s62", MX)
    a.op2("v_sub_f32", NM, "0", MX)
    a.op2("v_sub_f32", NM + 1, "0", MX)
    for i in range(0, 8, 2):
        a.valu(f"v_pk_fma_f32 {vr(SV + i, 2)}, {vr(SV + i, 2)}, s[62:63], {vr(NM, 2)}",
               dst=[SV + i, SV + i + 1], src=[SV + i, SV + i + 1, NM, NM + 1])
    for i in range(8):
        a.op1("v_exp_f32", SV + i, SV + i, kind="trans")
    for d in range(4):
        a.op2e("v_cvt_pk_bf16_f32", PR + d, SV + 2 * d, SV + 2 * d + 1)
    pk("v_pk_add_f32", SV, SV, SV + 2)
    pk("v_pk_add_f32", SV + 4, SV + 4, SV + 6)
    pk("v_pk_add_f32", SV, SV, SV + 4)
    a.op2("v_add_f32", LS, SV, SV + 1)
    for c in range(4):
        for x in range(4):
            a.cndmask(PM + 4 * c + x, "0", PR + x, sr(S_MASK + 2 * c, 2))
    a.raw("s_waitcnt vmcnt(0)")
    stamp(3)
    perm8(VRAW, VOP, tuple(range(NV1 // 2, 4)))
    for c in range(4):
        for ch in range(2):
            a.mfma16(OACC + 4 * ch, VOP + 4 * (ch * 4 + c), PM + 4 * c, None if c == 0 else OACC + 4 * ch)
    a.allreduce("v_add_f32", [LS], ["x16", "x32"], [TT])
    a.raw("s_mov_b64 exec, 15")
    dsw(MX, 2, 146, L_ST)
    a.raw("s_mov_b64 exec, -1")
    for ch in range(2):
        dsw(OACC + 4 * ch, 4, 147, L_K + 1024 * ch)
    a.raw("s_waitcnt lgkmcnt(0)")
    a.raw("s_barrier")
    a.raw("s_cmp_ge_u32 s3, 2")
    a.raw("s_cbranch_scc1 L_a_fin")
    OW, STV = 16, 48
    for k in range(4):
        dsr(STV + 4 * k, 4, 149, L_ST + 16 * k)
    for w in range(8):
        dsr(OW + 4 * w, 4, 148, L_K + 8192 * w)
    a.raw("s_waitcnt lgkmcnt(8)")
    Mx, Lx, E0 = 64, 65, 66
    a.op3("v_max3_f32", Mx, STV + 0, STV + 2, STV + 4)
    a.op3("v_max3_f32", Lx, STV + 6, STV + 8, STV + 10)
    a.op3("v_max3_f32", Mx, Mx, STV + 12, STV + 14)
    a.op2("v_max_f32", Mx, Mx, Lx)
    for w in range(8):
        a.op2("v_sub_f32", E0 + 2 * w, STV + 2 * w, Mx)
    for w in range(8):
        a.op1("v_exp_f32", E0 + 2 * w, E0 + 2 * w, kind="trans")
    a.op2("v_mul_f32", Lx, E0, STV + 1)
    a.op2("v_mul_f32", 84, E0 + 2, STV + 3)
    for w in range(2, 8, 2):
        a.op2("v_fmac_f32", Lx, E0 + 2 * w, STV + 2 * w + 1)
        a.op2("v_fmac_f32", 84, E0 + 2 * w + 2, STV + 2 * w + 3)
    a.op2("v_add_f32", Lx, Lx, 84)
    a.op1("v_rcp_f32", 82, Lx, kind="trans")
    a.op1("v_log_f32", 83, Lx, kind="trans")
    a.raw("s_waitcnt lgkmcnt(0)")

    def pkb(op, d, e, x, z=None):
        t = f"{op} {vr(d, 2)}, {vr(e, 2)}, {vr(x, 2)}" + (f", {vr(z, 2)}" if z is not None else "")
        t += " op_sel_hi:[0,1,1]" if z is not None else " op_sel_hi:[0,1]"
        a.valu(t, dst=[d, d + 1], src=[e, x, x + 1] + ([z, z + 1] if z is not None else []))
    for h in range(2):
        pkb("v_pk_mul_f32", 84 + 2 * h, E0, OW + 2 * h)
        pkb("v_pk_mul_f32", 88 + 2 * h, E0 + 2, OW + 4 + 2 * h)
    for w in range(2, 8, 2):
        for h in range(2):
            pkb("v_pk_fma_f32", 84 + 2 * h, E0 + 2 * w, OW + 4 * w + 2 * h, 84 + 2 * h)
            pkb("v_pk_fma_f32", 88 + 2 * h, E0 + 2 * w + 2, OW + 4 * w + 4 + 2 * h, 88 + 2 * h)
    a.op2("v_add_f32", 83, 83, Mx)
    for h in range(2):
        pk("v_pk_add_f32", 84 + 2 * h, 84 + 2 * h, 88 + 2 * h)
    for h in range(2):
        pkb("v_pk_mul_f32", 84 + 2 * h, 82, 84 + 2 * h)
    for r in range(4):
        a.op3("v_perm_b32", 84 + r, 84 + r, 83, f"s{16 + r}")
    for r in range(4):
        a.op2("v_min_u32", 84 + r, "-2", 84 + r)
    if opts.get("dual", 1):
        a.raw(f"s_add_u32 s6, s13, {OX - OB}")
        bstore(84, 4, 7, R_WS, soff="s6")
    bstore(84, 4, 7, R_WS, soff="s13", flags="sc1")
    stamp(4)
    a.raw("s_branch L_exit")
    a.label("L_a_fin")
    a.raw("s_cmp_lg_u32 s3, 2")
    a.raw("s_cbranch_scc1 L_exit")
    a.raw("s_cmp_ge_u32 s5, 8")
    a.raw("s_cbranch_scc1 L_exit")
    a.raw("s_lshr_b32 s6, s14, 4")
    a.raw("s_lshl_b32 s6, s6, 7")
    a.raw("s_and_b32 s7, s14, 3")
    a.raw("s_lshl_b32 s7, s7, 5")
    a.raw("s_add_u32 s6, s6, s7")
    a.raw("s_bfe_u32 s7, s14, 0x20002")
    a.raw("s_lshl_b32 s7, s7, 1")
    a.raw("s_add_u32 s6, s6, s7")
    a.op2("v_and_b32", 2, "3", 0)
    a.op2("v_lshlrev_b32", 2, "3", 2)
    a.op2("v_bfe_u32" if False else "v_lshrrev_b32", 3, "3", 0)
    a.op2("v_and_b32", 3, "1", 3)
    a.op3("v_add3_u32", 2, 2, 3, "s6")
    a.op2("v_and_b32", 3, "4", 0)
    a.op2("v_lshlrev_b32", 4, "1", 2)
    a.op3("v_lshl_add_u32", 4, 3, "8", 4)
    a.mem(f"buffer_load_ushort v10, v4, {sr(R_A, 4)}, 0 offen", src=[4], dst=[10])
    a.op2("v_lshrrev_b32", 5, "6", 2)
    a.op2("v_lshlrev_b32", 5, "9", 5)
    a.op3("v_lshl_add_u32", 5, 3, "6", 5)
    a.op2("v_and_b32", 6, "6", 2)
    a.op3("v_lshl_add_u32", 5, 6, "5", 5)
    a.op2("v_and_b32", 6, "56", 2)
    a.op2("v_add_u32", 5, 5, 6)
    a.op2("v_and_b32", 6, "1", 2)
    a.op3("v_lshl_add_u32", 5, 6, "2", 5)
    a.op2("v_lshrrev_b32", 6, "4", 0)
    a.op3("v_lshl_add_u32", 5, 6, "12", 5)
    a.op2("v_lshrrev_b32", 6, "2", 0)
    a.op2("v_and_b32", 6, "3", 6)
    for r in (1, 2, 3):
        a.cmp("v_cmp_eq_u32", sr(S_MASK + 2 * (r - 1), 2), str(r), 6)
    a.op2("v_lshlrev_b32", 6, "2", 0)
    F0 = 16
    for r in range(4):
        a.op1("v_mov_b32", F0 + 12 + r, "0")
    poll_flags(6, 0, "0xff", 8)
    a.raw(f"s_mov_b32 s8, {AB}")
    a.raw(f"s_mov_b32 s9, {AB + 16384}")
    poll_masked([(12, 5, "s8", 0), (13, 5, "s9", 0)], 8, sleep=4, width=1)
    stamp(4)
    a.op2("v_add_f32", 12, 12, 13)
    a.allreduce("v_add_f32", [12], ["x16", "x32"], [13])
    round_bf16(12, 12)
    a.op2("v_lshlrev_b32", 10, "16", 10)
    a.op2("v_add_f32", 12, 12, 10)
    round_bf16(12, 12)
    poll_masked([(F0 + 4 * k, 7, "s15", k * 1024) for k in range(4)], 8, sleep=opts.get("sleep_f", 2), last_hi="0")
    stamp(5)
    for r in range(4):
        a.op2("v_add_f32", F0 + r, F0 + r, F0 + 4 + r)
        a.op2("v_add_f32", F0 + 8 + r, F0 + 8 + r, F0 + 12 + r)
    for r in range(4):
        a.op2("v_add_f32", F0 + r, F0 + r, F0 + 8 + r)
    a.allreduce("v_add_f32", [F0 + r for r in range(4)], ["row_ror:4", "row_ror:8"], [])
    for r in (1, 2, 3):
        a.cndmask(F0, F0, F0 + r, sr(S_MASK + 2 * (r - 1), 2))
    a.allreduce("v_add_f32", [F0], ["x16", "x32"], [F0 + 4])
    round_bf16(F0, F0)
    a.op2("v_add_f32", F0, F0, 12)
    a.op2e("v_cvt_pk_bf16_f32", F0, F0, F0)
    a.raw("s_mov_b64 exec, 0xffff")
    bstore(F0, 1, 4, R_D, op="buffer_store_short")
    a.raw("s_mov_b64 exec, -1")
    stamp(6)
    a.raw("s_branch L_exit")

    a.label("L_s3")
    WR3, WP3, C, T = 16, 48, 80, 96
    srd(R_D, P_WO, 4096 * 1024)
    a.op2("v_and_b32", 2, "8", 0)
    a.op3("v_lshl_add_u32", 2, 2, "3", 3)
    a.op2("v_lshlrev_b32", 2, "10", 2)
    a.op2("v_and_b32", 4, "7", 0)
    a.op3("v_lshl_add_u32", 2, 4, "4", 2)
    a.raw("s_lshl_b32 s6, s4, 2")
    a.raw("s_lshr_b32 s7, s3, 1")
    a.raw("s_add_u32 s6, s6, s7")
    a.raw("s_lshl_b32 s6, s6, 7")
    a.raw("s_and_b32 s7, s3, 1")
    a.raw("s_lshl_b32 s7, s7, 2")
    a.raw("s_add_u32 s6, s6, s7")
    a.raw("s_lshl_b32 s6, s6, 10")
    a.raw("s_lshl_b32 s7, s5, 7")
    a.raw("s_add_u32 s6, s6, s7")
    for i in range(8):
        bload(WR3 + 4 * i, 4, 2, R_D, soff="s6", flags=SF)
        if i < 7:
            a.raw("s_add_u32 s6, s6, 8192")
    a.op2("v_lshlrev_b32", 5, "11", 3)
    a.op2("v_and_b32", 6, "15", 0)
    a.op3("v_lshl_add_u32", 8, 6, "4", 5)
    a.raw("s_lshl_b32 s6, s3, 8")
    a.op3("v_lshl_add_u32", 9, 6, "3", "s6")
    a.op2("v_and_b32", 5, "32", 0)
    a.op3("v_lshl_add_u32", 9, 5, "2", 9)
    a.op2("v_and_b32", 5, "1", 3)
    a.op3("v_lshl_add_u32", 9, 5, "2", 9)
    a.op2("v_and_b32", 5, "1", 0)
    a.op3("v_lshl_add_u32", 5, 3, "1", 5)
    a.op3("v_lshl_add_u32", 10, 5, "4", "s6")
    a.op2("v_and_b32", 5, "2", 0)
    a.op3("v_lshl_add_u32", 10, 5, "6", 10)
    a.op3("v_lshl_add_u32", 5, 3, "3", 4)
    a.raw("s_lshl_b32 s7, s3, 9")
    a.op3("v_lshl_add_u32", 11, 5, "4", "s7")
    a.op2("v_and_b32", 5, "31", 0)
    a.op2("v_lshlrev_b32", 5, "4", 5)
    a.op2("v_and_b32", 6, "32", 0)
    a.op3("v_lshl_add_u32", 12, 6, "6", 5)
    a.op2("v_lshlrev_b32", 13, "3", 0)
    a.raw("s_lshl_b32 s7, s4, 15")
    a.raw("s_add_u32 s6, s6, s7")
    for k in range(4):
        a.raw(f"s_add_u32 s{8 + k}, s6, {(OX if opts.get('dual', 1) else OB) + k * 8192}")
    a.raw("s_lshl_b32 s6, s4, 3")
    a.raw("s_add_u32 s6, s6, s5")
    a.raw("s_lshl_b32 s12, s6, 9")
    a.raw(f"s_add_u32 s12, s12, {AB}")
    a.op2("v_lshrrev_b32", 5, "2", 0)
    a.op2("v_and_b32", 5, "3", 5)
    for c in range(4):
        a.cmp("v_cmp_eq_u32", sr(S_MASK + 2 * c, 2), str(c), 5)
    a.op2("v_and_b32", 5, "8", 0)
    a.cmp("v_cmp_ne_u32", "s[14:15]", "0", 5)
    a.raw("s_mov_b32 s13, 0x0c0c0400")
    a.raw("s_waitcnt vmcnt(0)")
    stamp(1)
    perm8(WR3, WP3)
    a.raw("s_cmp_lg_u32 s3, 0")
    a.raw("s_cbranch_scc1 L_s3_nf")
    poll_flags(123, 0, "1", 5, sleep=8)
    a.label("L_s3_nf")
    a.raw("s_barrier")
    stamp(3)
    poll_masked([(C + 4 * k, 8, f"s{8 + k}", 0) for k in range(4)], 5, sleep=opts.get("sleep_o", 2),
                alt=((OB - OX) & 0xffffffff) if opts.get("dual", 1) else None)
    stamp(4)
    LK = T
    for k in range(4):
        a.op3("v_perm_b32", LK + k, C + 4 * k + 1, C + 4 * k, "s13")
        a.op3("v_perm_b32", T + 4 + k, C + 4 * k + 3, C + 4 * k + 2, "s13")
    for k in range(4):
        a.op3("v_perm_b32", LK + k, T + 4 + k, LK + k, f"s{S_SELLO}")
    MM = T + 4
    for b in range(2):
        a.op2("v_max_f32", MM + b, LK + 2 * b, LK + 2 * b + 1)
    a.allreduce("v_max_f32", [MM, MM + 1], ["x16", "x32"], [T + 6, T + 7])
    for k in range(4):
        a.op2("v_sub_f32", LK + k, LK + k, MM + (k >> 1))
    for k in range(4):
        a.op1("v_exp_f32", LK + k, LK + k, kind="trans")
    AC = T + 8
    SS = T + 16
    for b in range(2):
        for r in range(4):
            a.op2("v_mul_f32", AC + 4 * b + r, LK + 2 * b, C + 8 * b + r)
    for b in range(2):
        for r in range(4):
            a.op2("v_fmac_f32", AC + 4 * b + r, LK + 2 * b + 1, C + 8 * b + 4 + r)
        a.op2("v_add_f32", SS + b, LK + 2 * b, LK + 2 * b + 1)
    a.swap32(SS, SS + 1)
    for r in range(4):
        a.swap32(AC + r, AC + 4 + r)
    a.op2("v_add_f32", SS, SS, SS + 1)
    for r in range(4):
        a.op2("v_add_f32", AC + r, AC + r, AC + 4 + r)
    a.op1("v_mov_b32", SS + 1, SS)
    a.swap16(AC, AC + 2)
    a.swap16(AC + 1, AC + 3)
    a.swap16(SS, SS + 1)
    a.op2("v_add_f32", SS, SS, SS + 1)
    a.op2("v_add_f32", AC, AC, AC + 2)
    a.op2("v_add_f32", AC + 1, AC + 1, AC + 3)
    a.op1("v_rcp_f32", SS, SS, kind="trans")
    for r in range(2):
        a.op2("v_mul_f32", AC + r, AC + r, SS)
    a.op2e("v_cvt_pk_bf16_f32", AC, AC, AC + 1)
    dsw(AC, 1, 9, L_ON)
    a.raw("s_waitcnt lgkmcnt(0)")
    dsr(T, 4, 10, L_ON)
    a.raw("s_waitcnt lgkmcnt(0)")
    AM, D0 = 16, 32
    for c in range(4):
        for x in range(4):
            a.cndmask(AM + 4 * c + x, "0", T + x, sr(S_MASK + 2 * c, 2))
        for t in range(2):
            a.mfma16(D0 + 4 * t, AM + 4 * c, WP3 + 4 * (2 * c + t), None if c == 0 else D0 + 4 * t)
    for b in range(2):
        for t in range(2):
            a.cndmask(T + 2 * b + t, D0 + 4 * t + 2 * b, D0 + 4 * t + 2 * b + 1, "s[14:15]")
    a.allreduce("v_add_f32", [T, T + 1, T + 2, T + 3], ["row_ror:8"], [])
    a.raw("s_mov_b32 exec_lo, 0x00ff00ff")
    a.raw("s_mov_b32 exec_hi, 0x00ff00ff")
    dsw(T, 4, 11, L_P3)
    a.raw("s_mov_b64 exec, -1")
    a.raw("s_waitcnt lgkmcnt(0)")
    a.raw("s_barrier")
    a.raw("s_cmp_lg_u32 s3, 2")
    a.raw("s_cbranch_scc1 L_exit")
    for w in range(4):
        dsr(T + 4 * w, 4, 12, L_P3 + 512 * w)
    a.raw("s_waitcnt lgkmcnt(0)")
    for r in range(4):
        a.op2("v_add_f32", T + r, T + r, T + 4 + r)
        a.op2("v_add_f32", T + 8 + r, T + 8 + r, T + 12 + r)
    for r in range(4):
        a.op2("v_add_f32", T + r, T + r, T + 8 + r)
    a.swap32(T, T + 2)
    a.swap32(T + 1, T + 3)
    a.op2("v_add_f32", T, T, T + 2)
    a.op2("v_add_f32", T + 1, T + 1, T + 3)
    for r in range(2):
        a.op2("v_min_u32", T + r, "-2", T + r)
    bstore(T, 2, 13, R_WS, soff="s12", flags="sc1")
    stamp(2)
    a.raw("s_branch L_exit")

    a.label("L_ffn")
    a.op2("v_lshrrev_b32", 2, "3", 0)
    a.op2("v_and_b32", 4, "3", 0)
    a.op3("v_lshl_add_u32", 2, 2, "2", 4)
    a.op2("v_lshlrev_b32", 2, "4", 2)
    a.op2("v_and_b32", 5, "4", 0)
    a.op3("v_lshl_add_u32", 120, 5, "8", 2)
    a.op3("v_lshl_add_u32", 2, 3, "2", 4)
    a.raw("s_lshl_b32 s6, s3, 7")
    a.op3("v_lshl_add_u32", 121, 2, "3", "s6")
    a.op3("v_lshl_add_u32", 121, 5, "8", 121)
    a.raw("s_lshl_b32 s6, s3, 8")
    a.op3("v_lshl_add_u32", 122, 2, "4", "s6")
    n32_masks(2)
    n32_out_addr(119, 2)
    W1R, W1P, W2R, W2P, C, T = 20, 36, 128, 160, 96, 64
    a.raw("s_mul_i32 s6, s4, 7")
    a.raw("s_add_u32 s6, s6, s5")
    a.raw(f"s_sub_u32 s{S_PHI}, s6, 8")
    srd(R_D, P_W1, 512 * 3584)
    srd(R_B, P_W2, 1792 * 1024)

    def ffn_flags():
        a.op2("v_lshlrev_b32", 6, "2", 0)
        a.raw("s_cmp_lg_u32 s3, 0")
        a.raw("s_cbranch_scc1 L_f_nf")
        poll_flags(6, 0, "0xff", 5, sleep=16)
        a.label("L_f_nf")
        a.raw("s_barrier")
    if opts.get("flate", 2) == 1:
        ffn_flags()
    if opts.get("flate", 2) == 2:
        a.raw("s_cmp_lg_u32 s3, 0")
        a.raw("s_cbranch_scc1 L_f_nf0")
        poll_flags(123, 0, "1", 5, sleep=8)
        a.label("L_f_nf0")
        a.raw("s_barrier")
    a.op2("v_and_b32", 2, "12", 0)
    a.op2("v_lshlrev_b32", 2, "2", 2)
    a.op3("v_lshl_add_u32", 2, 3, "1", 2)
    a.op2("v_mul_u32_u24", 2, "3584", 2)
    a.op2("v_and_b32", 4, "3", 0)
    a.op3("v_lshl_add_u32", 2, 4, "4", 2)
    a.raw(f"s_mul_i32 s6, s3, {64 * 3584}")
    a.raw(f"s_lshl_b32 s7, s{S_PHI}, 6")
    a.raw("s_add_u32 s6, s6, s7")
    for i in range(4):
        a.raw(f"s_add_u32 s7, s6, {((i >> 1) * 8 + (i & 1)) * 3584}")
        bload(W1R + 4 * i, 4, 2, R_D, soff="s7", flags=SF)
    a.raw("s_cmp_ge_u32 s3, 4")
    a.raw("s_cbranch_scc1 L_f_n2")
    a.op2("v_lshlrev_b32", 2, "13", 3)
    a.op2("v_and_b32", 4, "15", 0)
    a.op3("v_lshl_add_u32", 2, 4, "4", 2)
    a.raw(f"s_lshl_b32 s6, s{S_PHI}, 15")
    a.raw("s_lshl_b32 s7, s3, 8")
    a.raw("s_add_u32 s6, s6, s7")
    a.raw("s_add_u32 s7, s6, 4096")
    for i in range(8):
        bload(W2R + 4 * i, 4, 2, R_B, soff="s6" if i < 4 else "s7", imm=(i & 3) * 1024, flags=SF)
    a.label("L_f_n2")
    a.op2("v_and_b32", 4, "31", 0)
    a.op2("v_and_b32", 5, "32", 0)
    a.op2("v_lshlrev_b32", 5, "7", 5)
    a.op3("v_lshl_add_u32", 8, 4, "4", 5)
    a.op2("v_and_b32", 5, "15", 0)
    a.raw("s_lshl_b32 s6, s3, 7")
    a.op3("v_lshl_add_u32", 9, 5, "3", "s6")
    a.op2("v_and_b32", 5, "16", 0)
    a.op3("v_lshl_add_u32", 9, 5, "6", 9)
    a.op2("v_and_b32", 6, "3", 0)
    a.op3("v_lshl_add_u32", 6, 6, "5", "s6")
    a.op3("v_lshl_add_u32", 6, 5, "6", 6)
    a.op2("v_and_b32", 5, "12", 0)
    a.op2("v_add_u32", 6, 6, 5)
    bload(10, 1, 6, R_A)
    bload(11, 1, 6, R_A, imm=16)
    a.raw("s_lshl_b32 s6, s3, 9")
    for k in range(4):
        a.raw(f"s_add_u32 s{8 + k}, s6, {AB + k * 8192}")
    a.op2("v_and_b32", 5, "1", 0)
    a.op2("v_lshlrev_b32", 5, "6", 5)
    a.op3("v_lshl_add_u32", 5, 3, "4", 5)
    a.op2("v_lshrrev_b32", 6, "1", 0)
    a.op2("v_and_b32", 6, "7", 6)
    a.op1("v_mov_b32", 4, "0x80")
    for c in range(8):
        a.cmp("v_cmp_eq_u32", "vcc", str(c), 6)
        a.cndmask(192 + c, 4, 5, "vcc")
    for r in range(4):
        a.op1("v_mov_b32", 12 + r, "0")
    dsw(12, 4, 4, L_G)
    a.op2("v_and_b32", 5, "15", 0)
    a.op2("v_lshrrev_b32", 5, "2", 5)
    a.op3("v_lshl_add_u32", 5, 3, "2", 5)
    a.op2("v_lshlrev_b32", 5, "12", 5)
    a.op2("v_and_b32", 6, "3", 0)
    a.op3("v_lshl_add_u32", 200, 6, "4", 5)
    a.raw("s_lshl_b32 s12, s3, 16")
    a.raw(f"s_lshl_b32 s6, s{S_PHI}, 6")
    a.raw("s_add_u32 s12, s12, s6")
    a.raw(f"s_add_u32 s12, s12, {FB}")
    a.op2("v_lshlrev_b32", 6, "2", 0)
    a.raw("s_waitcnt vmcnt(0)")
    stamp(1)
    perm4(W1R, W1P)
    perm8(W2R, W2P)
    unpack(12, 10, 2)
    if opts.get("flate", 2) != 1:
        ffn_flags()
    stamp(3)
    poll_masked([(C + 4 * k, 8, f"s{8 + k}", 0) for k in range(4)], 4, sleep=opts.get("sleep_a", 2))
    stamp(5)
    pk("v_pk_add_f32", C, C, C + 4)
    pk("v_pk_add_f32", C + 2, C + 2, C + 6)
    pk("v_pk_add_f32", C + 8, C + 8, C + 12)
    pk("v_pk_add_f32", C + 10, C + 10, C + 14)
    pk("v_pk_add_f32", C, C, C + 8)
    pk("v_pk_add_f32", C + 2, C + 2, C + 10)
    a.allreduce("v_add_f32", [C + r for r in range(4)], ["x32"], [C + 4 + r for r in range(4)])
    a.op2e("v_cvt_pk_bf16_f32", C + 4, C, C + 1)
    a.op2e("v_cvt_pk_bf16_f32", C + 5, C + 2, C + 3)
    unpack(C, C + 4, 2)
    pk("v_pk_add_f32", C, C, 12)
    pk("v_pk_add_f32", C + 2, C + 2, 14)
    a.op2e("v_cvt_pk_bf16_f32", C + 4, C, C + 1)
    a.op2e("v_cvt_pk_bf16_f32", C + 5, C + 2, C + 3)
    a.raw("s_mov_b32 exec_hi, 0")
    dsw(C + 4, 2, 9, L_H)
    a.raw("s_mov_b64 exec, -1")
    a.raw("s_waitcnt lgkmcnt(0)")
    a.raw("s_barrier")
    for s in range(2):
        dsr(XS + 4 * s, 4, 120, L_H + 512 * s)
    dsr(XA, 2, 121, L_H)
    a.raw("s_waitcnt lgkmcnt(0)")
    ln_norm4(XS, XA, 64, 80)
    n32_core(XA, W1P, 64, 80, 122)
    a.raw("s_waitcnt lgkmcnt(0)")
    a.raw("s_barrier")
    a.raw("s_cmp_ge_u32 s3, 4")
    a.raw("s_cbranch_scc1 L_exit")
    n32_final(7, 80)
    round_bf16(80, 80)
    a.op2("v_mul_f32", 81, "0xbfb8aa3b", 80)
    a.op1("v_exp_f32", 81, 81, kind="trans")
    a.op2("v_add_f32", 81, "1.0", 81)
    a.op1("v_rcp_f32", 81, 81, kind="trans")
    a.op2("v_mul_f32", 80, 80, 81)
    a.op2e("v_cvt_pk_bf16_f32", 80, 80, 80)
    dsw(80, 1, 119, L_G, op="ds_write_b16")
    a.raw("s_waitcnt lgkmcnt(0)")
    stamp(4)
    for c in range(8):
        dsr(84 + 4 * c, 4, 192 + c, L_G)
    for c in range(8):
        a.raw(f"s_waitcnt lgkmcnt({7 - c})")
        a.mfma16(64, 84 + 4 * c, W2P + 4 * c, None if c == 0 else 64)
    for r in range(4):
        a.op2("v_min_u32", 64 + r, "-2", 64 + r)
    bstore(64, 4, 200, R_WS, soff="s12", flags="sc1")
    stamp(6)
    a.label("L_exit")
    dump_stamps()
    a.label("L_end")
    a.raw("s_endpgm")

    if opts.get("order", 0) == 1:
        L, m = a.lines, marks
        pro, t0, a0, rest = L[:m["tail0"]], L[m["tail0"]:m["att0"]], L[m["att0"]:m["tail1"]], L[m["tail1"]:]
        pro[-1] = "    s_cbranch_scc1 L_tail0"
        a.lines = pro + a0 + ["L_tail0:"] + t0 + rest

    hdr = open(f"cdna_kernels/{NAME}.s.ref").read().split("; Override launch")[0]
    out = hdr
    out += "; Override launch geometry by editing the next line (default: block=256,\n"
    out += "; grid=ceil(out_elems/256), lds=0). Harness parses it; keep it on one line.\n"
    out += f"; @launch grid=(256,1,1) block=(512,1,1) lds={LDS_BYTES}\n"
    out += '.amdgcn_target "amdgcn-amd-amdhsa--gfx950"\n.text\n'
    out += f".globl {NAME}_kernel\n.p2align 8\n.type {NAME}_kernel,@function\n{NAME}_kernel:\n"
    out += a.text()
    out += '.section .rodata,"a"\n.p2align 6\n'
    out += f".amdhsa_kernel {NAME}_kernel\n"
    out += "  .amdhsa_next_free_vgpr 208\n  .amdhsa_next_free_sgpr 102\n  .amdhsa_accum_offset 208\n"
    out += "  .amdhsa_group_segment_fixed_size 0\n  .amdhsa_kernarg_size 88\n  .amdhsa_user_sgpr_count 2\n"
    out += "  .amdhsa_user_sgpr_kernarg_segment_ptr 1\n  .amdhsa_system_sgpr_workgroup_id_x 1\n"
    out += "  .amdhsa_float_denorm_mode_32 3\n"
    out += ".end_amdhsa_kernel\n"
    return out


if __name__ == "__main__":
    debug = "--debug" in sys.argv
    path = [x for x in sys.argv[1:] if not x.startswith("--")]
    path = path[0] if path else f"cdna_kernels/{NAME}.s"
    opts = {}
    for x in sys.argv[1:]:
        if x.startswith("--opt="):
            k, v = x[6:].split(":")
            opts[k] = int(v) if v.lstrip("-").isdigit() else v
    open(path, "w").write(gen(debug, opts))
    print("wrote", path)
```

```python
import sys
from asmlib import Asm, vr, sr

NAME = "sequential_preLN__sliding_block_cached__dense_activation_silu__decode"

QB = 0
OB = 64 * 1024
AB = 384 * 1024
FB = 416 * 1024
OX = 704 * 1024
WS_BYTES = 1 << 20
TS_BASE = WS_BYTES
WS_SIZE_DBG = WS_BYTES + 256 * 8 * 128

L_Q = 0
L_ST = 1024
L_K = 2048
L_ON = 0
L_H = 2048
L_G = 4096
L_P3 = 4352
LDS_BYTES = 2048 + 65536

LOG2E = "0x3fb8aa3b"
SCALE = "0x3db504f3"
INV512 = "0x3b000000"
EPS = "0x3727c5ac"
POLL_MAX = 1 << 15

S_WG, S_WAVE, S_G, S_IDX = 2, 3, 4, 5
P_X, P_K, P_V, P_WQ, P_WO, P_W1, P_W2, P_OUT, P_DBG, P_WS = 16, 18, 20, 22, 24, 28, 30, 32, 34, 36
S_CNT = 38
S_PHI = 39
R_WS, R_A, R_B, R_C, R_D = 40, 44, 48, 52, 56
S_SELLO, S_SELHI = 60, 61
S_PM = 64
S_MASK = 80
S_TS = 88


def gen(debug=False, opts=None):
    opts = opts or {}
    SF = opts.get("stream_flags", "nt")
    a = Asm()
    marks = {}

    def mark(name):
        marks[name] = len(a.lines)

    def stamp(k):
        if debug:
            a.raw(f"s_memrealtime {sr(S_TS + 2 * k, 2)}")

    def dump_stamps():
        if not debug:
            return
        a.raw("s_waitcnt vmcnt(0) lgkmcnt(0)")
        a.raw("s_mov_b64 exec, 1")
        a.raw(f"s_lshl_b32 s6, s{S_WG}, 3")
        a.raw(f"s_add_u32 s6, s6, s{S_WAVE}")
        a.raw("s_lshl_b32 s6, s6, 7")
        a.raw(f"s_add_u32 s6, s6, {TS_BASE}")
        a.op1("v_mov_b32", 1, "s6")
        for k in range(7):
            a.op1("v_mov_b32", 2, f"s{S_TS + 2 * k}")
            a.op1("v_mov_b32", 3, f"s{S_TS + 2 * k + 1}")
            a.mem(f"buffer_store_dwordx2 v[2:3], v1, {sr(R_WS, 4)}, 0 offen offset:{8 * k}", src=[1, 2, 3])
            a.nop(2)

    def srd(dst, ptr, size):
        a.raw(f"s_mov_b32 s{dst}, s{ptr}")
        a.raw(f"s_and_b32 s{dst + 1}, s{ptr + 1}, 0xffff")
        a.raw(f"s_mov_b32 s{dst + 2}, {size}")
        a.raw(f"s_mov_b32 s{dst + 3}, 0x20000")

    def srd_ws():
        srd(R_WS, P_WS, WS_SIZE_DBG if debug else WS_BYTES)

    def bload(d, n, off, srdb, soff="0", imm=0, flags=""):
        op = {1: "buffer_load_dword", 2: "buffer_load_dwordx2", 4: "buffer_load_dwordx4"}[n]
        t = f"{op} {vr(d, n)}, v{off}, {sr(srdb, 4)}, {soff} offen"
        if imm:
            t += f" offset:{imm}"
        if flags:
            t += " " + flags
        a.mem(t, src=[off], dst=list(range(d, d + n)))

    def bstore(s, n, off, srdb, soff="0", imm=0, flags="", op=None):
        op = op or {1: "buffer_store_dword", 2: "buffer_store_dwordx2", 4: "buffer_store_dwordx4"}[n]
        t = f"{op} {vr(s, n)}, v{off}, {sr(srdb, 4)}, {soff} offen"
        if imm:
            t += f" offset:{imm}"
        if flags:
            t += " " + flags
        regs = list(range(s, s + n))
        a.mem(t, src=[off] + regs, wide_store=regs if n == 4 else ())

    def dsr(d, n, addr, off):
        op = {1: "ds_read_b32", 2: "ds_read_b64", 4: "ds_read_b128"}[n]
        a.mem(f"{op} {vr(d, n)}, v{addr} offset:{off}", src=[addr], dst=list(range(d, d + n)))

    def dsw(s, n, addr, off, op=None):
        op = op or {1: "ds_write_b32", 2: "ds_write_b64", 4: "ds_write_b128"}[n]
        a.mem(f"{op} v{addr}, {vr(s, n)} offset:{off}", src=[addr] + list(range(s, s + n)))

    def poll_flags(voff, imm, lanes, tmp, pre_loaded=False, sleep=4):
        lp, dn, ck = a.newlabel("fp"), a.newlabel("fd"), a.newlabel("fc")
        a.raw(f"s_mov_b32 s{S_CNT}, {POLL_MAX}")
        a.raw(f"s_mov_b64 exec, {lanes}")
        if pre_loaded:
            a.raw(f"s_branch {ck}")
        a.label(lp)
        bload(tmp, 1, voff, R_C, imm=imm, flags="sc1")
        a.raw("s_waitcnt vmcnt(0)")
        a.label(ck)
        a.valu(f"v_cmp_ne_u32_e32 vcc, 1, v{tmp}", src=[tmp], sdst=["vcc"])
        a.raw(f"s_cbranch_vccz {dn}")
        a.raw(f"s_sleep {sleep}")
        a.raw(f"s_sub_u32 s{S_CNT}, s{S_CNT}, 1")
        a.raw(f"s_cmp_eq_u32 s{S_CNT}, 0")
        a.raw(f"s_cbranch_scc0 {lp}")
        a.label(dn)
        a.raw("s_mov_b64 exec, -1")

    def poll_masked(loads, tmp, sleep=2, width=4, last_hi=None, alt=None):
        n = len(loads)
        lp, dn = a.newlabel("pl"), a.newlabel("pd")
        a.raw(f"s_mov_b32 s{S_CNT}, {POLL_MAX}")
        for k, (d, vo, so, im) in enumerate(loads):
            if last_hi is not None and k == n - 1:
                a.raw(f"s_mov_b32 exec_hi, {last_hi}")
            bload(d, width, vo, R_WS, soff=so, imm=im, flags="sc1")
        if last_hi is not None:
            a.raw("s_mov_b64 exec, -1")
        a.label(lp)
        a.raw("s_waitcnt vmcnt(0)")
        for k, (d, vo, so, im) in enumerate(loads):
            t = tmp + (k & 1)
            if width == 4:
                a.op3("v_max3_u32", t, d, d + 1, d + 2)
                a.op2("v_max_u32", t, t, d + 3)
            else:
                t = d
            a.cmp("v_cmp_eq_u32", sr(S_PM + 2 * k, 2), "-1", t)
        a.nop(1)
        if n == 1:
            a.raw(f"s_cmp_eq_u64 {sr(S_PM, 2)}, 0")
        else:
            a.raw(f"s_or_b64 s[6:7], {sr(S_PM, 2)}, {sr(S_PM + 2, 2)}")
            for k in range(2, n):
                a.raw(f"s_or_b64 s[6:7], s[6:7], {sr(S_PM + 2 * k, 2)}")
            a.raw("s_cmp_eq_u64 s[6:7], 0")
        a.raw(f"s_cbranch_scc1 {dn}")
        if sleep:
            a.raw(f"s_sleep {sleep}")
        if alt is not None:
            a.raw(f"s_and_b32 s6, s{S_CNT}, {opts.get('altm', 3)}")
            a.raw("s_cmp_eq_u32 s6, 1")
            a.raw(f"s_cselect_b32 s7, {alt}, 0")
            a.raw("s_cmp_eq_u32 s6, 0")
            a.raw(f"s_cselect_b32 s7, {-alt & 0xffffffff:#x}, s7")
            a.raw(f"s_cmp_eq_u32 s{S_CNT}, {POLL_MAX}")
            a.raw("s_cselect_b32 s7, 0, s7")
            for so_ in dict.fromkeys(l[2] for l in loads):
                a.raw(f"s_add_u32 {so_}, {so_}, s7")
        for k, (d, vo, so, im) in enumerate(loads):
            sk = a.newlabel("sk")
            a.raw(f"s_mov_b64 exec, {sr(S_PM + 2 * k, 2)}")
            a.raw(f"s_cbranch_execz {sk}")
            bload(d, width, vo, R_WS, soff=so, imm=im, flags="sc1")
            a.label(sk)
        a.raw("s_mov_b64 exec, -1")
        a.raw(f"s_sub_u32 s{S_CNT}, s{S_CNT}, 1")
        a.raw(f"s_cmp_eq_u32 s{S_CNT}, 0")
        a.raw(f"s_cbranch_scc0 {lp}")
        a.raw("s_waitcnt vmcnt(0)")
        a.label(dn)

    def perm8(raw, out, xs=(0, 1, 2, 3)):
        for x in xs:
            for j in range(4):
                lo, hi = raw + (2 * x) * 4 + j, raw + (2 * x + 1) * 4 + j
                a.op3("v_perm_b32", out + (2 * j) * 4 + x, hi, lo, f"s{S_SELLO}")
                a.op3("v_perm_b32", out + (2 * j + 1) * 4 + x, hi, lo, f"s{S_SELHI}")

    def perm4(raw, out):
        for j in range(4):
            for x in range(2):
                lo, hi = raw + (2 * x) * 4 + j, raw + (2 * x + 1) * 4 + j
                a.op3("v_perm_b32", out + (2 * j) * 2 + x, hi, lo, f"s{S_SELLO}")
                a.op3("v_perm_b32", out + (2 * j + 1) * 2 + x, hi, lo, f"s{S_SELHI}")

    def round_bf16(d, s):
        a.op2e("v_cvt_pk_bf16_f32", d, s, s)
        a.op2("v_lshlrev_b32", d, "16", d)

    def unpack(V, R, n):
        for d in range(n):
            a.op2("v_lshlrev_b32", V + 2 * d, "16", R + d)
            a.op2("v_and_b32", V + 2 * d + 1, "0xffff0000", R + d)

    LN_STEPS = ["quad_perm:[1,0,3,2]", "quad_perm:[2,3,0,1]", "row_ror:8", "x16", "x32"]

    def pk(op, d, x, y, z=None):
        regs = [x, x + 1, y, y + 1] + ([z, z + 1] if z is not None else [])
        t = f"{op} {vr(d, 2)}, {vr(x, 2)}, {vr(y, 2)}" + (f", {vr(z, 2)}" if z is not None else "")
        a.valu(t, dst=[d, d + 1], src=regs)

    def ln_norm4(R, XA, V, T, nA=2, steps=None):
        S, Q, MN, t0, M, RC = T, T + 2, T + 4, T + 6, T + 8, T + 9
        unpack(V, R, 8)
        pk("v_pk_add_f32", S, V, V + 2)
        pk("v_pk_add_f32", Q, V + 4, V + 6)
        pk("v_pk_add_f32", S, S, V + 8)
        pk("v_pk_add_f32", Q, Q, V + 10)
        pk("v_pk_add_f32", S, S, V + 12)
        pk("v_pk_add_f32", Q, Q, V + 14)
        pk("v_pk_add_f32", S, S, Q)
        a.op2("v_add_f32", S, S, S + 1)
        a.allreduce("v_add_f32", [S], steps or LN_STEPS, [t0])
        a.op2("v_mul_f32", MN, "0xbb000000", S)
        a.op1("v_mov_b32", MN + 1, MN)
        for i in range(0, 16, 2):
            pk("v_pk_add_f32", V + i, V + i, MN)
        pk("v_pk_mul_f32", Q, V, V)
        pk("v_pk_mul_f32", S, V + 2, V + 2)
        for i in range(4, 16, 4):
            pk("v_pk_fma_f32", Q, V + i, V + i, Q)
            pk("v_pk_fma_f32", S, V + i + 2, V + i + 2, S)
        pk("v_pk_add_f32", Q, Q, S)
        a.op2("v_add_f32", Q, Q, Q + 1)
        a.allreduce("v_add_f32", [Q], steps or LN_STEPS, [t0])
        round_bf16(M, MN)
        unpack(V, XA, nA)
        a.op2("v_mul_f32", Q, INV512, Q)
        round_bf16(Q, Q)
        a.op2("v_add_f32", Q, EPS, Q)
        round_bf16(Q, Q)
        a.op1("v_sqrt_f32", Q, Q, kind="trans")
        for i in range(2 * nA):
            a.op2("v_add_f32", V + i, V + i, M)
        round_bf16(Q, Q)
        a.op1("v_rcp_f32", RC, Q, kind="trans")
        for d in range(nA):
            a.op2e("v_cvt_pk_bf16_f32", XA + d, V + 2 * d, V + 2 * d + 1)
        unpack(V, XA, nA)
        for i in range(2 * nA):
            a.op2("v_mul_f32", V + i, V + i, RC)
        for d in range(nA):
            a.op2e("v_cvt_pk_bf16_f32", XA + d, V + 2 * d, V + 2 * d + 1)

    def n32_masks(t):
        a.op2("v_lshrrev_b32", t, "2", 0)
        a.op2("v_and_b32", t, "3", t)
        for r in (1, 2, 3):
            a.cmp("v_cmp_eq_u32", sr(S_MASK + 2 * (r - 1), 2), str(r), t)
        a.op2("v_and_b32", t, "8", 0)
        a.cmp("v_cmp_ne_u32", sr(S_MASK + 6, 2), "0", t)

    def n32_core(PA, WP, ACC, T, P3ADDR):
        for x in range(2):
            a.cndmask(T + x, PA + x, "0", sr(S_MASK + 6, 2))
            a.cndmask(T + 2 + x, "0", PA + x, sr(S_MASK + 6, 2))
        for cc in range(2):
            for t in range(4):
                a.mfma16k16(ACC + 4 * t, T + 2 * cc, WP + 2 * (2 * t + cc), None if cc == 0 else ACC + 4 * t)
        for t in range(4):
            a.cndmask(T + 4 + t, ACC + 4 * t, ACC + 4 * t + 1, sr(S_MASK, 2))
            a.cndmask(T + 4 + t, T + 4 + t, ACC + 4 * t + 2, sr(S_MASK + 2, 2))
            a.cndmask(T + 4 + t, T + 4 + t, ACC + 4 * t + 3, sr(S_MASK + 4, 2))
        a.allreduce("v_add_f32", [T + 4 + t for t in range(4)], ["row_ror:4", "row_ror:8"], [])
        a.raw("s_mov_b32 exec_lo, 0x000f000f")
        a.raw("s_mov_b32 exec_hi, 0x000f000f")
        dsw(T + 4, 4, P3ADDR, L_P3)
        a.raw("s_mov_b64 exec, -1")

    def n32_final(L16, T):
        dsr(T, 4, L16, L_P3)
        dsr(T + 4, 4, L16, L_P3 + 1024)
        a.raw("s_waitcnt lgkmcnt(0)")
        for t in range(4):
            a.op2("v_add_f32", T + t, T + t, T + 4 + t)
        a.swap32(T, T + 1)
        a.swap32(T + 2, T + 3)
        a.op2("v_add_f32", T, T, T + 1)
        a.op2("v_add_f32", T + 2, T + 2, T + 3)
        a.swap16(T, T + 2)
        a.op2("v_add_f32", T, T, T + 2)

    def n32_out_addr(d, t):
        a.op2("v_and_b32", d, "3", 0)
        a.op2("v_lshlrev_b32", d, "4", d)
        a.op2("v_and_b32", t, "4", 0)
        a.op3("v_lshl_add_u32", d, t, "4", d)
        a.op2("v_and_b32", t, "8", 0)
        a.op2("v_lshrrev_b32", t, "2", t)
        a.op2("v_add_u32", d, d, t)
        a.op2("v_and_b32", t, "16", 0)
        a.op2("v_lshrrev_b32", t, "1", t)
        a.op2("v_add_u32", d, d, t)
        a.op2("v_and_b32", t, "32", 0)
        a.op2("v_lshrrev_b32", t, "3", t)
        a.op2("v_add_u32", d, d, t)

    a.raw("s_cmp_ge_u32 s2, 256")
    a.raw("s_cbranch_scc1 L_end")
    a.raw("s_load_dwordx16 s[16:31], s[0:1], 0")
    a.raw("s_load_dwordx4 s[32:35], s[0:1], 64")
    a.raw("s_load_dwordx2 s[36:37], s[0:1], 80")
    stamp(0)
    a.op2("v_lshrrev_b32", 1, "6", 0)
    a.op2("v_and_b32", 0, "63", 0)
    a.op2("v_lshrrev_b32", 3, "4", 0)
    a.valu("v_readfirstlane_b32 s3, v1", src=[1], sdst=["s3"])
    a.raw("s_and_b32 s4, s2, 7")
    a.raw("s_lshr_b32 s5, s2, 4")
    a.op2("v_lshlrev_b32", 7, "4", 0)
    a.raw("s_bitcmp1_b32 s2, 3")
    a.raw("s_cbranch_scc0 L_att")

    mark("tail0")
    XS, XA = 8, 16
    WR1, WP1 = 24, 56
    a.raw("s_lshl_b32 s14, s4, 4")
    a.raw("s_add_u32 s14, s14, s5")
    a.raw("s_cmp_ge_u32 s3, 4")
    a.raw("s_cbranch_scc1 L_t_aux")
    a.op2("v_lshrrev_b32", 2, "3", 0)
    a.op2("v_lshlrev_b32", 2, "16", 2)
    a.op2("v_and_b32", 4, "7", 0)
    a.op3("v_lshl_add_u32", 6, 4, "4", 2)
    a.raw("s_lshr_b32 s10, s5, 3")
    a.raw("s_and_b32 s11, s5, 7")
    a.raw("s_lshl_b32 s8, s4, 10")
    a.raw("s_lshl_b32 s9, s11, 7")
    a.raw("s_add_u32 s8, s8, s9")
    a.raw("s_lshl_b32 s9, s10, 2")
    a.raw("s_add_u32 s9, s9, s3")
    a.raw("s_lshl_b32 s9, s9, 19")
    a.raw("s_add_u32 s8, s8, s9")
    a.raw("s_waitcnt lgkmcnt(0)")
    srd(R_B, P_WQ, 512 * 8192)
    a.raw("s_barrier")
    for i in range(8):
        bload(WR1 + 4 * i, 4, 6, R_B, soff="s8", flags=SF)
        if i < 7:
            a.raw("s_add_u32 s8, s8, 8192")
    a.raw("s_branch L_tail1")
    a.label("L_t_aux")
    for r in range(4):
        a.op1("v_mov_b32", 124 + r, "-1")
    a.raw("s_waitcnt lgkmcnt(0)")
    srd_ws()
    srd(R_A, P_X, 2048)
    a.raw("s_cmp_eq_u32 s3, 4")
    a.raw("s_cbranch_scc1 L_t_x")
    a.raw("s_cmp_eq_u32 s3, 5")
    a.raw("s_cbranch_scc1 L_t_co")
    a.raw("s_cmp_eq_u32 s3, 6")
    a.raw("s_cbranch_scc1 L_t_ca")
    a.raw("s_cmp_lg_u32 s5, 0")
    a.raw("s_cbranch_scc1 L_t_auxb")
    a.raw("s_lshl_b32 s6, s4, 13")
    a.raw("s_add_u32 s7, s6, 4096")
    for k in range(8):
        bstore(124, 4, 7, R_WS, soff="s6" if k < 4 else "s7", imm=QB + (k & 3) * 1024, flags="sc1")
    a.raw("s_branch L_t_auxb")
    a.label("L_t_x")
    bload(XS, 4, 7, R_A)
    bload(XS + 4, 4, 7, R_A, imm=1024)
    a.raw("s_branch L_t_auxb")
    a.label("L_t_co")
    a.raw("s_lshl_b32 s9, s14, 11")
    a.raw(f"s_add_u32 s9, s9, {OB}")
    bstore(124, 4, 7, R_WS, soff="s9", flags="sc1")
    bstore(124, 4, 7, R_WS, soff="s9", imm=1024, flags="sc1")
    if opts.get("dual", 0):
        a.raw(f"s_add_u32 s9, s9, {OX - OB}")
        bstore(124, 4, 7, R_WS, soff="s9", flags="sc1")
        bstore(124, 4, 7, R_WS, soff="s9", imm=1024, flags="sc1")
    a.raw("s_branch L_t_auxb")
    a.label("L_t_ca")
    a.raw("s_cmp_ge_u32 s5, 8")
    a.raw("s_cbranch_scc1 L_t_auxb")
    a.raw("s_lshl_b32 s10, s4, 3")
    a.raw("s_add_u32 s10, s10, s5")
    a.raw("s_lshl_b32 s10, s10, 9")
    a.raw(f"s_add_u32 s10, s10, {AB}")
    a.raw("s_mov_b32 exec_hi, 0")
    bstore(124, 4, 7, R_WS, soff="s10", flags="sc1")
    a.raw("s_mov_b64 exec, -1")
    a.label("L_t_auxb")
    a.raw("s_barrier")
    a.raw("s_branch L_tail1")

    mark("att0")
    a.label("L_att")
    VOFF, QOFF = 5, 6
    KR, VRAW, QR, SACC, PR, PM, OACC = 16, 48, 80, 96, 104, 108, 8
    a.op2("v_and_b32", 2, "15", 0)
    a.op2("v_xor_b32", 4, 2, 3)
    a.op2("v_lshlrev_b32", 4, "4", 4)
    for q in range(4):
        a.op2("v_xor_b32", 116 + q, str(64 * q), 4)
        a.op3("v_lshl_add_u32", 112 + q, 3, "8", 116 + q)
    a.op2("v_lshlrev_b32", 4, "10", 3)
    a.op3("v_lshl_add_u32", VOFF, 2, "4", 4)
    for t in ["s_lshr_b32 s6, s5, 3", "s_and_b32 s7, s5, 7", "s_lshl_b32 s8, s6, 3", "s_add_u32 s8, s8, s4",
              "s_lshl_b32 s8, s8, 13", "s_lshl_b32 s9, s7, 8", "s_add_u32 s8, s8, s9", "s_lshl_b32 s9, s3, 5",
              "s_add_u32 s8, s8, s9", "s_add_u32 s8, s8, 6144", "s_lshl_b32 s8, s8, 8", "s_add_u32 s9, s8, 4096",
              "s_lshl_b32 s13, s3, 13", f"s_add_u32 s13, s13, {L_K}", "s_add_u32 s12, s13, 4096", "s_mov_b32 m0, s13"]:
        a.raw(t)
    a.raw("s_waitcnt lgkmcnt(0)")
    srd(R_A, P_K, 0x2000000)
    for T in range(2):
        if T:
            a.raw("s_mov_b32 m0, s12")
            a.nop(1)
        for q in range(4):
            a.mem(f"buffer_load_dwordx4 v{112 + q}, {sr(R_A, 4)}, s{8 + T} offen offset:{q * 1024} {SF} lds",
                  src=[112 + q])
    srd(R_B, P_V, 0x2000000)
    if opts.get("kbar", 1):
        a.raw("s_barrier")
    NV1 = opts.get("nv1", 6)
    srd(R_C, P_DBG, 256)
    a.raw("s_lshl_b32 s6, s4, 2")
    a.op1("v_mov_b32", 124, "s6")
    a.raw("s_cmp_lg_u32 s3, 0")
    a.raw("s_cbranch_scc1 L_a_nfs")
    a.raw("s_mov_b64 exec, 1")
    bload(125, 1, 124, R_C, imm=128, flags="sc1")
    a.raw("s_mov_b64 exec, -1")
    a.label("L_a_nfs")
    for i in range(NV1):
        bload(VRAW + i * 4, 4, VOFF, R_B, soff=f"s{8 + i // 4}", imm=(i % 4) * 256, flags=SF)
    a.raw("s_branch L_att1")

    mark("tail1")
    a.label("L_tail1")
    a.raw(f"s_mov_b32 s{S_SELLO}, 0x05040100")
    a.raw(f"s_mov_b32 s{S_SELHI}, 0x07060302")
    srd_ws()
    srd(R_A, P_X, 2048)
    srd(R_C, P_DBG, 256)
    a.raw("s_lshl_b32 s6, s4, 2")
    a.op1("v_mov_b32", 123, "s6")
    a.raw("s_cmp_lt_u32 s3, 4")
    a.raw("s_cbranch_scc1 L_t_main")
    a.raw("s_waitcnt vmcnt(0)")
    a.raw("s_cmp_lg_u32 s3, 4")
    a.raw("s_cbranch_scc1 L_t_a1")
    dsw(XS, 4, 7, L_H)
    dsw(XS + 4, 4, 7, L_H + 1024)
    a.raw("s_waitcnt lgkmcnt(0)")
    stamp(3)
    a.raw("s_barrier")
    a.raw("s_barrier")
    a.raw("s_branch L_t_np")
    a.label("L_t_a1")
    a.raw("s_lshl_b32 s6, s5, 3")
    a.raw("s_add_u32 s6, s6, s3")
    a.raw("s_cmp_lg_u32 s6, 7")
    a.raw("s_cbranch_scc1 L_t_a2")
    a.op1("v_mov_b32", 4, "1")
    a.raw("s_mov_b64 exec, 1")
    bstore(4, 1, 123, R_C, imm=128, flags="sc1")
    a.raw("s_mov_b64 exec, -1")
    a.label("L_t_a2")
    stamp(5)
    a.raw("s_barrier")
    a.raw("s_barrier")
    a.raw("s_branch L_t_np")
    a.label("L_t_main")
    a.op2("v_lshrrev_b32", 2, "2", 0)
    a.op2("v_and_b32", 5, "1", 0)
    a.op3("v_lshl_add_u32", 2, 2, "1", 5)
    a.op2("v_lshlrev_b32", 2, "4", 2)
    a.op2("v_and_b32", 6, "2", 0)
    a.op3("v_lshl_add_u32", 20, 6, "9", 2)
    a.op3("v_lshl_add_u32", 2, 3, "1", 5)
    a.raw("s_lshl_b32 s6, s10, 2")
    a.raw("s_add_u32 s6, s6, s3")
    a.raw("s_lshl_b32 s6, s6, 7")
    a.op3("v_lshl_add_u32", 21, 2, "4", "s6")
    a.op3("v_lshl_add_u32", 21, 6, "9", 21)
    a.op3("v_lshl_add_u32", 2, 3, "3", 4)
    a.raw("s_lshl_b32 s7, s3, 9")
    a.op3("v_lshl_add_u32", 22, 2, "4", "s7")
    a.op2("v_and_b32", 2, "31", 0)
    a.op2("v_lshlrev_b32", 2, "4", 2)
    a.op2("v_and_b32", 5, "32", 0)
    a.op3("v_lshl_add_u32", 23, 5, "5", 2)
    a.op2("v_lshrrev_b32", 2, "2", 0)
    a.op2("v_and_b32", 2, "3", 2)
    for c in range(4):
        a.cmp("v_cmp_eq_u32", sr(S_MASK + 2 * c, 2), str(c), 2)
    a.op2("v_and_b32", 2, "8", 0)
    a.cmp("v_cmp_ne_u32", "s[12:13]", "0", 2)
    a.raw("s_lshl_b32 s8, s14, 9")
    a.op2("v_lshlrev_b32", 6, "3", 0)
    a.raw("s_barrier")
    for s_ in range(2):
        dsr(XS + 4 * s_, 4, 20, L_H + 512 * s_)
    dsr(XA, 4, 21, L_H)
    a.raw("s_waitcnt lgkmcnt(0)")
    ln_norm4(XS, XA, 88, 104, nA=4, steps=["quad_perm:[1,0,3,2]", "row_ror:4", "row_ror:8", "x16", "x32"])
    for c in range(4):
        for x in range(4):
            a.cndmask(88 + 4 * c + x, "0", XA + x, sr(S_MASK + 2 * c, 2))
    stamp(2)
    a.raw("s_waitcnt vmcnt(4)")
    a.raw("s_cmp_lg_u32 s3, 0")
    a.raw("s_cbranch_scc1 L_t_nfs")
    a.raw("s_mov_b64 exec, 1")
    bload(5, 1, 123, R_C, imm=128, flags="sc1")
    a.raw("s_mov_b64 exec, -1")
    perm8(WR1, WP1, (0, 1))
    a.raw("s_waitcnt vmcnt(1)")
    a.raw("s_branch L_t_nfs2")
    a.label("L_t_nfs")
    perm8(WR1, WP1, (0, 1))
    a.raw("s_waitcnt vmcnt(0)")
    a.label("L_t_nfs2")
    stamp(1)
    perm8(WR1, WP1, (2, 3))
    for c in range(4):
        for t in range(2):
            a.mfma16(8 + 4 * t, 88 + 4 * c, WP1 + 4 * (2 * c + t), None if c == 0 else 8 + 4 * t)
    for b in range(2):
        for t in range(2):
            a.cndmask(16 + 2 * b + t, 8 + 4 * t + 2 * b, 8 + 4 * t + 2 * b + 1, "s[12:13]")
    a.allreduce("v_add_f32", [16, 17, 18, 19], ["row_ror:8"], [])
    a.raw("s_mov_b32 exec_lo, 0x00ff00ff")
    a.raw("s_mov_b32 exec_hi, 0x00ff00ff")
    dsw(16, 4, 22, L_P3)
    a.raw("s_mov_b64 exec, -1")
    a.raw("s_waitcnt lgkmcnt(0)")
    a.raw("s_barrier")
    stamp(4)
    a.raw("s_cmp_lg_u32 s3, 0")
    a.raw("s_cbranch_scc1 L_t_np")
    dsr(8, 4, 23, L_P3)
    dsr(12, 4, 23, L_P3 + 512)
    a.raw("s_waitcnt lgkmcnt(0)")
    for r in range(4):
        a.op2("v_add_f32", 8 + r, 8 + r, 12 + r)
    a.swap32(8, 10)
    a.swap32(9, 11)
    a.op2("v_add_f32", 8, 8, 10)
    a.op2("v_add_f32", 9, 9, 11)
    for r in range(2):
        a.op2("v_min_u32", 8 + r, "-2", 8 + r)
    a.raw("s_waitcnt vmcnt(0)")
    poll_flags(123, 128, "1", 5, pre_loaded=True)
    bstore(8, 2, 6, R_WS, soff="s8", imm=QB, flags="sc1")
    stamp(2)
    a.label("L_t_np")
    a.raw("s_barrier")
    a.raw("s_cmp_lt_u32 s5, 8")
    a.raw("s_cbranch_scc1 L_s3")
    a.raw("s_cmp_lt_u32 s5, 15")
    a.raw("s_cbranch_scc1 L_ffn")
    a.raw("s_cmp_eq_u32 s3, 1")
    a.raw("s_cbranch_scc1 L_touch")
    a.raw("s_cmp_lg_u32 s3, 0")
    a.raw("s_cbranch_scc1 L_exit")
    a.raw("s_lshl_b32 s8, s4, 13")
    a.raw("s_add_u32 s9, s8, 4096")
    a.op2("v_and_b32", 2, "15", 0)
    a.op2("v_lshlrev_b32", 2, "4", 2)
    a.op3("v_lshl_add_u32", 2, 3, "9", 2)
    poll_masked([(8 + 4 * k, 2, "s8" if k < 2 else "s9", QB + (k & 1) * 2048) for k in range(4)], 24, sleep=2)
    a.op1("v_mov_b32", 4, "1")
    a.raw("s_mov_b64 exec, 1")
    bstore(4, 1, 123, R_C, flags="sc1")
    a.raw("s_mov_b64 exec, -1")
    stamp(3)
    a.raw("s_branch L_exit")
    a.label("L_touch")
    a.raw("s_getpc_b64 s[6:7]")
    a.label("L_pc")
    a.raw(f"s_sub_u32 s6, s6, L_pc - {NAME}_kernel")
    a.raw("s_subb_u32 s7, s7, 0")
    for k in range(opts.get("code_kb", 10)):
        if k % 4 == 0 and k:
            a.op2("v_add_u32", 7, "4096", 7)
        a.mem(f"global_load_dwordx4 v[12:15], v7, s[6:7] offset:{(k % 4) * 1024}", src=[7], dst=[12, 13, 14, 15])
    a.raw("s_branch L_exit")

    a.label("L_att1")
    a.raw(f"s_mov_b32 s{S_SELLO}, 0x05040100")
    a.raw(f"s_mov_b32 s{S_SELHI}, 0x07060302")
    srd_ws()
    srd(R_A, P_X, 2048)
    srd(R_D, P_OUT, 2048)
    a.raw("s_lshl_b32 s14, s5, 3")
    a.raw("s_add_u32 s14, s14, s4")
    a.raw("s_lshl_b32 s15, s14, 12")
    a.raw(f"s_add_u32 s15, s15, {FB}")
    a.raw("s_lshl_b32 s12, s4, 13")
    a.raw("s_lshr_b32 s7, s5, 3")
    a.raw("s_lshl_b32 s7, s7, 8")
    a.raw("s_add_u32 s12, s12, s7")
    a.op2("v_lshlrev_b32", 126, "4", 2)
    a.op3("v_lshl_add_u32", 144, 3, "9", 126)
    a.op2("v_lshlrev_b32", 145, "7", 3)
    a.op2("v_and_b32", 126, "3", 0)
    a.op3("v_lshl_add_u32", 145, 126, "5", 145)
    a.op2("v_and_b32", 126, "12", 0)
    a.op2("v_add_u32", 145, 145, 126)
    for q in range(4):
        a.op3("v_lshl_add_u32", 116 + q, 2, "8", 116 + q)
        a.op2("v_add_u32", 116 + q, "s13", 116 + q)
    a.op2("v_and_b32", 2, "3", 0)
    a.op2("v_lshlrev_b32", 2, "8", 2)
    a.op3("v_lshl_add_u32", QOFF, 3, "4", 2)
    a.op2("v_lshrrev_b32", 2, "2", 0)
    a.op2("v_and_b32", 2, "3", 2)
    for c in range(4):
        a.cmp("v_cmp_eq_u32", sr(S_MASK + 2 * c, 2), str(c), 2)
    VOP = 160
    a.raw(f"s_mov_b32 s10, {SCALE}")
    a.raw(f"s_mov_b32 s11, {SCALE}")
    a.raw(f"s_mov_b32 s62, {LOG2E}")
    a.raw(f"s_mov_b32 s63, {LOG2E}")
    a.raw("s_add_u32 s39, s12, 4096")
    for r in range(4):
        a.op1("v_mov_b32", 12 + r, "-1")
    a.raw("s_lshl_b32 s6, s3, 3")
    a.op2("v_lshlrev_b32", 146, "6", 0)
    a.op2("v_add_u32", 146, "s6", 146)
    a.raw("s_lshl_b32 s6, s3, 13")
    a.op2("v_add_u32", 147, "s6", 7)
    a.op2("v_and_b32", 148, "3", 0)
    a.op2("v_lshlrev_b32", 148, "8", 148)
    a.op2("v_and_b32", 126, "12", 0)
    a.op3("v_lshl_add_u32", 148, 126, "4", 148)
    a.op2("v_and_b32", 126, "16", 0)
    a.op3("v_lshl_add_u32", 148, 126, "6", 148)
    a.op2("v_lshrrev_b32", 126, "5", 0)
    a.raw("s_lshl_b32 s6, s3, 1")
    a.op2("v_add_u32", 126, "s6", 126)
    a.op3("v_lshl_add_u32", 148, 126, "4", 148)
    a.op2("v_lshlrev_b32", 149, "6", 126)
    a.raw("s_lshl_b32 s6, s4, 4")
    a.raw("s_add_u32 s6, s6, s5")
    a.raw("s_lshl_b32 s6, s6, 1")
    a.raw("s_add_u32 s6, s6, s3")
    a.raw("s_lshl_b32 s6, s6, 10")
    a.raw(f"s_add_u32 s13, s6, {OB}")
    for r in range(4):
        a.raw(f"s_mov_b32 s{16 + r}, {0x07060500 + r:#x}")
    q1 = [(128 + 4 * k, 144, "s12" if k < 2 else "s39", QB + (k & 1) * 2048) for k in range(4)]
    q2 = [(192 + 4 * k, 144, "s12" if k < 2 else "s39", QB + (k & 1) * 2048) for k in range(4)]

    def q_check(base, lab):
        a.op3("v_max3_u32", 126, base, base + 1, base + 2)
        for r in range(base + 3, base + 15, 2):
            a.op3("v_max3_u32", 126, 126, r, r + 1)
        a.op2("v_max_u32", 126, 126, base + 15)
        a.valu("v_cmp_eq_u32_e32 vcc, -1, v126", src=[126], sdst=["vcc"])
        a.raw(f"s_cbranch_vccz {lab}")

    def q_fin(base):
        for k in range(2):
            pk("v_pk_add_f32", base + 4 * k, base + 4 * k, base + 8 + 4 * k)
            pk("v_pk_add_f32", base + 2 + 4 * k, base + 2 + 4 * k, base + 10 + 4 * k)
        for k in range(2):
            for x in range(2):
                a.op2e("v_cvt_pk_bf16_f32", base + 8 + 2 * k + x, base + 4 * k + 2 * x, base + 4 * k + 2 * x + 1)
        for k in range(2):
            for x in range(2):
                dsw(base + 8 + 2 * k + x, 1, 145, L_Q + 512 * k + 16 * x)

    def vload(i):
        bload(VRAW + i * 4, 4, VOFF, R_B, soff=f"s{8 + i // 4}", imm=(i % 4) * 256, flags=SF)

    NV2 = opts.get("nv2", 6)
    a.raw(f"s_waitcnt vmcnt({NV1})")
    stamp(1)
    a.raw("s_barrier")
    a.raw("s_cmp_lg_u32 s3, 0")
    a.raw("s_cbranch_scc1 L_a_nq")
    poll_flags(124, 128, "1", 125, pre_loaded=True)
    for (d, vo, so, im) in q1:
        bload(d, 4, vo, R_WS, soff=so, imm=im, flags="sc1")
    a.label("L_a_nq")
    for T in range(2):
        for s in range(4):
            dsr(KR + T * 16 + s * 4, 4, 116 + s, T * 4096)
    a.raw("s_barrier")
    for i in range(NV1, NV2):
        vload(i)
    if NV2 > NV1:
        a.raw("s_barrier")
        a.raw("s_cmp_lg_u32 s3, 0")
        a.raw("s_cbranch_scc1 L_a_nq1")
        for (d, vo, so, im) in q2:
            bload(d, 4, vo, R_WS, soff=so, imm=im, flags="sc1")
        a.label("L_a_nq1")
        a.raw("s_barrier")
    for i in range(NV2, 8):
        vload(i)
    a.raw("s_cmp_eq_u32 s3, 0")
    a.raw("s_cbranch_scc1 L_a_q")
    a.raw("s_cmp_lg_u32 s3, 1")
    a.raw("s_cbranch_scc1 L_a_nc")
    a.raw("s_cmp_ge_u32 s5, 8")
    a.raw("s_cbranch_scc1 L_a_nc")
    a.raw(f"s_waitcnt vmcnt({8 - NV1})")
    for k in range(4):
        bstore(12, 4, 7, R_WS, soff="s15", imm=k * 1024, flags="sc1")
    perm8(VRAW, VOP, tuple(range(NV1 // 2)))
    a.raw("s_branch L_a_nq2")
    a.label("L_a_nc")
    a.raw(f"s_waitcnt vmcnt({8 - NV1})")
    perm8(VRAW, VOP, tuple(range(NV1 // 2)))
    a.raw("s_branch L_a_nq2")
    a.label("L_a_q")
    nq2 = 4 if NV2 > NV1 else 0
    a.raw(f"s_waitcnt vmcnt({8 - NV1 + nq2})")
    q_check(128, "L_a_q1ok")
    if nq2:
        a.raw(f"s_waitcnt vmcnt({8 - NV2})")
        q_check(192, "L_a_q2ok")
    poll_masked(q1, 126, sleep=1)
    a.label("L_a_q1ok")
    q_fin(128)
    a.raw("s_branch L_a_q3")
    a.label("L_a_q2ok")
    q_fin(192)
    a.label("L_a_q3")
    a.raw("s_waitcnt lgkmcnt(0)")
    a.raw("s_barrier")
    for s in range(4):
        dsr(QR + 4 * s, 4, QOFF, L_Q + 64 * s)
    perm8(VRAW, VOP, tuple(range(NV1 // 2)))
    a.raw("s_branch L_a_qk")
    a.label("L_a_nq2")
    a.raw("s_waitcnt lgkmcnt(0)")
    a.raw("s_barrier")
    for s in range(4):
        dsr(QR + 4 * s, 4, QOFF, L_Q + 64 * s)
    a.label("L_a_qk")
    stamp(2)
    a.raw("s_waitcnt lgkmcnt(0)")
    for s in range(4):
        for T in range(2):
            a.mfma16(SACC + 4 * T, KR + T * 16 + s * 4, QR + 4 * s, None if s == 0 else SACC + 4 * T)
    SV = QR
    PK = QR + 8
    for d in range(4):
        a.op2e("v_cvt_pk_bf16_f32", PK + d, SACC + 2 * d, SACC + 2 * d + 1)
    unpack(SV, PK, 4)
    for i in range(0, 8, 2):
        a.valu(f"v_pk_mul_f32 {vr(SV + i, 2)}, {vr(SV + i, 2)}, s[10:11]", dst=[SV + i, SV + i + 1], src=[SV + i, SV + i + 1])
    for d in range(4):
        a.op2e("v_cvt_pk_bf16_f32", PK + d, SV + 2 * d, SV + 2 * d + 1)
    unpack(SV, PK, 4)
    MX, LS, TT, NM = QR + 12, QR + 13, QR + 14, SACC
    a.op3("v_max3_f32", MX, SV + 0, SV + 1, SV + 2)
    a.op3("v_max3_f32", TT, SV + 3, SV + 4, SV + 5)
    a.op3("v_max3_f32", MX, MX, SV + 6, SV + 7)
    a.op2("v_max_f32", MX, MX, TT)
    a.allreduce("v_max_f32", [MX], ["x16", "x32"], [TT])
    a.op2("v_mul_f32", MX, "s62", MX)
    a.op2("v_sub_f32", NM, "0", MX)
    a.op2("v_sub_f32", NM + 1, "0", MX)
    for i in range(0, 8, 2):
        a.valu(f"v_pk_fma_f32 {vr(SV + i, 2)}, {vr(SV + i, 2)}, s[62:63], {vr(NM, 2)}",
               dst=[SV + i, SV + i + 1], src=[SV + i, SV + i + 1, NM, NM + 1])
    for i in range(8):
        a.op1("v_exp_f32", SV + i, SV + i, kind="trans")
    for d in range(4):
        a.op2e("v_cvt_pk_bf16_f32", PR + d, SV + 2 * d, SV + 2 * d + 1)
    pk("v_pk_add_f32", SV, SV, SV + 2)
    pk("v_pk_add_f32", SV + 4, SV + 4, SV + 6)
    pk("v_pk_add_f32", SV, SV, SV + 4)
    a.op2("v_add_f32", LS, SV, SV + 1)
    for c in range(4):
        for x in range(4):
            a.cndmask(PM + 4 * c + x, "0", PR + x, sr(S_MASK + 2 * c, 2))
    a.raw("s_waitcnt vmcnt(0)")
    stamp(3)
    perm8(VRAW, VOP, tuple(range(NV1 // 2, 4)))
    for c in range(4):
        for ch in range(2):
            a.mfma16(OACC + 4 * ch, VOP + 4 * (ch * 4 + c), PM + 4 * c, None if c == 0 else OACC + 4 * ch)
    a.allreduce("v_add_f32", [LS], ["x16", "x32"], [TT])
    a.raw("s_mov_b64 exec, 15")
    dsw(MX, 2, 146, L_ST)
    a.raw("s_mov_b64 exec, -1")
    for ch in range(2):
        dsw(OACC + 4 * ch, 4, 147, L_K + 1024 * ch)
    a.raw("s_waitcnt lgkmcnt(0)")
    a.raw("s_barrier")
    a.raw("s_cmp_ge_u32 s3, 2")
    a.raw("s_cbranch_scc1 L_a_fin")
    OW, STV = 16, 48
    for k in range(4):
        dsr(STV + 4 * k, 4, 149, L_ST + 16 * k)
    for w in range(8):
        dsr(OW + 4 * w, 4, 148, L_K + 8192 * w)
    a.raw("s_waitcnt lgkmcnt(8)")
    Mx, Lx, E0 = 64, 65, 66
    a.op3("v_max3_f32", Mx, STV + 0, STV + 2, STV + 4)
    a.op3("v_max3_f32", Lx, STV + 6, STV + 8, STV + 10)
    a.op3("v_max3_f32", Mx, Mx, STV + 12, STV + 14)
    a.op2("v_max_f32", Mx, Mx, Lx)
    for w in range(8):
        a.op2("v_sub_f32", E0 + 2 * w, STV + 2 * w, Mx)
    for w in range(8):
        a.op1("v_exp_f32", E0 + 2 * w, E0 + 2 * w, kind="trans")
    a.op2("v_mul_f32", Lx, E0, STV + 1)
    a.op2("v_mul_f32", 84, E0 + 2, STV + 3)
    for w in range(2, 8, 2):
        a.op2("v_fmac_f32", Lx, E0 + 2 * w, STV + 2 * w + 1)
        a.op2("v_fmac_f32", 84, E0 + 2 * w + 2, STV + 2 * w + 3)
    a.op2("v_add_f32", Lx, Lx, 84)
    a.op1("v_rcp_f32", 82, Lx, kind="trans")
    a.op1("v_log_f32", 83, Lx, kind="trans")
    a.raw("s_waitcnt lgkmcnt(0)")

    def pkb(op, d, e, x, z=None):
        t = f"{op} {vr(d, 2)}, {vr(e, 2)}, {vr(x, 2)}" + (f", {vr(z, 2)}" if z is not None else "")
        t += " op_sel_hi:[0,1,1]" if z is not None else " op_sel_hi:[0,1]"
        a.valu(t, dst=[d, d + 1], src=[e, x, x + 1] + ([z, z + 1] if z is not None else []))
    for h in range(2):
        pkb("v_pk_mul_f32", 84 + 2 * h, E0, OW + 2 * h)
        pkb("v_pk_mul_f32", 88 + 2 * h, E0 + 2, OW + 4 + 2 * h)
    for w in range(2, 8, 2):
        for h in range(2):
            pkb("v_pk_fma_f32", 84 + 2 * h, E0 + 2 * w, OW + 4 * w + 2 * h, 84 + 2 * h)
            pkb("v_pk_fma_f32", 88 + 2 * h, E0 + 2 * w + 2, OW + 4 * w + 4 + 2 * h, 88 + 2 * h)
    a.op2("v_add_f32", 83, 83, Mx)
    for h in range(2):
        pk("v_pk_add_f32", 84 + 2 * h, 84 + 2 * h, 88 + 2 * h)
    for h in range(2):
        pkb("v_pk_mul_f32", 84 + 2 * h, 82, 84 + 2 * h)
    for r in range(4):
        a.op3("v_perm_b32", 84 + r, 84 + r, 83, f"s{16 + r}")
    for r in range(4):
        a.op2("v_min_u32", 84 + r, "-2", 84 + r)
    if opts.get("dual", 0):
        a.raw(f"s_add_u32 s6, s13, {OX - OB}")
        bstore(84, 4, 7, R_WS, soff="s6")
    bstore(84, 4, 7, R_WS, soff="s13", flags="sc1")
    stamp(4)
    a.raw("s_branch L_exit")
    a.label("L_a_fin")
    a.raw("s_cmp_lg_u32 s3, 2")
    a.raw("s_cbranch_scc1 L_exit")
    a.raw("s_cmp_ge_u32 s5, 8")
    a.raw("s_cbranch_scc1 L_exit")
    a.raw("s_lshr_b32 s6, s14, 4")
    a.raw("s_lshl_b32 s6, s6, 7")
    a.raw("s_and_b32 s7, s14, 3")
    a.raw("s_lshl_b32 s7, s7, 5")
    a.raw("s_add_u32 s6, s6, s7")
    a.raw("s_bfe_u32 s7, s14, 0x20002")
    a.raw("s_lshl_b32 s7, s7, 1")
    a.raw("s_add_u32 s6, s6, s7")
    a.op2("v_and_b32", 2, "3", 0)
    a.op2("v_lshlrev_b32", 2, "3", 2)
    a.op2("v_bfe_u32" if False else "v_lshrrev_b32", 3, "3", 0)
    a.op2("v_and_b32", 3, "1", 3)
    a.op3("v_add3_u32", 2, 2, 3, "s6")
    a.op2("v_and_b32", 3, "4", 0)
    a.op2("v_lshlrev_b32", 4, "1", 2)
    a.op3("v_lshl_add_u32", 4, 3, "8", 4)
    a.mem(f"buffer_load_ushort v10, v4, {sr(R_A, 4)}, 0 offen", src=[4], dst=[10])
    a.op2("v_lshrrev_b32", 5, "6", 2)
    a.op2("v_lshlrev_b32", 5, "9", 5)
    a.op3("v_lshl_add_u32", 5, 3, "6", 5)
    a.op2("v_and_b32", 6, "6", 2)
    a.op3("v_lshl_add_u32", 5, 6, "5", 5)
    a.op2("v_and_b32", 6, "56", 2)
    a.op2("v_add_u32", 5, 5, 6)
    a.op2("v_and_b32", 6, "1", 2)
    a.op3("v_lshl_add_u32", 5, 6, "2", 5)
    a.op2("v_lshrrev_b32", 6, "4", 0)
    a.op3("v_lshl_add_u32", 5, 6, "12", 5)
    a.op2("v_lshrrev_b32", 6, "2", 0)
    a.op2("v_and_b32", 6, "3", 6)
    for r in (1, 2, 3):
        a.cmp("v_cmp_eq_u32", sr(S_MASK + 2 * (r - 1), 2), str(r), 6)
    a.op2("v_lshlrev_b32", 6, "2", 0)
    F0 = 16
    for r in range(4):
        a.op1("v_mov_b32", F0 + 12 + r, "0")
    poll_flags(6, 0, "0xff", 8)
    a.raw(f"s_mov_b32 s8, {AB}")
    a.raw(f"s_mov_b32 s9, {AB + 16384}")
    poll_masked([(12, 5, "s8", 0), (13, 5, "s9", 0)], 8, sleep=4, width=1)
    stamp(4)
    a.op2("v_add_f32", 12, 12, 13)
    a.allreduce("v_add_f32", [12], ["x16", "x32"], [13])
    round_bf16(12, 12)
    a.op2("v_lshlrev_b32", 10, "16", 10)
    a.op2("v_add_f32", 12, 12, 10)
    round_bf16(12, 12)
    poll_masked([(F0 + 4 * k, 7, "s15", k * 1024) for k in range(4)], 8, sleep=opts.get("sleep_f", 2), last_hi="0")
    stamp(5)
    for r in range(4):
        a.op2("v_add_f32", F0 + r, F0 + r, F0 + 4 + r)
        a.op2("v_add_f32", F0 + 8 + r, F0 + 8 + r, F0 + 12 + r)
    for r in range(4):
        a.op2("v_add_f32", F0 + r, F0 + r, F0 + 8 + r)
    a.allreduce("v_add_f32", [F0 + r for r in range(4)], ["row_ror:4", "row_ror:8"], [])
    for r in (1, 2, 3):
        a.cndmask(F0, F0, F0 + r, sr(S_MASK + 2 * (r - 1), 2))
    a.allreduce("v_add_f32", [F0], ["x16", "x32"], [F0 + 4])
    round_bf16(F0, F0)
    a.op2("v_add_f32", F0, F0, 12)
    a.op2e("v_cvt_pk_bf16_f32", F0, F0, F0)
    a.raw("s_mov_b64 exec, 0xffff")
    bstore(F0, 1, 4, R_D, op="buffer_store_short", flags=opts.get("outf", ""))
    a.raw("s_mov_b64 exec, -1")
    stamp(6)
    a.raw("s_branch L_exit")

    a.label("L_s3")
    WR3, WP3, C, T = 16, 48, 80, 96
    srd(R_D, P_WO, 4096 * 1024)
    a.op2("v_and_b32", 2, "8", 0)
    a.op3("v_lshl_add_u32", 2, 2, "3", 3)
    a.op2("v_lshlrev_b32", 2, "10", 2)
    a.op2("v_and_b32", 4, "7", 0)
    a.op3("v_lshl_add_u32", 2, 4, "4", 2)
    a.raw("s_lshl_b32 s6, s4, 2")
    a.raw("s_lshr_b32 s7, s3, 1")
    a.raw("s_add_u32 s6, s6, s7")
    a.raw("s_lshl_b32 s6, s6, 7")
    a.raw("s_and_b32 s7, s3, 1")
    a.raw("s_lshl_b32 s7, s7, 2")
    a.raw("s_add_u32 s6, s6, s7")
    a.raw("s_lshl_b32 s6, s6, 10")
    a.raw("s_lshl_b32 s7, s5, 7")
    a.raw("s_add_u32 s6, s6, s7")
    for i in range(8):
        bload(WR3 + 4 * i, 4, 2, R_D, soff="s6", flags=SF)
        if i < 7:
            a.raw("s_add_u32 s6, s6, 8192")
    a.op2("v_lshlrev_b32", 5, "11", 3)
    a.op2("v_and_b32", 6, "15", 0)
    a.op3("v_lshl_add_u32", 8, 6, "4", 5)
    a.raw("s_lshl_b32 s6, s3, 8")
    a.op3("v_lshl_add_u32", 9, 6, "3", "s6")
    a.op2("v_and_b32", 5, "32", 0)
    a.op3("v_lshl_add_u32", 9, 5, "2", 9)
    a.op2("v_and_b32", 5, "1", 3)
    a.op3("v_lshl_add_u32", 9, 5, "2", 9)
    a.op2("v_and_b32", 5, "1", 0)
    a.op3("v_lshl_add_u32", 5, 3, "1", 5)
    a.op3("v_lshl_add_u32", 10, 5, "4", "s6")
    a.op2("v_and_b32", 5, "2", 0)
    a.op3("v_lshl_add_u32", 10, 5, "6", 10)
    a.op3("v_lshl_add_u32", 5, 3, "3", 4)
    a.raw("s_lshl_b32 s7, s3, 9")
    a.op3("v_lshl_add_u32", 11, 5, "4", "s7")
    a.op2("v_and_b32", 5, "31", 0)
    a.op2("v_lshlrev_b32", 5, "4", 5)
    a.op2("v_and_b32", 6, "32", 0)
    a.op3("v_lshl_add_u32", 12, 6, "6", 5)
    a.op2("v_lshlrev_b32", 13, "3", 0)
    a.raw("s_lshl_b32 s7, s4, 15")
    a.raw("s_add_u32 s6, s6, s7")
    for k in range(4):
        a.raw(f"s_add_u32 s{8 + k}, s6, {(OX if opts.get('dual', 0) else OB) + k * 8192}")
    a.raw("s_lshl_b32 s6, s4, 3")
    a.raw("s_add_u32 s6, s6, s5")
    a.raw("s_lshl_b32 s12, s6, 9")
    a.raw(f"s_add_u32 s12, s12, {AB}")
    a.op2("v_lshrrev_b32", 5, "2", 0)
    a.op2("v_and_b32", 5, "3", 5)
    for c in range(4):
        a.cmp("v_cmp_eq_u32", sr(S_MASK + 2 * c, 2), str(c), 5)
    a.op2("v_and_b32", 5, "8", 0)
    a.cmp("v_cmp_ne_u32", "s[14:15]", "0", 5)
    a.raw("s_mov_b32 s13, 0x0c0c0400")
    a.raw("s_waitcnt vmcnt(0)")
    stamp(1)
    perm8(WR3, WP3)
    a.raw("s_cmp_lg_u32 s3, 0")
    a.raw("s_cbranch_scc1 L_s3_nf")
    poll_flags(123, 0, "1", 5, sleep=8)
    a.label("L_s3_nf")
    a.raw("s_barrier")
    stamp(3)
    poll_masked([(C + 4 * k, 8, f"s{8 + k}", 0) for k in range(4)], 5, sleep=opts.get("sleep_o", 2),
                alt=((OB - OX) & 0xffffffff) if opts.get("dual", 0) else None)
    stamp(4)
    LK = T
    for k in range(4):
        a.op3("v_perm_b32", LK + k, C + 4 * k + 1, C + 4 * k, "s13")
        a.op3("v_perm_b32", T + 4 + k, C + 4 * k + 3, C + 4 * k + 2, "s13")
    for k in range(4):
        a.op3("v_perm_b32", LK + k, T + 4 + k, LK + k, f"s{S_SELLO}")
    MM = T + 4
    for b in range(2):
        a.op2("v_max_f32", MM + b, LK + 2 * b, LK + 2 * b + 1)
    a.allreduce("v_max_f32", [MM, MM + 1], ["x16", "x32"], [T + 6, T + 7])
    for k in range(4):
        a.op2("v_sub_f32", LK + k, LK + k, MM + (k >> 1))
    for k in range(4):
        a.op1("v_exp_f32", LK + k, LK + k, kind="trans")
    AC = T + 8
    SS = T + 16
    for b in range(2):
        for r in range(4):
            a.op2("v_mul_f32", AC + 4 * b + r, LK + 2 * b, C + 8 * b + r)
    for b in range(2):
        for r in range(4):
            a.op2("v_fmac_f32", AC + 4 * b + r, LK + 2 * b + 1, C + 8 * b + 4 + r)
        a.op2("v_add_f32", SS + b, LK + 2 * b, LK + 2 * b + 1)
    a.swap32(SS, SS + 1)
    for r in range(4):
        a.swap32(AC + r, AC + 4 + r)
    a.op2("v_add_f32", SS, SS, SS + 1)
    for r in range(4):
        a.op2("v_add_f32", AC + r, AC + r, AC + 4 + r)
    a.op1("v_mov_b32", SS + 1, SS)
    a.swap16(AC, AC + 2)
    a.swap16(AC + 1, AC + 3)
    a.swap16(SS, SS + 1)
    a.op2("v_add_f32", SS, SS, SS + 1)
    a.op2("v_add_f32", AC, AC, AC + 2)
    a.op2("v_add_f32", AC + 1, AC + 1, AC + 3)
    a.op1("v_rcp_f32", SS, SS, kind="trans")
    for r in range(2):
        a.op2("v_mul_f32", AC + r, AC + r, SS)
    a.op2e("v_cvt_pk_bf16_f32", AC, AC, AC + 1)
    dsw(AC, 1, 9, L_ON)
    a.raw("s_waitcnt lgkmcnt(0)")
    dsr(T, 4, 10, L_ON)
    a.raw("s_waitcnt lgkmcnt(0)")
    AM, D0 = 16, 32
    for c in range(4):
        for x in range(4):
            a.cndmask(AM + 4 * c + x, "0", T + x, sr(S_MASK + 2 * c, 2))
        for t in range(2):
            a.mfma16(D0 + 4 * t, AM + 4 * c, WP3 + 4 * (2 * c + t), None if c == 0 else D0 + 4 * t)
    for b in range(2):
        for t in range(2):
            a.cndmask(T + 2 * b + t, D0 + 4 * t + 2 * b, D0 + 4 * t + 2 * b + 1, "s[14:15]")
    a.allreduce("v_add_f32", [T, T + 1, T + 2, T + 3], ["row_ror:8"], [])
    a.raw("s_mov_b32 exec_lo, 0x00ff00ff")
    a.raw("s_mov_b32 exec_hi, 0x00ff00ff")
    dsw(T, 4, 11, L_P3)
    a.raw("s_mov_b64 exec, -1")
    a.raw("s_waitcnt lgkmcnt(0)")
    a.raw("s_barrier")
    a.raw("s_cmp_lg_u32 s3, 2")
    a.raw("s_cbranch_scc1 L_exit")
    for w in range(4):
        dsr(T + 4 * w, 4, 12, L_P3 + 512 * w)
    a.raw("s_waitcnt lgkmcnt(0)")
    for r in range(4):
        a.op2("v_add_f32", T + r, T + r, T + 4 + r)
        a.op2("v_add_f32", T + 8 + r, T + 8 + r, T + 12 + r)
    for r in range(4):
        a.op2("v_add_f32", T + r, T + r, T + 8 + r)
    a.swap32(T, T + 2)
    a.swap32(T + 1, T + 3)
    a.op2("v_add_f32", T, T, T + 2)
    a.op2("v_add_f32", T + 1, T + 1, T + 3)
    for r in range(2):
        a.op2("v_min_u32", T + r, "-2", T + r)
    bstore(T, 2, 13, R_WS, soff="s12", flags="sc1")
    stamp(2)
    a.raw("s_branch L_exit")

    a.label("L_ffn")
    a.op2("v_lshrrev_b32", 2, "3", 0)
    a.op2("v_and_b32", 4, "3", 0)
    a.op3("v_lshl_add_u32", 2, 2, "2", 4)
    a.op2("v_lshlrev_b32", 2, "4", 2)
    a.op2("v_and_b32", 5, "4", 0)
    a.op3("v_lshl_add_u32", 120, 5, "8", 2)
    a.op3("v_lshl_add_u32", 2, 3, "2", 4)
    a.raw("s_lshl_b32 s6, s3, 7")
    a.op3("v_lshl_add_u32", 121, 2, "3", "s6")
    a.op3("v_lshl_add_u32", 121, 5, "8", 121)
    a.raw("s_lshl_b32 s6, s3, 8")
    a.op3("v_lshl_add_u32", 122, 2, "4", "s6")
    n32_masks(2)
    n32_out_addr(119, 2)
    W1R, W1P, W2R, W2P, C, T = 20, 36, 128, 160, 96, 64
    a.raw("s_mul_i32 s6, s4, 7")
    a.raw("s_add_u32 s6, s6, s5")
    a.raw(f"s_sub_u32 s{S_PHI}, s6, 8")
    srd(R_D, P_W1, 512 * 3584)
    srd(R_B, P_W2, 1792 * 1024)

    def ffn_flags():
        a.op2("v_lshlrev_b32", 6, "2", 0)
        a.raw("s_cmp_lg_u32 s3, 0")
        a.raw("s_cbranch_scc1 L_f_nf")
        poll_flags(6, 0, "0xff", 5, sleep=16)
        a.label("L_f_nf")
        a.raw("s_barrier")
    if opts.get("flate", 0) == 1:
        ffn_flags()
    if opts.get("flate", 0) == 2:
        a.raw("s_cmp_lg_u32 s3, 0")
        a.raw("s_cbranch_scc1 L_f_nf0")
        poll_flags(123, 0, "1", 5, sleep=8)
        a.label("L_f_nf0")
        a.raw("s_barrier")
    a.op2("v_and_b32", 2, "12", 0)
    a.op2("v_lshlrev_b32", 2, "2", 2)
    a.op3("v_lshl_add_u32", 2, 3, "1", 2)
    a.op2("v_mul_u32_u24", 2, "3584", 2)
    a.op2("v_and_b32", 4, "3", 0)
    a.op3("v_lshl_add_u32", 2, 4, "4", 2)
    a.raw(f"s_mul_i32 s6, s3, {64 * 3584}")
    a.raw(f"s_lshl_b32 s7, s{S_PHI}, 6")
    a.raw("s_add_u32 s6, s6, s7")
    for i in range(4):
        a.raw(f"s_add_u32 s7, s6, {((i >> 1) * 8 + (i & 1)) * 3584}")
        bload(W1R + 4 * i, 4, 2, R_D, soff="s7", flags=SF)
    a.raw("s_cmp_ge_u32 s3, 4")
    a.raw("s_cbranch_scc1 L_f_n2")
    a.op2("v_lshlrev_b32", 2, "13", 3)
    a.op2("v_and_b32", 4, "15", 0)
    a.op3("v_lshl_add_u32", 2, 4, "4", 2)
    a.raw(f"s_lshl_b32 s6, s{S_PHI}, 15")
    a.raw("s_lshl_b32 s7, s3, 8")
    a.raw("s_add_u32 s6, s6, s7")
    a.raw("s_add_u32 s7, s6, 4096")
    for i in range(8):
        bload(W2R + 4 * i, 4, 2, R_B, soff="s6" if i < 4 else "s7", imm=(i & 3) * 1024, flags=SF)
    a.label("L_f_n2")
    a.op2("v_and_b32", 4, "31", 0)
    a.op2("v_and_b32", 5, "32", 0)
    a.op2("v_lshlrev_b32", 5, "7", 5)
    a.op3("v_lshl_add_u32", 8, 4, "4", 5)
    a.op2("v_and_b32", 5, "15", 0)
    a.raw("s_lshl_b32 s6, s3, 7")
    a.op3("v_lshl_add_u32", 9, 5, "3", "s6")
    a.op2("v_and_b32", 5, "16", 0)
    a.op3("v_lshl_add_u32", 9, 5, "6", 9)
    a.op2("v_and_b32", 6, "3", 0)
    a.op3("v_lshl_add_u32", 6, 6, "5", "s6")
    a.op3("v_lshl_add_u32", 6, 5, "6", 6)
    a.op2("v_and_b32", 5, "12", 0)
    a.op2("v_add_u32", 6, 6, 5)
    bload(10, 1, 6, R_A)
    bload(11, 1, 6, R_A, imm=16)
    a.raw("s_lshl_b32 s6, s3, 9")
    for k in range(4):
        a.raw(f"s_add_u32 s{8 + k}, s6, {AB + k * 8192}")
    a.op2("v_and_b32", 5, "1", 0)
    a.op2("v_lshlrev_b32", 5, "6", 5)
    a.op3("v_lshl_add_u32", 5, 3, "4", 5)
    a.op2("v_lshrrev_b32", 6, "1", 0)
    a.op2("v_and_b32", 6, "7", 6)
    a.op1("v_mov_b32", 4, "0x80")
    for c in range(8):
        a.cmp("v_cmp_eq_u32", "vcc", str(c), 6)
        a.cndmask(192 + c, 4, 5, "vcc")
    for r in range(4):
        a.op1("v_mov_b32", 12 + r, "0")
    dsw(12, 4, 4, L_G)
    a.op2("v_and_b32", 5, "15", 0)
    a.op2("v_lshrrev_b32", 5, "2", 5)
    a.op3("v_lshl_add_u32", 5, 3, "2", 5)
    a.op2("v_lshlrev_b32", 5, "12", 5)
    a.op2("v_and_b32", 6, "3", 0)
    a.op3("v_lshl_add_u32", 200, 6, "4", 5)
    a.raw("s_lshl_b32 s12, s3, 16")
    a.raw(f"s_lshl_b32 s6, s{S_PHI}, 6")
    a.raw("s_add_u32 s12, s12, s6")
    a.raw(f"s_add_u32 s12, s12, {FB}")
    a.op2("v_lshlrev_b32", 6, "2", 0)
    a.raw("s_waitcnt vmcnt(0)")
    stamp(1)
    perm4(W1R, W1P)
    perm8(W2R, W2P)
    unpack(12, 10, 2)
    if opts.get("flate", 0) != 1:
        ffn_flags()
    stamp(3)
    poll_masked([(C + 4 * k, 8, f"s{8 + k}", 0) for k in range(4)], 4, sleep=opts.get("sleep_a", 2))
    stamp(5)
    pk("v_pk_add_f32", C, C, C + 4)
    pk("v_pk_add_f32", C + 2, C + 2, C + 6)
    pk("v_pk_add_f32", C + 8, C + 8, C + 12)
    pk("v_pk_add_f32", C + 10, C + 10, C + 14)
    pk("v_pk_add_f32", C, C, C + 8)
    pk("v_pk_add_f32", C + 2, C + 2, C + 10)
    a.allreduce("v_add_f32", [C + r for r in range(4)], ["x32"], [C + 4 + r for r in range(4)])
    a.op2e("v_cvt_pk_bf16_f32", C + 4, C, C + 1)
    a.op2e("v_cvt_pk_bf16_f32", C + 5, C + 2, C + 3)
    unpack(C, C + 4, 2)
    pk("v_pk_add_f32", C, C, 12)
    pk("v_pk_add_f32", C + 2, C + 2, 14)
    a.op2e("v_cvt_pk_bf16_f32", C + 4, C, C + 1)
    a.op2e("v_cvt_pk_bf16_f32", C + 5, C + 2, C + 3)
    a.raw("s_mov_b32 exec_hi, 0")
    dsw(C + 4, 2, 9, L_H)
    a.raw("s_mov_b64 exec, -1")
    a.raw("s_waitcnt lgkmcnt(0)")
    a.raw("s_barrier")
    for s in range(2):
        dsr(XS + 4 * s, 4, 120, L_H + 512 * s)
    dsr(XA, 2, 121, L_H)
    a.raw("s_waitcnt lgkmcnt(0)")
    ln_norm4(XS, XA, 64, 80)
    n32_core(XA, W1P, 64, 80, 122)
    a.raw("s_waitcnt lgkmcnt(0)")
    a.raw("s_barrier")
    a.raw("s_cmp_ge_u32 s3, 4")
    a.raw("s_cbranch_scc1 L_exit")
    n32_final(7, 80)
    round_bf16(80, 80)
    a.op2("v_mul_f32", 81, "0xbfb8aa3b", 80)
    a.op1("v_exp_f32", 81, 81, kind="trans")
    a.op2("v_add_f32", 81, "1.0", 81)
    a.op1("v_rcp_f32", 81, 81, kind="trans")
    a.op2("v_mul_f32", 80, 80, 81)
    a.op2e("v_cvt_pk_bf16_f32", 80, 80, 80)
    dsw(80, 1, 119, L_G, op="ds_write_b16")
    a.raw("s_waitcnt lgkmcnt(0)")
    stamp(4)
    for c in range(8):
        dsr(84 + 4 * c, 4, 192 + c, L_G)
    for c in range(8):
        a.raw(f"s_waitcnt lgkmcnt({7 - c})")
        a.mfma16(64, 84 + 4 * c, W2P + 4 * c, None if c == 0 else 64)
    for r in range(4):
        a.op2("v_min_u32", 64 + r, "-2", 64 + r)
    bstore(64, 4, 200, R_WS, soff="s12", flags="sc1")
    stamp(6)
    a.label("L_exit")
    dump_stamps()
    a.label("L_end")
    a.raw("s_endpgm")

    if opts.get("order", 0) == 1:
        L, m = a.lines, marks
        pro, t0, a0, rest = L[:m["tail0"]], L[m["tail0"]:m["att0"]], L[m["att0"]:m["tail1"]], L[m["tail1"]:]
        pro[-1] = "    s_cbranch_scc1 L_tail0"
        a.lines = pro + a0 + ["L_tail0:"] + t0 + rest

    hdr = open(f"cdna_kernels/{NAME}.s.ref").read().split("; Override launch")[0]
    out = hdr
    out += "; Override launch geometry by editing the next line (default: block=256,\n"
    out += "; grid=ceil(out_elems/256), lds=0). Harness parses it; keep it on one line.\n"
    out += f"; @launch grid=(256,1,1) block=(512,1,1) lds={LDS_BYTES}\n"
    out += '.amdgcn_target "amdgcn-amd-amdhsa--gfx950"\n.text\n'
    out += f".globl {NAME}_kernel\n.p2align 8\n.type {NAME}_kernel,@function\n{NAME}_kernel:\n"
    out += a.text()
    out += '.section .rodata,"a"\n.p2align 6\n'
    out += f".amdhsa_kernel {NAME}_kernel\n"
    out += "  .amdhsa_next_free_vgpr 208\n  .amdhsa_next_free_sgpr 102\n  .amdhsa_accum_offset 208\n"
    out += "  .amdhsa_group_segment_fixed_size 0\n  .amdhsa_kernarg_size 88\n  .amdhsa_user_sgpr_count 2\n"
    out += "  .amdhsa_user_sgpr_kernarg_segment_ptr 1\n  .amdhsa_system_sgpr_workgroup_id_x 1\n"
    out += "  .amdhsa_float_denorm_mode_32 3\n"
    out += ".end_amdhsa_kernel\n"
    return out


if __name__ == "__main__":
    debug = "--debug" in sys.argv
    path = [x for x in sys.argv[1:] if not x.startswith("--")]
    path = path[0] if path else f"cdna_kernels/{NAME}.s"
    opts = {}
    for x in sys.argv[1:]:
        if x.startswith("--opt="):
            k, v = x[6:].split(":")
            opts[k] = int(v) if v.lstrip("-").isdigit() else v
    open(path, "w").write(gen(debug, opts))
    print("wrote", path)
```

```python
import sys
from asmlib import Asm, vr, sr

NAME = "sequential_preLN__sliding_block_cached__dense_activation_silu__decode"

QB = 0
OB = 64 * 1024
AB = 384 * 1024
FB = 416 * 1024
OX = 704 * 1024
WS_BYTES = 1 << 20
TS_BASE = WS_BYTES
WS_SIZE_DBG = WS_BYTES + 256 * 8 * 128

L_Q = 0
L_ST = 1024
L_K = 2048
L_ON = 0
L_H = 2048
L_G = 4096
L_P3 = 4352
LDS_BYTES = 2048 + 65536

LOG2E = "0x3fb8aa3b"
SCALE = "0x3db504f3"
INV512 = "0x3b000000"
EPS = "0x3727c5ac"
POLL_MAX = 1 << 15

S_WG, S_WAVE, S_G, S_IDX = 2, 3, 4, 5
P_X, P_K, P_V, P_WQ, P_WO, P_W1, P_W2, P_OUT, P_DBG, P_WS = 16, 18, 20, 22, 24, 28, 30, 32, 34, 36
S_CNT = 38
S_PHI = 39
R_WS, R_A, R_B, R_C, R_D = 40, 44, 48, 52, 56
S_SELLO, S_SELHI = 60, 61
S_PM = 64
S_MASK = 80
S_TS = 88


def gen(debug=False, opts=None):
    opts = opts or {}
    SF = opts.get("stream_flags", "nt")
    a = Asm()
    marks = {}

    def mark(name):
        marks[name] = len(a.lines)

    def stamp(k):
        if debug:
            a.raw(f"s_memrealtime {sr(S_TS + 2 * k, 2)}")

    def dump_stamps():
        if not debug:
            return
        a.raw("s_waitcnt vmcnt(0) lgkmcnt(0)")
        a.raw("s_mov_b64 exec, 1")
        a.raw(f"s_lshl_b32 s6, s{S_WG}, 3")
        a.raw(f"s_add_u32 s6, s6, s{S_WAVE}")
        a.raw("s_lshl_b32 s6, s6, 7")
        a.raw(f"s_add_u32 s6, s6, {TS_BASE}")
        a.op1("v_mov_b32", 1, "s6")
        for k in range(7):
            a.op1("v_mov_b32", 2, f"s{S_TS + 2 * k}")
            a.op1("v_mov_b32", 3, f"s{S_TS + 2 * k + 1}")
            a.mem(f"buffer_store_dwordx2 v[2:3], v1, {sr(R_WS, 4)}, 0 offen offset:{8 * k}", src=[1, 2, 3])
            a.nop(2)

    def srd(dst, ptr, size):
        a.raw(f"s_mov_b32 s{dst}, s{ptr}")
        a.raw(f"s_and_b32 s{dst + 1}, s{ptr + 1}, 0xffff")
        a.raw(f"s_mov_b32 s{dst + 2}, {size}")
        a.raw(f"s_mov_b32 s{dst + 3}, 0x20000")

    def srd_ws():
        srd(R_WS, P_WS, WS_SIZE_DBG if debug else WS_BYTES)

    def bload(d, n, off, srdb, soff="0", imm=0, flags=""):
        op = {1: "buffer_load_dword", 2: "buffer_load_dwordx2", 4: "buffer_load_dwordx4"}[n]
        t = f"{op} {vr(d, n)}, v{off}, {sr(srdb, 4)}, {soff} offen"
        if imm:
            t += f" offset:{imm}"
        if flags:
            t += " " + flags
        a.mem(t, src=[off], dst=list(range(d, d + n)))

    def bstore(s, n, off, srdb, soff="0", imm=0, flags="", op=None):
        op = op or {1: "buffer_store_dword", 2: "buffer_store_dwordx2", 4: "buffer_store_dwordx4"}[n]
        t = f"{op} {vr(s, n)}, v{off}, {sr(srdb, 4)}, {soff} offen"
        if imm:
            t += f" offset:{imm}"
        if flags:
            t += " " + flags
        regs = list(range(s, s + n))
        a.mem(t, src=[off] + regs, wide_store=regs if n == 4 else ())

    def dsr(d, n, addr, off):
        op = {1: "ds_read_b32", 2: "ds_read_b64", 4: "ds_read_b128"}[n]
        a.mem(f"{op} {vr(d, n)}, v{addr} offset:{off}", src=[addr], dst=list(range(d, d + n)))

    def dsw(s, n, addr, off, op=None):
        op = op or {1: "ds_write_b32", 2: "ds_write_b64", 4: "ds_write_b128"}[n]
        a.mem(f"{op} v{addr}, {vr(s, n)} offset:{off}", src=[addr] + list(range(s, s + n)))

    def poll_flags(voff, imm, lanes, tmp, pre_loaded=False, sleep=4):
        lp, dn, ck = a.newlabel("fp"), a.newlabel("fd"), a.newlabel("fc")
        a.raw(f"s_mov_b32 s{S_CNT}, {POLL_MAX}")
        a.raw(f"s_mov_b64 exec, {lanes}")
        if pre_loaded:
            a.raw(f"s_branch {ck}")
        a.label(lp)
        bload(tmp, 1, voff, R_C, imm=imm, flags="sc1")
        a.raw("s_waitcnt vmcnt(0)")
        a.label(ck)
        a.valu(f"v_cmp_ne_u32_e32 vcc, 1, v{tmp}", src=[tmp], sdst=["vcc"])
        a.raw(f"s_cbranch_vccz {dn}")
        a.raw(f"s_sleep {sleep}")
        a.raw(f"s_sub_u32 s{S_CNT}, s{S_CNT}, 1")
        a.raw(f"s_cmp_eq_u32 s{S_CNT}, 0")
        a.raw(f"s_cbranch_scc0 {lp}")
        a.label(dn)
        a.raw("s_mov_b64 exec, -1")

    def poll_masked(loads, tmp, sleep=2, width=4, last_hi=None, alt=None):
        n = len(loads)
        lp, dn = a.newlabel("pl"), a.newlabel("pd")
        a.raw(f"s_mov_b32 s{S_CNT}, {POLL_MAX}")
        for k, (d, vo, so, im) in enumerate(loads):
            if last_hi is not None and k == n - 1:
                a.raw(f"s_mov_b32 exec_hi, {last_hi}")
            bload(d, width, vo, R_WS, soff=so, imm=im, flags="sc1")
        if last_hi is not None:
            a.raw("s_mov_b64 exec, -1")
        a.label(lp)
        a.raw("s_waitcnt vmcnt(0)")
        for k, (d, vo, so, im) in enumerate(loads):
            t = tmp + (k & 1)
            if width == 4:
                a.op3("v_max3_u32", t, d, d + 1, d + 2)
                a.op2("v_max_u32", t, t, d + 3)
            else:
                t = d
            a.cmp("v_cmp_eq_u32", sr(S_PM + 2 * k, 2), "-1", t)
        a.nop(1)
        if n == 1:
            a.raw(f"s_cmp_eq_u64 {sr(S_PM, 2)}, 0")
        else:
            a.raw(f"s_or_b64 s[6:7], {sr(S_PM, 2)}, {sr(S_PM + 2, 2)}")
            for k in range(2, n):
                a.raw(f"s_or_b64 s[6:7], s[6:7], {sr(S_PM + 2 * k, 2)}")
            a.raw("s_cmp_eq_u64 s[6:7], 0")
        a.raw(f"s_cbranch_scc1 {dn}")
        if sleep:
            a.raw(f"s_sleep {sleep}")
        if alt is not None:
            a.raw(f"s_and_b32 s6, s{S_CNT}, {opts.get('altm', 3)}")
            a.raw("s_cmp_eq_u32 s6, 1")
            a.raw(f"s_cselect_b32 s7, {alt}, 0")
            a.raw("s_cmp_eq_u32 s6, 0")
            a.raw(f"s_cselect_b32 s7, {-alt & 0xffffffff:#x}, s7")
            a.raw(f"s_cmp_eq_u32 s{S_CNT}, {POLL_MAX}")
            a.raw("s_cselect_b32 s7, 0, s7")
            for so_ in dict.fromkeys(l[2] for l in loads):
                a.raw(f"s_add_u32 {so_}, {so_}, s7")
        for k, (d, vo, so, im) in enumerate(loads):
            sk = a.newlabel("sk")
            a.raw(f"s_mov_b64 exec, {sr(S_PM + 2 * k, 2)}")
            a.raw(f"s_cbranch_execz {sk}")
            bload(d, width, vo, R_WS, soff=so, imm=im, flags="sc1")
            a.label(sk)
        a.raw("s_mov_b64 exec, -1")
        a.raw(f"s_sub_u32 s{S_CNT}, s{S_CNT}, 1")
        a.raw(f"s_cmp_eq_u32 s{S_CNT}, 0")
        a.raw(f"s_cbranch_scc0 {lp}")
        a.raw("s_waitcnt vmcnt(0)")
        a.label(dn)

    def perm8(raw, out, xs=(0, 1, 2, 3)):
        for x in xs:
            for j in range(4):
                lo, hi = raw + (2 * x) * 4 + j, raw + (2 * x + 1) * 4 + j
                a.op3("v_perm_b32", out + (2 * j) * 4 + x, hi, lo, f"s{S_SELLO}")
                a.op3("v_perm_b32", out + (2 * j + 1) * 4 + x, hi, lo, f"s{S_SELHI}")

    def perm4(raw, out):
        for j in range(4):
            for x in range(2):
                lo, hi = raw + (2 * x) * 4 + j, raw + (2 * x + 1) * 4 + j
                a.op3("v_perm_b32", out + (2 * j) * 2 + x, hi, lo, f"s{S_SELLO}")
                a.op3("v_perm_b32", out + (2 * j + 1) * 2 + x, hi, lo, f"s{S_SELHI}")

    def round_bf16(d, s):
        a.op2e("v_cvt_pk_bf16_f32", d, s, s)
        a.op2("v_lshlrev_b32", d, "16", d)

    def unpack(V, R, n):
        for d in range(n):
            a.op2("v_lshlrev_b32", V + 2 * d, "16", R + d)
            a.op2("v_and_b32", V + 2 * d + 1, "0xffff0000", R + d)

    LN_STEPS = ["quad_perm:[1,0,3,2]", "quad_perm:[2,3,0,1]", "row_ror:8", "x16", "x32"]

    def pk(op, d, x, y, z=None):
        regs = [x, x + 1, y, y + 1] + ([z, z + 1] if z is not None else [])
        t = f"{op} {vr(d, 2)}, {vr(x, 2)}, {vr(y, 2)}" + (f", {vr(z, 2)}" if z is not None else "")
        a.valu(t, dst=[d, d + 1], src=regs)

    def ln_norm4(R, XA, V, T, nA=2, steps=None):
        S, Q, MN, t0, M, RC = T, T + 2, T + 4, T + 6, T + 8, T + 9
        unpack(V, R, 8)
        pk("v_pk_add_f32", S, V, V + 2)
        pk("v_pk_add_f32", Q, V + 4, V + 6)
        pk("v_pk_add_f32", S, S, V + 8)
        pk("v_pk_add_f32", Q, Q, V + 10)
        pk("v_pk_add_f32", S, S, V + 12)
        pk("v_pk_add_f32", Q, Q, V + 14)
        pk("v_pk_add_f32", S, S, Q)
        a.op2("v_add_f32", S, S, S + 1)
        a.allreduce("v_add_f32", [S], steps or LN_STEPS, [t0])
        a.op2("v_mul_f32", MN, "0xbb000000", S)
        a.op1("v_mov_b32", MN + 1, MN)
        for i in range(0, 16, 2):
            pk("v_pk_add_f32", V + i, V + i, MN)
        pk("v_pk_mul_f32", Q, V, V)
        pk("v_pk_mul_f32", S, V + 2, V + 2)
        for i in range(4, 16, 4):
            pk("v_pk_fma_f32", Q, V + i, V + i, Q)
            pk("v_pk_fma_f32", S, V + i + 2, V + i + 2, S)
        pk("v_pk_add_f32", Q, Q, S)
        a.op2("v_add_f32", Q, Q, Q + 1)
        a.allreduce("v_add_f32", [Q], steps or LN_STEPS, [t0])
        round_bf16(M, MN)
        unpack(V, XA, nA)
        a.op2("v_mul_f32", Q, INV512, Q)
        round_bf16(Q, Q)
        a.op2("v_add_f32", Q, EPS, Q)
        round_bf16(Q, Q)
        a.op1("v_sqrt_f32", Q, Q, kind="trans")
        for i in range(2 * nA):
            a.op2("v_add_f32", V + i, V + i, M)
        round_bf16(Q, Q)
        a.op1("v_rcp_f32", RC, Q, kind="trans")
        for d in range(nA):
            a.op2e("v_cvt_pk_bf16_f32", XA + d, V + 2 * d, V + 2 * d + 1)
        unpack(V, XA, nA)
        for i in range(2 * nA):
            a.op2("v_mul_f32", V + i, V + i, RC)
        for d in range(nA):
            a.op2e("v_cvt_pk_bf16_f32", XA + d, V + 2 * d, V + 2 * d + 1)

    def n32_masks(t):
        a.op2("v_lshrrev_b32", t, "2", 0)
        a.op2("v_and_b32", t, "3", t)
        for r in (1, 2, 3):
            a.cmp("v_cmp_eq_u32", sr(S_MASK + 2 * (r - 1), 2), str(r), t)
        a.op2("v_and_b32", t, "8", 0)
        a.cmp("v_cmp_ne_u32", sr(S_MASK + 6, 2), "0", t)

    def n32_core(PA, WP, ACC, T, P3ADDR):
        for x in range(2):
            a.cndmask(T + x, PA + x, "0", sr(S_MASK + 6, 2))
            a.cndmask(T + 2 + x, "0", PA + x, sr(S_MASK + 6, 2))
        for cc in range(2):
            for t in range(4):
                a.mfma16k16(ACC + 4 * t, T + 2 * cc, WP + 2 * (2 * t + cc), None if cc == 0 else ACC + 4 * t)
        for t in range(4):
            a.cndmask(T + 4 + t, ACC + 4 * t, ACC + 4 * t + 1, sr(S_MASK, 2))
            a.cndmask(T + 4 + t, T + 4 + t, ACC + 4 * t + 2, sr(S_MASK + 2, 2))
            a.cndmask(T + 4 + t, T + 4 + t, ACC + 4 * t + 3, sr(S_MASK + 4, 2))
        a.allreduce("v_add_f32", [T + 4 + t for t in range(4)], ["row_ror:4", "row_ror:8"], [])
        a.raw("s_mov_b32 exec_lo, 0x000f000f")
        a.raw("s_mov_b32 exec_hi, 0x000f000f")
        dsw(T + 4, 4, P3ADDR, L_P3)
        a.raw("s_mov_b64 exec, -1")

    def n32_final(L16, T):
        dsr(T, 4, L16, L_P3)
        dsr(T + 4, 4, L16, L_P3 + 1024)
        a.raw("s_waitcnt lgkmcnt(0)")
        for t in range(4):
            a.op2("v_add_f32", T + t, T + t, T + 4 + t)
        a.swap32(T, T + 1)
        a.swap32(T + 2, T + 3)
        a.op2("v_add_f32", T, T, T + 1)
        a.op2("v_add_f32", T + 2, T + 2, T + 3)
        a.swap16(T, T + 2)
        a.op2("v_add_f32", T, T, T + 2)

    def n32_out_addr(d, t):
        a.op2("v_and_b32", d, "3", 0)
        a.op2("v_lshlrev_b32", d, "4", d)
        a.op2("v_and_b32", t, "4", 0)
        a.op3("v_lshl_add_u32", d, t, "4", d)
        a.op2("v_and_b32", t, "8", 0)
        a.op2("v_lshrrev_b32", t, "2", t)
        a.op2("v_add_u32", d, d, t)
        a.op2("v_and_b32", t, "16", 0)
        a.op2("v_lshrrev_b32", t, "1", t)
        a.op2("v_add_u32", d, d, t)
        a.op2("v_and_b32", t, "32", 0)
        a.op2("v_lshrrev_b32", t, "3", t)
        a.op2("v_add_u32", d, d, t)

    a.raw("s_cmp_ge_u32 s2, 256")
    a.raw("s_cbranch_scc1 L_end")
    a.raw("s_load_dwordx16 s[16:31], s[0:1], 0")
    a.raw("s_load_dwordx4 s[32:35], s[0:1], 64")
    a.raw("s_load_dwordx2 s[36:37], s[0:1], 80")
    stamp(0)
    if opts.get("padto"):
        a.raw("s_memrealtime s[100:101]")
    a.op2("v_lshrrev_b32", 1, "6", 0)
    a.op2("v_and_b32", 0, "63", 0)
    a.op2("v_lshrrev_b32", 3, "4", 0)
    a.valu("v_readfirstlane_b32 s3, v1", src=[1], sdst=["s3"])
    a.raw("s_and_b32 s4, s2, 7")
    a.raw("s_lshr_b32 s5, s2, 4")
    a.op2("v_lshlrev_b32", 7, "4", 0)
    a.raw("s_bitcmp1_b32 s2, 3")
    a.raw("s_cbranch_scc0 L_att")

    mark("tail0")
    XS, XA = 8, 16
    WR1, WP1 = 24, 56
    a.raw("s_lshl_b32 s14, s4, 4")
    a.raw("s_add_u32 s14, s14, s5")
    a.raw("s_cmp_ge_u32 s3, 4")
    a.raw("s_cbranch_scc1 L_t_aux")
    a.op2("v_lshrrev_b32", 2, "3", 0)
    a.op2("v_lshlrev_b32", 2, "16", 2)
    a.op2("v_and_b32", 4, "7", 0)
    a.op3("v_lshl_add_u32", 6, 4, "4", 2)
    a.raw("s_lshr_b32 s10, s5, 3")
    a.raw("s_and_b32 s11, s5, 7")
    a.raw("s_lshl_b32 s8, s4, 10")
    a.raw("s_lshl_b32 s9, s11, 7")
    a.raw("s_add_u32 s8, s8, s9")
    a.raw("s_lshl_b32 s9, s10, 2")
    a.raw("s_add_u32 s9, s9, s3")
    a.raw("s_lshl_b32 s9, s9, 19")
    a.raw("s_add_u32 s8, s8, s9")
    a.raw("s_waitcnt lgkmcnt(0)")
    srd(R_B, P_WQ, 512 * 8192)
    a.raw("s_barrier")
    for i in range(8):
        bload(WR1 + 4 * i, 4, 6, R_B, soff="s8", flags=SF)
        if i < 7:
            a.raw("s_add_u32 s8, s8, 8192")
    a.raw("s_branch L_tail1")
    a.label("L_t_aux")
    for r in range(4):
        a.op1("v_mov_b32", 124 + r, "-1")
    a.raw("s_waitcnt lgkmcnt(0)")
    srd_ws()
    srd(R_A, P_X, 2048)
    a.raw("s_cmp_eq_u32 s3, 4")
    a.raw("s_cbranch_scc1 L_t_x")
    a.raw("s_cmp_eq_u32 s3, 5")
    a.raw("s_cbranch_scc1 L_t_co")
    a.raw("s_cmp_eq_u32 s3, 6")
    a.raw("s_cbranch_scc1 L_t_ca")
    a.raw("s_cmp_lg_u32 s5, 0")
    a.raw("s_cbranch_scc1 L_t_auxb")
    a.raw("s_lshl_b32 s6, s4, 13")
    a.raw("s_add_u32 s7, s6, 4096")
    for k in range(8):
        bstore(124, 4, 7, R_WS, soff="s6" if k < 4 else "s7", imm=QB + (k & 3) * 1024, flags="sc1")
    a.raw("s_branch L_t_auxb")
    a.label("L_t_x")
    bload(XS, 4, 7, R_A)
    bload(XS + 4, 4, 7, R_A, imm=1024)
    a.raw("s_branch L_t_auxb")
    a.label("L_t_co")
    a.raw("s_lshl_b32 s9, s14, 11")
    a.raw(f"s_add_u32 s9, s9, {OB}")
    bstore(124, 4, 7, R_WS, soff="s9", flags="sc1")
    bstore(124, 4, 7, R_WS, soff="s9", imm=1024, flags="sc1")
    if opts.get("dual", 0):
        a.raw(f"s_add_u32 s9, s9, {OX - OB}")
        bstore(124, 4, 7, R_WS, soff="s9", flags="sc1")
        bstore(124, 4, 7, R_WS, soff="s9", imm=1024, flags="sc1")
    a.raw("s_branch L_t_auxb")
    a.label("L_t_ca")
    a.raw("s_cmp_ge_u32 s5, 8")
    a.raw("s_cbranch_scc1 L_t_auxb")
    a.raw("s_lshl_b32 s10, s4, 3")
    a.raw("s_add_u32 s10, s10, s5")
    a.raw("s_lshl_b32 s10, s10, 9")
    a.raw(f"s_add_u32 s10, s10, {AB}")
    a.raw("s_mov_b32 exec_hi, 0")
    bstore(124, 4, 7, R_WS, soff="s10", flags="sc1")
    a.raw("s_mov_b64 exec, -1")
    a.label("L_t_auxb")
    a.raw("s_barrier")
    a.raw("s_branch L_tail1")

    mark("att0")
    a.label("L_att")
    VOFF, QOFF = 5, 6
    KR, VRAW, QR, SACC, PR, PM, OACC = 16, 48, 80, 96, 104, 108, 8
    a.op2("v_and_b32", 2, "15", 0)
    a.op2("v_xor_b32", 4, 2, 3)
    a.op2("v_lshlrev_b32", 4, "4", 4)
    for q in range(4):
        a.op2("v_xor_b32", 116 + q, str(64 * q), 4)
        a.op3("v_lshl_add_u32", 112 + q, 3, "8", 116 + q)
    a.op2("v_lshlrev_b32", 4, "10", 3)
    a.op3("v_lshl_add_u32", VOFF, 2, "4", 4)
    for t in ["s_lshr_b32 s6, s5, 3", "s_and_b32 s7, s5, 7", "s_lshl_b32 s8, s6, 3", "s_add_u32 s8, s8, s4",
              "s_lshl_b32 s8, s8, 13", "s_lshl_b32 s9, s7, 8", "s_add_u32 s8, s8, s9", "s_lshl_b32 s9, s3, 5",
              "s_add_u32 s8, s8, s9", "s_add_u32 s8, s8, 6144", "s_lshl_b32 s8, s8, 8", "s_add_u32 s9, s8, 4096",
              "s_lshl_b32 s13, s3, 13", f"s_add_u32 s13, s13, {L_K}", "s_add_u32 s12, s13, 4096", "s_mov_b32 m0, s13"]:
        a.raw(t)
    a.raw("s_waitcnt lgkmcnt(0)")
    srd(R_A, P_K, 0x2000000)
    for T in range(2):
        if T:
            a.raw("s_mov_b32 m0, s12")
            a.nop(1)
        for q in range(4):
            a.mem(f"buffer_load_dwordx4 v{112 + q}, {sr(R_A, 4)}, s{8 + T} offen offset:{q * 1024} {SF} lds",
                  src=[112 + q])
    srd(R_B, P_V, 0x2000000)
    if opts.get("kbar", 1):
        a.raw("s_barrier")
    NV1 = opts.get("nv1", 6)
    srd(R_C, P_DBG, 256)
    a.raw("s_lshl_b32 s6, s4, 2")
    a.op1("v_mov_b32", 124, "s6")
    a.raw("s_cmp_lg_u32 s3, 0")
    a.raw("s_cbranch_scc1 L_a_nfs")
    a.raw("s_mov_b64 exec, 1")
    bload(125, 1, 124, R_C, imm=128, flags="sc1")
    a.raw("s_mov_b64 exec, -1")
    a.label("L_a_nfs")
    for i in range(NV1):
        bload(VRAW + i * 4, 4, VOFF, R_B, soff=f"s{8 + i // 4}", imm=(i % 4) * 256, flags=SF)
    a.raw("s_branch L_att1")

    mark("tail1")
    a.label("L_tail1")
    a.raw(f"s_mov_b32 s{S_SELLO}, 0x05040100")
    a.raw(f"s_mov_b32 s{S_SELHI}, 0x07060302")
    srd_ws()
    srd(R_A, P_X, 2048)
    srd(R_C, P_DBG, 256)
    a.raw("s_lshl_b32 s6, s4, 2")
    a.op1("v_mov_b32", 123, "s6")
    a.raw("s_cmp_lt_u32 s3, 4")
    a.raw("s_cbranch_scc1 L_t_main")
    a.raw("s_waitcnt vmcnt(0)")
    a.raw("s_cmp_lg_u32 s3, 4")
    a.raw("s_cbranch_scc1 L_t_a1")
    dsw(XS, 4, 7, L_H)
    dsw(XS + 4, 4, 7, L_H + 1024)
    a.raw("s_waitcnt lgkmcnt(0)")
    stamp(3)
    a.raw("s_barrier")
    a.raw("s_barrier")
    a.raw("s_branch L_t_np")
    a.label("L_t_a1")
    a.raw("s_lshl_b32 s6, s5, 3")
    a.raw("s_add_u32 s6, s6, s3")
    a.raw("s_cmp_lg_u32 s6, 7")
    a.raw("s_cbranch_scc1 L_t_a2")
    a.op1("v_mov_b32", 4, "1")
    a.raw("s_mov_b64 exec, 1")
    bstore(4, 1, 123, R_C, imm=128, flags="sc1")
    a.raw("s_mov_b64 exec, -1")
    a.label("L_t_a2")
    stamp(5)
    a.raw("s_barrier")
    a.raw("s_barrier")
    a.raw("s_branch L_t_np")
    a.label("L_t_main")
    a.op2("v_lshrrev_b32", 2, "2", 0)
    a.op2("v_and_b32", 5, "1", 0)
    a.op3("v_lshl_add_u32", 2, 2, "1", 5)
    a.op2("v_lshlrev_b32", 2, "4", 2)
    a.op2("v_and_b32", 6, "2", 0)
    a.op3("v_lshl_add_u32", 20, 6, "9", 2)
    a.op3("v_lshl_add_u32", 2, 3, "1", 5)
    a.raw("s_lshl_b32 s6, s10, 2")
    a.raw("s_add_u32 s6, s6, s3")
    a.raw("s_lshl_b32 s6, s6, 7")
    a.op3("v_lshl_add_u32", 21, 2, "4", "s6")
    a.op3("v_lshl_add_u32", 21, 6, "9", 21)
    a.op3("v_lshl_add_u32", 2, 3, "3", 4)
    a.raw("s_lshl_b32 s7, s3, 9")
    a.op3("v_lshl_add_u32", 22, 2, "4", "s7")
    a.op2("v_and_b32", 2, "31", 0)
    a.op2("v_lshlrev_b32", 2, "4", 2)
    a.op2("v_and_b32", 5, "32", 0)
    a.op3("v_lshl_add_u32", 23, 5, "5", 2)
    a.op2("v_lshrrev_b32", 2, "2", 0)
    a.op2("v_and_b32", 2, "3", 2)
    for c in range(4):
        a.cmp("v_cmp_eq_u32", sr(S_MASK + 2 * c, 2), str(c), 2)
    a.op2("v_and_b32", 2, "8", 0)
    a.cmp("v_cmp_ne_u32", "s[12:13]", "0", 2)
    a.raw("s_lshl_b32 s8, s14, 9")
    a.op2("v_lshlrev_b32", 6, "3", 0)
    a.raw("s_barrier")
    for s_ in range(2):
        dsr(XS + 4 * s_, 4, 20, L_H + 512 * s_)
    dsr(XA, 4, 21, L_H)
    a.raw("s_waitcnt lgkmcnt(0)")
    ln_norm4(XS, XA, 88, 104, nA=4, steps=["quad_perm:[1,0,3,2]", "row_ror:4", "row_ror:8", "x16", "x32"])
    for c in range(4):
        for x in range(4):
            a.cndmask(88 + 4 * c + x, "0", XA + x, sr(S_MASK + 2 * c, 2))
    stamp(2)
    a.raw("s_waitcnt vmcnt(4)")
    a.raw("s_cmp_lg_u32 s3, 0")
    a.raw("s_cbranch_scc1 L_t_nfs")
    a.raw("s_mov_b64 exec, 1")
    bload(5, 1, 123, R_C, imm=128, flags="sc1")
    a.raw("s_mov_b64 exec, -1")
    perm8(WR1, WP1, (0, 1))
    a.raw("s_waitcnt vmcnt(1)")
    a.raw("s_branch L_t_nfs2")
    a.label("L_t_nfs")
    perm8(WR1, WP1, (0, 1))
    a.raw("s_waitcnt vmcnt(0)")
    a.label("L_t_nfs2")
    stamp(1)
    perm8(WR1, WP1, (2, 3))
    for c in range(4):
        for t in range(2):
            a.mfma16(8 + 4 * t, 88 + 4 * c, WP1 + 4 * (2 * c + t), None if c == 0 else 8 + 4 * t)
    for b in range(2):
        for t in range(2):
            a.cndmask(16 + 2 * b + t, 8 + 4 * t + 2 * b, 8 + 4 * t + 2 * b + 1, "s[12:13]")
    a.allreduce("v_add_f32", [16, 17, 18, 19], ["row_ror:8"], [])
    a.raw("s_mov_b32 exec_lo, 0x00ff00ff")
    a.raw("s_mov_b32 exec_hi, 0x00ff00ff")
    dsw(16, 4, 22, L_P3)
    a.raw("s_mov_b64 exec, -1")
    a.raw("s_waitcnt lgkmcnt(0)")
    a.raw("s_barrier")
    stamp(4)
    a.raw("s_cmp_lg_u32 s3, 0")
    a.raw("s_cbranch_scc1 L_t_np")
    dsr(8, 4, 23, L_P3)
    dsr(12, 4, 23, L_P3 + 512)
    a.raw("s_waitcnt lgkmcnt(0)")
    for r in range(4):
        a.op2("v_add_f32", 8 + r, 8 + r, 12 + r)
    a.swap32(8, 10)
    a.swap32(9, 11)
    a.op2("v_add_f32", 8, 8, 10)
    a.op2("v_add_f32", 9, 9, 11)
    for r in range(2):
        a.op2("v_min_u32", 8 + r, "-2", 8 + r)
    a.raw("s_waitcnt vmcnt(0)")
    poll_flags(123, 128, "1", 5, pre_loaded=True)
    bstore(8, 2, 6, R_WS, soff="s8", imm=QB, flags="sc1")
    stamp(2)
    a.label("L_t_np")
    a.raw("s_barrier")
    a.raw("s_cmp_lt_u32 s5, 8")
    a.raw("s_cbranch_scc1 L_s3")
    a.raw("s_cmp_lt_u32 s5, 15")
    a.raw("s_cbranch_scc1 L_ffn")
    a.raw("s_cmp_eq_u32 s3, 1")
    a.raw("s_cbranch_scc1 L_touch")
    a.raw("s_cmp_lg_u32 s3, 0")
    a.raw("s_cbranch_scc1 L_exit")
    a.raw("s_lshl_b32 s8, s4, 13")
    a.raw("s_add_u32 s9, s8, 4096")
    a.op2("v_and_b32", 2, "15", 0)
    a.op2("v_lshlrev_b32", 2, "4", 2)
    a.op3("v_lshl_add_u32", 2, 3, "9", 2)
    poll_masked([(8 + 4 * k, 2, "s8" if k < 2 else "s9", QB + (k & 1) * 2048) for k in range(4)], 24, sleep=2)
    a.op1("v_mov_b32", 4, "1")
    a.raw("s_mov_b64 exec, 1")
    bstore(4, 1, 123, R_C, flags="sc1")
    a.raw("s_mov_b64 exec, -1")
    stamp(3)
    a.raw("s_branch L_exit")
    a.label("L_touch")
    a.raw("s_getpc_b64 s[6:7]")
    a.label("L_pc")
    a.raw(f"s_sub_u32 s6, s6, L_pc - {NAME}_kernel")
    a.raw("s_subb_u32 s7, s7, 0")
    for k in range(opts.get("code_kb", 10)):
        if k % 4 == 0 and k:
            a.op2("v_add_u32", 7, "4096", 7)
        a.mem(f"global_load_dwordx4 v[12:15], v7, s[6:7] offset:{(k % 4) * 1024}", src=[7], dst=[12, 13, 14, 15])
    a.raw("s_branch L_exit")

    a.label("L_att1")
    a.raw(f"s_mov_b32 s{S_SELLO}, 0x05040100")
    a.raw(f"s_mov_b32 s{S_SELHI}, 0x07060302")
    srd_ws()
    srd(R_A, P_X, 2048)
    srd(R_D, P_OUT, 2048)
    a.raw("s_lshl_b32 s14, s5, 3")
    a.raw("s_add_u32 s14, s14, s4")
    a.raw("s_lshl_b32 s15, s14, 12")
    a.raw(f"s_add_u32 s15, s15, {FB}")
    a.raw("s_lshl_b32 s12, s4, 13")
    a.raw("s_lshr_b32 s7, s5, 3")
    a.raw("s_lshl_b32 s7, s7, 8")
    a.raw("s_add_u32 s12, s12, s7")
    a.op2("v_lshlrev_b32", 126, "4", 2)
    a.op3("v_lshl_add_u32", 144, 3, "9", 126)
    a.op2("v_lshlrev_b32", 145, "7", 3)
    a.op2("v_and_b32", 126, "3", 0)
    a.op3("v_lshl_add_u32", 145, 126, "5", 145)
    a.op2("v_and_b32", 126, "12", 0)
    a.op2("v_add_u32", 145, 145, 126)
    for q in range(4):
        a.op3("v_lshl_add_u32", 116 + q, 2, "8", 116 + q)
        a.op2("v_add_u32", 116 + q, "s13", 116 + q)
    a.op2("v_and_b32", 2, "3", 0)
    a.op2("v_lshlrev_b32", 2, "8", 2)
    a.op3("v_lshl_add_u32", QOFF, 3, "4", 2)
    a.op2("v_lshrrev_b32", 2, "2", 0)
    a.op2("v_and_b32", 2, "3", 2)
    for c in range(4):
        a.cmp("v_cmp_eq_u32", sr(S_MASK + 2 * c, 2), str(c), 2)
    VOP = 160
    a.raw(f"s_mov_b32 s10, {SCALE}")
    a.raw(f"s_mov_b32 s11, {SCALE}")
    a.raw(f"s_mov_b32 s62, {LOG2E}")
    a.raw(f"s_mov_b32 s63, {LOG2E}")
    a.raw("s_add_u32 s39, s12, 4096")
    for r in range(4):
        a.op1("v_mov_b32", 12 + r, "-1")
    a.raw("s_lshl_b32 s6, s3, 3")
    a.op2("v_lshlrev_b32", 146, "6", 0)
    a.op2("v_add_u32", 146, "s6", 146)
    a.raw("s_lshl_b32 s6, s3, 13")
    a.op2("v_add_u32", 147, "s6", 7)
    a.op2("v_and_b32", 148, "3", 0)
    a.op2("v_lshlrev_b32", 148, "8", 148)
    a.op2("v_and_b32", 126, "12", 0)
    a.op3("v_lshl_add_u32", 148, 126, "4", 148)
    a.op2("v_and_b32", 126, "16", 0)
    a.op3("v_lshl_add_u32", 148, 126, "6", 148)
    a.op2("v_lshrrev_b32", 126, "5", 0)
    a.raw("s_lshl_b32 s6, s3, 1")
    a.op2("v_add_u32", 126, "s6", 126)
    a.op3("v_lshl_add_u32", 148, 126, "4", 148)
    a.op2("v_lshlrev_b32", 149, "6", 126)
    a.raw("s_lshl_b32 s6, s4, 4")
    a.raw("s_add_u32 s6, s6, s5")
    a.raw("s_lshl_b32 s6, s6, 1")
    a.raw("s_add_u32 s6, s6, s3")
    a.raw("s_lshl_b32 s6, s6, 10")
    a.raw(f"s_add_u32 s13, s6, {OB}")
    for r in range(4):
        a.raw(f"s_mov_b32 s{16 + r}, {0x07060500 + r:#x}")
    q1 = [(128 + 4 * k, 144, "s12" if k < 2 else "s39", QB + (k & 1) * 2048) for k in range(4)]
    q2 = [(192 + 4 * k, 144, "s12" if k < 2 else "s39", QB + (k & 1) * 2048) for k in range(4)]

    def q_check(base, lab):
        a.op3("v_max3_u32", 126, base, base + 1, base + 2)
        for r in range(base + 3, base + 15, 2):
            a.op3("v_max3_u32", 126, 126, r, r + 1)
        a.op2("v_max_u32", 126, 126, base + 15)
        a.valu("v_cmp_eq_u32_e32 vcc, -1, v126", src=[126], sdst=["vcc"])
        a.raw(f"s_cbranch_vccz {lab}")

    def q_fin(base):
        for k in range(2):
            pk("v_pk_add_f32", base + 4 * k, base + 4 * k, base + 8 + 4 * k)
            pk("v_pk_add_f32", base + 2 + 4 * k, base + 2 + 4 * k, base + 10 + 4 * k)
        for k in range(2):
            for x in range(2):
                a.op2e("v_cvt_pk_bf16_f32", base + 8 + 2 * k + x, base + 4 * k + 2 * x, base + 4 * k + 2 * x + 1)
        for k in range(2):
            for x in range(2):
                dsw(base + 8 + 2 * k + x, 1, 145, L_Q + 512 * k + 16 * x)

    def vload(i):
        bload(VRAW + i * 4, 4, VOFF, R_B, soff=f"s{8 + i // 4}", imm=(i % 4) * 256, flags=SF)

    NV2 = opts.get("nv2", 6)
    a.raw(f"s_waitcnt vmcnt({NV1})")
    stamp(1)
    a.raw("s_barrier")
    a.raw("s_cmp_lg_u32 s3, 0")
    a.raw("s_cbranch_scc1 L_a_nq")
    poll_flags(124, 128, "1", 125, pre_loaded=True)
    for (d, vo, so, im) in q1:
        bload(d, 4, vo, R_WS, soff=so, imm=im, flags="sc1")
    a.label("L_a_nq")
    for T in range(2):
        for s in range(4):
            dsr(KR + T * 16 + s * 4, 4, 116 + s, T * 4096)
    a.raw("s_barrier")
    for i in range(NV1, NV2):
        vload(i)
    if NV2 > NV1:
        a.raw("s_barrier")
        a.raw("s_cmp_lg_u32 s3, 0")
        a.raw("s_cbranch_scc1 L_a_nq1")
        for (d, vo, so, im) in q2:
            bload(d, 4, vo, R_WS, soff=so, imm=im, flags="sc1")
        a.label("L_a_nq1")
        a.raw("s_barrier")
    for i in range(NV2, 8):
        vload(i)
    a.raw("s_cmp_eq_u32 s3, 0")
    a.raw("s_cbranch_scc1 L_a_q")
    a.raw("s_cmp_lg_u32 s3, 1")
    a.raw("s_cbranch_scc1 L_a_nc")
    a.raw("s_cmp_ge_u32 s5, 8")
    a.raw("s_cbranch_scc1 L_a_nc")
    a.raw(f"s_waitcnt vmcnt({8 - NV1})")
    for k in range(4):
        bstore(12, 4, 7, R_WS, soff="s15", imm=k * 1024, flags="sc1")
    perm8(VRAW, VOP, tuple(range(NV1 // 2)))
    a.raw("s_branch L_a_nq2")
    a.label("L_a_nc")
    a.raw(f"s_waitcnt vmcnt({8 - NV1})")
    perm8(VRAW, VOP, tuple(range(NV1 // 2)))
    a.raw("s_branch L_a_nq2")
    a.label("L_a_q")
    nq2 = 4 if NV2 > NV1 else 0
    a.raw(f"s_waitcnt vmcnt({8 - NV1 + nq2})")
    q_check(128, "L_a_q1ok")
    if nq2:
        a.raw(f"s_waitcnt vmcnt({8 - NV2})")
        q_check(192, "L_a_q2ok")
    poll_masked(q1, 126, sleep=1)
    a.label("L_a_q1ok")
    q_fin(128)
    a.raw("s_branch L_a_q3")
    a.label("L_a_q2ok")
    q_fin(192)
    a.label("L_a_q3")
    a.raw("s_waitcnt lgkmcnt(0)")
    a.raw("s_barrier")
    for s in range(4):
        dsr(QR + 4 * s, 4, QOFF, L_Q + 64 * s)
    perm8(VRAW, VOP, tuple(range(NV1 // 2)))
    a.raw("s_branch L_a_qk")
    a.label("L_a_nq2")
    a.raw("s_waitcnt lgkmcnt(0)")
    a.raw("s_barrier")
    for s in range(4):
        dsr(QR + 4 * s, 4, QOFF, L_Q + 64 * s)
    a.label("L_a_qk")
    stamp(2)
    a.raw("s_waitcnt lgkmcnt(0)")
    for s in range(4):
        for T in range(2):
            a.mfma16(SACC + 4 * T, KR + T * 16 + s * 4, QR + 4 * s, None if s == 0 else SACC + 4 * T)
    SV = QR
    PK = QR + 8
    for d in range(4):
        a.op2e("v_cvt_pk_bf16_f32", PK + d, SACC + 2 * d, SACC + 2 * d + 1)
    unpack(SV, PK, 4)
    for i in range(0, 8, 2):
        a.valu(f"v_pk_mul_f32 {vr(SV + i, 2)}, {vr(SV + i, 2)}, s[10:11]", dst=[SV + i, SV + i + 1], src=[SV + i, SV + i + 1])
    for d in range(4):
        a.op2e("v_cvt_pk_bf16_f32", PK + d, SV + 2 * d, SV + 2 * d + 1)
    unpack(SV, PK, 4)
    MX, LS, TT, NM = QR + 12, QR + 13, QR + 14, SACC
    a.op3("v_max3_f32", MX, SV + 0, SV + 1, SV + 2)
    a.op3("v_max3_f32", TT, SV + 3, SV + 4, SV + 5)
    a.op3("v_max3_f32", MX, MX, SV + 6, SV + 7)
    a.op2("v_max_f32", MX, MX, TT)
    a.allreduce("v_max_f32", [MX], ["x16", "x32"], [TT])
    a.op2("v_mul_f32", MX, "s62", MX)
    a.op2("v_sub_f32", NM, "0", MX)
    a.op2("v_sub_f32", NM + 1, "0", MX)
    for i in range(0, 8, 2):
        a.valu(f"v_pk_fma_f32 {vr(SV + i, 2)}, {vr(SV + i, 2)}, s[62:63], {vr(NM, 2)}",
               dst=[SV + i, SV + i + 1], src=[SV + i, SV + i + 1, NM, NM + 1])
    for i in range(8):
        a.op1("v_exp_f32", SV + i, SV + i, kind="trans")
    for d in range(4):
        a.op2e("v_cvt_pk_bf16_f32", PR + d, SV + 2 * d, SV + 2 * d + 1)
    pk("v_pk_add_f32", SV, SV, SV + 2)
    pk("v_pk_add_f32", SV + 4, SV + 4, SV + 6)
    pk("v_pk_add_f32", SV, SV, SV + 4)
    a.op2("v_add_f32", LS, SV, SV + 1)
    for c in range(4):
        for x in range(4):
            a.cndmask(PM + 4 * c + x, "0", PR + x, sr(S_MASK + 2 * c, 2))
    a.raw("s_waitcnt vmcnt(0)")
    stamp(3)
    perm8(VRAW, VOP, tuple(range(NV1 // 2, 4)))
    for c in range(4):
        for ch in range(2):
            a.mfma16(OACC + 4 * ch, VOP + 4 * (ch * 4 + c), PM + 4 * c, None if c == 0 else OACC + 4 * ch)
    a.allreduce("v_add_f32", [LS], ["x16", "x32"], [TT])
    a.raw("s_mov_b64 exec, 15")
    dsw(MX, 2, 146, L_ST)
    a.raw("s_mov_b64 exec, -1")
    for ch in range(2):
        dsw(OACC + 4 * ch, 4, 147, L_K + 1024 * ch)
    a.raw("s_waitcnt lgkmcnt(0)")
    a.raw("s_barrier")
    a.raw("s_cmp_ge_u32 s3, 2")
    a.raw("s_cbranch_scc1 L_a_fin")
    OW, STV = 16, 48
    for k in range(4):
        dsr(STV + 4 * k, 4, 149, L_ST + 16 * k)
    for w in range(8):
        dsr(OW + 4 * w, 4, 148, L_K + 8192 * w)
    a.raw("s_waitcnt lgkmcnt(8)")
    Mx, Lx, E0 = 64, 65, 66
    a.op3("v_max3_f32", Mx, STV + 0, STV + 2, STV + 4)
    a.op3("v_max3_f32", Lx, STV + 6, STV + 8, STV + 10)
    a.op3("v_max3_f32", Mx, Mx, STV + 12, STV + 14)
    a.op2("v_max_f32", Mx, Mx, Lx)
    for w in range(8):
        a.op2("v_sub_f32", E0 + 2 * w, STV + 2 * w, Mx)
    for w in range(8):
        a.op1("v_exp_f32", E0 + 2 * w, E0 + 2 * w, kind="trans")
    a.op2("v_mul_f32", Lx, E0, STV + 1)
    a.op2("v_mul_f32", 84, E0 + 2, STV + 3)
    for w in range(2, 8, 2):
        a.op2("v_fmac_f32", Lx, E0 + 2 * w, STV + 2 * w + 1)
        a.op2("v_fmac_f32", 84, E0 + 2 * w + 2, STV + 2 * w + 3)
    a.op2("v_add_f32", Lx, Lx, 84)
    a.op1("v_rcp_f32", 82, Lx, kind="trans")
    a.op1("v_log_f32", 83, Lx, kind="trans")
    a.raw("s_waitcnt lgkmcnt(0)")

    def pkb(op, d, e, x, z=None):
        t = f"{op} {vr(d, 2)}, {vr(e, 2)}, {vr(x, 2)}" + (f", {vr(z, 2)}" if z is not None else "")
        t += " op_sel_hi:[0,1,1]" if z is not None else " op_sel_hi:[0,1]"
        a.valu(t, dst=[d, d + 1], src=[e, x, x + 1] + ([z, z + 1] if z is not None else []))
    for h in range(2):
        pkb("v_pk_mul_f32", 84 + 2 * h, E0, OW + 2 * h)
        pkb("v_pk_mul_f32", 88 + 2 * h, E0 + 2, OW + 4 + 2 * h)
    for w in range(2, 8, 2):
        for h in range(2):
            pkb("v_pk_fma_f32", 84 + 2 * h, E0 + 2 * w, OW + 4 * w + 2 * h, 84 + 2 * h)
            pkb("v_pk_fma_f32", 88 + 2 * h, E0 + 2 * w + 2, OW + 4 * w + 4 + 2 * h, 88 + 2 * h)
    a.op2("v_add_f32", 83, 83, Mx)
    for h in range(2):
        pk("v_pk_add_f32", 84 + 2 * h, 84 + 2 * h, 88 + 2 * h)
    for h in range(2):
        pkb("v_pk_mul_f32", 84 + 2 * h, 82, 84 + 2 * h)
    for r in range(4):
        a.op3("v_perm_b32", 84 + r, 84 + r, 83, f"s{16 + r}")
    for r in range(4):
        a.op2("v_min_u32", 84 + r, "-2", 84 + r)
    if opts.get("dual", 0):
        a.raw(f"s_add_u32 s6, s13, {OX - OB}")
        bstore(84, 4, 7, R_WS, soff="s6")
    bstore(84, 4, 7, R_WS, soff="s13", flags="sc1")
    stamp(4)
    a.raw("s_branch L_exit")
    a.label("L_a_fin")
    a.raw("s_cmp_lg_u32 s3, 2")
    a.raw("s_cbranch_scc1 L_exit")
    a.raw("s_cmp_ge_u32 s5, 8")
    a.raw("s_cbranch_scc1 L_exit")
    a.raw("s_lshr_b32 s6, s14, 4")
    a.raw("s_lshl_b32 s6, s6, 7")
    a.raw("s_and_b32 s7, s14, 3")
    a.raw("s_lshl_b32 s7, s7, 5")
    a.raw("s_add_u32 s6, s6, s7")
    a.raw("s_bfe_u32 s7, s14, 0x20002")
    a.raw("s_lshl_b32 s7, s7, 1")
    a.raw("s_add_u32 s6, s6, s7")
    a.op2("v_and_b32", 2, "3", 0)
    a.op2("v_lshlrev_b32", 2, "3", 2)
    a.op2("v_bfe_u32" if False else "v_lshrrev_b32", 3, "3", 0)
    a.op2("v_and_b32", 3, "1", 3)
    a.op3("v_add3_u32", 2, 2, 3, "s6")
    a.op2("v_and_b32", 3, "4", 0)
    a.op2("v_lshlrev_b32", 4, "1", 2)
    a.op3("v_lshl_add_u32", 4, 3, "8", 4)
    a.mem(f"buffer_load_ushort v10, v4, {sr(R_A, 4)}, 0 offen", src=[4], dst=[10])
    a.op2("v_lshrrev_b32", 5, "6", 2)
    a.op2("v_lshlrev_b32", 5, "9", 5)
    a.op3("v_lshl_add_u32", 5, 3, "6", 5)
    a.op2("v_and_b32", 6, "6", 2)
    a.op3("v_lshl_add_u32", 5, 6, "5", 5)
    a.op2("v_and_b32", 6, "56", 2)
    a.op2("v_add_u32", 5, 5, 6)
    a.op2("v_and_b32", 6, "1", 2)
    a.op3("v_lshl_add_u32", 5, 6, "2", 5)
    a.op2("v_lshrrev_b32", 6, "4", 0)
    a.op3("v_lshl_add_u32", 5, 6, "12", 5)
    a.op2("v_lshrrev_b32", 6, "2", 0)
    a.op2("v_and_b32", 6, "3", 6)
    for r in (1, 2, 3):
        a.cmp("v_cmp_eq_u32", sr(S_MASK + 2 * (r - 1), 2), str(r), 6)
    a.op2("v_lshlrev_b32", 6, "2", 0)
    F0 = 16
    for r in range(4):
        a.op1("v_mov_b32", F0 + 12 + r, "0")
    poll_flags(6, 0, "0xff", 8)
    a.raw(f"s_mov_b32 s8, {AB}")
    a.raw(f"s_mov_b32 s9, {AB + 16384}")
    poll_masked([(12, 5, "s8", 0), (13, 5, "s9", 0)], 8, sleep=4, width=1)
    stamp(4)
    a.op2("v_add_f32", 12, 12, 13)
    a.allreduce("v_add_f32", [12], ["x16", "x32"], [13])
    round_bf16(12, 12)
    a.op2("v_lshlrev_b32", 10, "16", 10)
    a.op2("v_add_f32", 12, 12, 10)
    round_bf16(12, 12)
    poll_masked([(F0 + 4 * k, 7, "s15", k * 1024) for k in range(4)], 8, sleep=opts.get("sleep_f", 2), last_hi="0")
    stamp(5)
    for r in range(4):
        a.op2("v_add_f32", F0 + r, F0 + r, F0 + 4 + r)
        a.op2("v_add_f32", F0 + 8 + r, F0 + 8 + r, F0 + 12 + r)
    for r in range(4):
        a.op2("v_add_f32", F0 + r, F0 + r, F0 + 8 + r)
    a.allreduce("v_add_f32", [F0 + r for r in range(4)], ["row_ror:4", "row_ror:8"], [])
    for r in (1, 2, 3):
        a.cndmask(F0, F0, F0 + r, sr(S_MASK + 2 * (r - 1), 2))
    a.allreduce("v_add_f32", [F0], ["x16", "x32"], [F0 + 4])
    round_bf16(F0, F0)
    a.op2("v_add_f32", F0, F0, 12)
    a.op2e("v_cvt_pk_bf16_f32", F0, F0, F0)
    if opts.get("padto"):
        a.label("L_pad")
        a.raw("s_memrealtime s[6:7]")
        a.raw("s_waitcnt lgkmcnt(0)")
        a.raw("s_sub_u32 s6, s6, s100")
        a.raw(f"s_cmp_lt_u32 s6, {opts['padto']}")
        a.raw("s_cbranch_scc1 L_pad")
    a.raw("s_mov_b64 exec, 0xffff")
    bstore(F0, 1, 4, R_D, op="buffer_store_short", flags=opts.get("outf", ""))
    a.raw("s_mov_b64 exec, -1")
    stamp(6)
    a.raw("s_branch L_exit")

    a.label("L_s3")
    WR3, WP3, C, T = 16, 48, 80, 96
    srd(R_D, P_WO, 4096 * 1024)
    a.op2("v_and_b32", 2, "8", 0)
    a.op3("v_lshl_add_u32", 2, 2, "3", 3)
    a.op2("v_lshlrev_b32", 2, "10", 2)
    a.op2("v_and_b32", 4, "7", 0)
    a.op3("v_lshl_add_u32", 2, 4, "4", 2)
    a.raw("s_lshl_b32 s6, s4, 2")
    a.raw("s_lshr_b32 s7, s3, 1")
    a.raw("s_add_u32 s6, s6, s7")
    a.raw("s_lshl_b32 s6, s6, 7")
    a.raw("s_and_b32 s7, s3, 1")
    a.raw("s_lshl_b32 s7, s7, 2")
    a.raw("s_add_u32 s6, s6, s7")
    a.raw("s_lshl_b32 s6, s6, 10")
    a.raw("s_lshl_b32 s7, s5, 7")
    a.raw("s_add_u32 s6, s6, s7")
    for i in range(8):
        bload(WR3 + 4 * i, 4, 2, R_D, soff="s6", flags=SF)
        if i < 7:
            a.raw("s_add_u32 s6, s6, 8192")
    a.op2("v_lshlrev_b32", 5, "11", 3)
    a.op2("v_and_b32", 6, "15", 0)
    a.op3("v_lshl_add_u32", 8, 6, "4", 5)
    a.raw("s_lshl_b32 s6, s3, 8")
    a.op3("v_lshl_add_u32", 9, 6, "3", "s6")
    a.op2("v_and_b32", 5, "32", 0)
    a.op3("v_lshl_add_u32", 9, 5, "2", 9)
    a.op2("v_and_b32", 5, "1", 3)
    a.op3("v_lshl_add_u32", 9, 5, "2", 9)
    a.op2("v_and_b32", 5, "1", 0)
    a.op3("v_lshl_add_u32", 5, 3, "1", 5)
    a.op3("v_lshl_add_u32", 10, 5, "4", "s6")
    a.op2("v_and_b32", 5, "2", 0)
    a.op3("v_lshl_add_u32", 10, 5, "6", 10)
    a.op3("v_lshl_add_u32", 5, 3, "3", 4)
    a.raw("s_lshl_b32 s7, s3, 9")
    a.op3("v_lshl_add_u32", 11, 5, "4", "s7")
    a.op2("v_and_b32", 5, "31", 0)
    a.op2("v_lshlrev_b32", 5, "4", 5)
    a.op2("v_and_b32", 6, "32", 0)
    a.op3("v_lshl_add_u32", 12, 6, "6", 5)
    a.op2("v_lshlrev_b32", 13, "3", 0)
    a.raw("s_lshl_b32 s7, s4, 15")
    a.raw("s_add_u32 s6, s6, s7")
    for k in range(4):
        a.raw(f"s_add_u32 s{8 + k}, s6, {(OX if opts.get('dual', 0) else OB) + k * 8192}")
    a.raw("s_lshl_b32 s6, s4, 3")
    a.raw("s_add_u32 s6, s6, s5")
    a.raw("s_lshl_b32 s12, s6, 9")
    a.raw(f"s_add_u32 s12, s12, {AB}")
    a.op2("v_lshrrev_b32", 5, "2", 0)
    a.op2("v_and_b32", 5, "3", 5)
    for c in range(4):
        a.cmp("v_cmp_eq_u32", sr(S_MASK + 2 * c, 2), str(c), 5)
    a.op2("v_and_b32", 5, "8", 0)
    a.cmp("v_cmp_ne_u32", "s[14:15]", "0", 5)
    a.raw("s_mov_b32 s13, 0x0c0c0400")
    a.raw("s_waitcnt vmcnt(0)")
    stamp(1)
    perm8(WR3, WP3)
    a.raw("s_cmp_lg_u32 s3, 0")
    a.raw("s_cbranch_scc1 L_s3_nf")
    poll_flags(123, 0, "1", 5, sleep=8)
    a.label("L_s3_nf")
    a.raw("s_barrier")
    stamp(3)
    poll_masked([(C + 4 * k, 8, f"s{8 + k}", 0) for k in range(4)], 5, sleep=opts.get("sleep_o", 2),
                alt=((OB - OX) & 0xffffffff) if opts.get("dual", 0) else None)
    stamp(4)
    LK = T
    for k in range(4):
        a.op3("v_perm_b32", LK + k, C + 4 * k + 1, C + 4 * k, "s13")
        a.op3("v_perm_b32", T + 4 + k, C + 4 * k + 3, C + 4 * k + 2, "s13")
    for k in range(4):
        a.op3("v_perm_b32", LK + k, T + 4 + k, LK + k, f"s{S_SELLO}")
    MM = T + 4
    for b in range(2):
        a.op2("v_max_f32", MM + b, LK + 2 * b, LK + 2 * b + 1)
    a.allreduce("v_max_f32", [MM, MM + 1], ["x16", "x32"], [T + 6, T + 7])
    for k in range(4):
        a.op2("v_sub_f32", LK + k, LK + k, MM + (k >> 1))
    for k in range(4):
        a.op1("v_exp_f32", LK + k, LK + k, kind="trans")
    AC = T + 8
    SS = T + 16
    for b in range(2):
        for r in range(4):
            a.op2("v_mul_f32", AC + 4 * b + r, LK + 2 * b, C + 8 * b + r)
    for b in range(2):
        for r in range(4):
            a.op2("v_fmac_f32", AC + 4 * b + r, LK + 2 * b + 1, C + 8 * b + 4 + r)
        a.op2("v_add_f32", SS + b, LK + 2 * b, LK + 2 * b + 1)
    a.swap32(SS, SS + 1)
    for r in range(4):
        a.swap32(AC + r, AC + 4 + r)
    a.op2("v_add_f32", SS, SS, SS + 1)
    for r in range(4):
        a.op2("v_add_f32", AC + r, AC + r, AC + 4 + r)
    a.op1("v_mov_b32", SS + 1, SS)
    a.swap16(AC, AC + 2)
    a.swap16(AC + 1, AC + 3)
    a.swap16(SS, SS + 1)
    a.op2("v_add_f32", SS, SS, SS + 1)
    a.op2("v_add_f32", AC, AC, AC + 2)
    a.op2("v_add_f32", AC + 1, AC + 1, AC + 3)
    a.op1("v_rcp_f32", SS, SS, kind="trans")
    for r in range(2):
        a.op2("v_mul_f32", AC + r, AC + r, SS)
    a.op2e("v_cvt_pk_bf16_f32", AC, AC, AC + 1)
    dsw(AC, 1, 9, L_ON)
    a.raw("s_waitcnt lgkmcnt(0)")
    dsr(T, 4, 10, L_ON)
    a.raw("s_waitcnt lgkmcnt(0)")
    AM, D0 = 16, 32
    for c in range(4):
        for x in range(4):
            a.cndmask(AM + 4 * c + x, "0", T + x, sr(S_MASK + 2 * c, 2))
        for t in range(2):
            a.mfma16(D0 + 4 * t, AM + 4 * c, WP3 + 4 * (2 * c + t), None if c == 0 else D0 + 4 * t)
    for b in range(2):
        for t in range(2):
            a.cndmask(T + 2 * b + t, D0 + 4 * t + 2 * b, D0 + 4 * t + 2 * b + 1, "s[14:15]")
    a.allreduce("v_add_f32", [T, T + 1, T + 2, T + 3], ["row_ror:8"], [])
    a.raw("s_mov_b32 exec_lo, 0x00ff00ff")
    a.raw("s_mov_b32 exec_hi, 0x00ff00ff")
    dsw(T, 4, 11, L_P3)
    a.raw("s_mov_b64 exec, -1")
    a.raw("s_waitcnt lgkmcnt(0)")
    a.raw("s_barrier")
    a.raw("s_cmp_lg_u32 s3, 2")
    a.raw("s_cbranch_scc1 L_exit")
    for w in range(4):
        dsr(T + 4 * w, 4, 12, L_P3 + 512 * w)
    a.raw("s_waitcnt lgkmcnt(0)")
    for r in range(4):
        a.op2("v_add_f32", T + r, T + r, T + 4 + r)
        a.op2("v_add_f32", T + 8 + r, T + 8 + r, T + 12 + r)
    for r in range(4):
        a.op2("v_add_f32", T + r, T + r, T + 8 + r)
    a.swap32(T, T + 2)
    a.swap32(T + 1, T + 3)
    a.op2("v_add_f32", T, T, T + 2)
    a.op2("v_add_f32", T + 1, T + 1, T + 3)
    for r in range(2):
        a.op2("v_min_u32", T + r, "-2", T + r)
    bstore(T, 2, 13, R_WS, soff="s12", flags="sc1")
    stamp(2)
    a.raw("s_branch L_exit")

    a.label("L_ffn")
    a.op2("v_lshrrev_b32", 2, "3", 0)
    a.op2("v_and_b32", 4, "3", 0)
    a.op3("v_lshl_add_u32", 2, 2, "2", 4)
    a.op2("v_lshlrev_b32", 2, "4", 2)
    a.op2("v_and_b32", 5, "4", 0)
    a.op3("v_lshl_add_u32", 120, 5, "8", 2)
    a.op3("v_lshl_add_u32", 2, 3, "2", 4)
    a.raw("s_lshl_b32 s6, s3, 7")
    a.op3("v_lshl_add_u32", 121, 2, "3", "s6")
    a.op3("v_lshl_add_u32", 121, 5, "8", 121)
    a.raw("s_lshl_b32 s6, s3, 8")
    a.op3("v_lshl_add_u32", 122, 2, "4", "s6")
    n32_masks(2)
    n32_out_addr(119, 2)
    W1R, W1P, W2R, W2P, C, T = 20, 36, 128, 160, 96, 64
    a.raw("s_mul_i32 s6, s4, 7")
    a.raw("s_add_u32 s6, s6, s5")
    a.raw(f"s_sub_u32 s{S_PHI}, s6, 8")
    srd(R_D, P_W1, 512 * 3584)
    srd(R_B, P_W2, 1792 * 1024)

    def ffn_flags():
        a.op2("v_lshlrev_b32", 6, "2", 0)
        a.raw("s_cmp_lg_u32 s3, 0")
        a.raw("s_cbranch_scc1 L_f_nf")
        poll_flags(6, 0, "0xff", 5, sleep=16)
        a.label("L_f_nf")
        a.raw("s_barrier")
    if opts.get("flate", 0) == 1:
        ffn_flags()
    if opts.get("flate", 0) == 2:
        a.raw("s_cmp_lg_u32 s3, 0")
        a.raw("s_cbranch_scc1 L_f_nf0")
        poll_flags(123, 0, "1", 5, sleep=8)
        a.label("L_f_nf0")
        a.raw("s_barrier")
    a.op2("v_and_b32", 2, "12", 0)
    a.op2("v_lshlrev_b32", 2, "2", 2)
    a.op3("v_lshl_add_u32", 2, 3, "1", 2)
    a.op2("v_mul_u32_u24", 2, "3584", 2)
    a.op2("v_and_b32", 4, "3", 0)
    a.op3("v_lshl_add_u32", 2, 4, "4", 2)
    a.raw(f"s_mul_i32 s6, s3, {64 * 3584}")
    a.raw(f"s_lshl_b32 s7, s{S_PHI}, 6")
    a.raw("s_add_u32 s6, s6, s7")
    for i in range(4):
        a.raw(f"s_add_u32 s7, s6, {((i >> 1) * 8 + (i & 1)) * 3584}")
        bload(W1R + 4 * i, 4, 2, R_D, soff="s7", flags=SF)
    a.raw("s_cmp_ge_u32 s3, 4")
    a.raw("s_cbranch_scc1 L_f_n2")
    a.op2("v_lshlrev_b32", 2, "13", 3)
    a.op2("v_and_b32", 4, "15", 0)
    a.op3("v_lshl_add_u32", 2, 4, "4", 2)
    a.raw(f"s_lshl_b32 s6, s{S_PHI}, 15")
    a.raw("s_lshl_b32 s7, s3, 8")
    a.raw("s_add_u32 s6, s6, s7")
    a.raw("s_add_u32 s7, s6, 4096")
    for i in range(8):
        bload(W2R + 4 * i, 4, 2, R_B, soff="s6" if i < 4 else "s7", imm=(i & 3) * 1024, flags=SF)
    a.label("L_f_n2")
    a.op2("v_and_b32", 4, "31", 0)
    a.op2("v_and_b32", 5, "32", 0)
    a.op2("v_lshlrev_b32", 5, "7", 5)
    a.op3("v_lshl_add_u32", 8, 4, "4", 5)
    a.op2("v_and_b32", 5, "15", 0)
    a.raw("s_lshl_b32 s6, s3, 7")
    a.op3("v_lshl_add_u32", 9, 5, "3", "s6")
    a.op2("v_and_b32", 5, "16", 0)
    a.op3("v_lshl_add_u32", 9, 5, "6", 9)
    a.op2("v_and_b32", 6, "3", 0)
    a.op3("v_lshl_add_u32", 6, 6, "5", "s6")
    a.op3("v_lshl_add_u32", 6, 5, "6", 6)
    a.op2("v_and_b32", 5, "12", 0)
    a.op2("v_add_u32", 6, 6, 5)
    bload(10, 1, 6, R_A)
    bload(11, 1, 6, R_A, imm=16)
    a.raw("s_lshl_b32 s6, s3, 9")
    for k in range(4):
        a.raw(f"s_add_u32 s{8 + k}, s6, {AB + k * 8192}")
    a.op2("v_and_b32", 5, "1", 0)
    a.op2("v_lshlrev_b32", 5, "6", 5)
    a.op3("v_lshl_add_u32", 5, 3, "4", 5)
    a.op2("v_lshrrev_b32", 6, "1", 0)
    a.op2("v_and_b32", 6, "7", 6)
    a.op1("v_mov_b32", 4, "0x80")
    for c in range(8):
        a.cmp("v_cmp_eq_u32", "vcc", str(c), 6)
        a.cndmask(192 + c, 4, 5, "vcc")
    for r in range(4):
        a.op1("v_mov_b32", 12 + r, "0")
    dsw(12, 4, 4, L_G)
    a.op2("v_and_b32", 5, "15", 0)
    a.op2("v_lshrrev_b32", 5, "2", 5)
    a.op3("v_lshl_add_u32", 5, 3, "2", 5)
    a.op2("v_lshlrev_b32", 5, "12", 5)
    a.op2("v_and_b32", 6, "3", 0)
    a.op3("v_lshl_add_u32", 200, 6, "4", 5)
    a.raw("s_lshl_b32 s12, s3, 16")
    a.raw(f"s_lshl_b32 s6, s{S_PHI}, 6")
    a.raw("s_add_u32 s12, s12, s6")
    a.raw(f"s_add_u32 s12, s12, {FB}")
    a.op2("v_lshlrev_b32", 6, "2", 0)
    a.raw("s_waitcnt vmcnt(0)")
    stamp(1)
    perm4(W1R, W1P)
    perm8(W2R, W2P)
    unpack(12, 10, 2)
    if opts.get("flate", 0) != 1:
        ffn_flags()
    stamp(3)
    poll_masked([(C + 4 * k, 8, f"s{8 + k}", 0) for k in range(4)], 4, sleep=opts.get("sleep_a", 2))
    stamp(5)
    pk("v_pk_add_f32", C, C, C + 4)
    pk("v_pk_add_f32", C + 2, C + 2, C + 6)
    pk("v_pk_add_f32", C + 8, C + 8, C + 12)
    pk("v_pk_add_f32", C + 10, C + 10, C + 14)
    pk("v_pk_add_f32", C, C, C + 8)
    pk("v_pk_add_f32", C + 2, C + 2, C + 10)
    a.allreduce("v_add_f32", [C + r for r in range(4)], ["x32"], [C + 4 + r for r in range(4)])
    a.op2e("v_cvt_pk_bf16_f32", C + 4, C, C + 1)
    a.op2e("v_cvt_pk_bf16_f32", C + 5, C + 2, C + 3)
    unpack(C, C + 4, 2)
    pk("v_pk_add_f32", C, C, 12)
    pk("v_pk_add_f32", C + 2, C + 2, 14)
    a.op2e("v_cvt_pk_bf16_f32", C + 4, C, C + 1)
    a.op2e("v_cvt_pk_bf16_f32", C + 5, C + 2, C + 3)
    a.raw("s_mov_b32 exec_hi, 0")
    dsw(C + 4, 2, 9, L_H)
    a.raw("s_mov_b64 exec, -1")
    a.raw("s_waitcnt lgkmcnt(0)")
    a.raw("s_barrier")
    for s in range(2):
        dsr(XS + 4 * s, 4, 120, L_H + 512 * s)
    dsr(XA, 2, 121, L_H)
    a.raw("s_waitcnt lgkmcnt(0)")
    ln_norm4(XS, XA, 64, 80)
    n32_core(XA, W1P, 64, 80, 122)
    a.raw("s_waitcnt lgkmcnt(0)")
    a.raw("s_barrier")
    a.raw("s_cmp_ge_u32 s3, 4")
    a.raw("s_cbranch_scc1 L_exit")
    n32_final(7, 80)
    round_bf16(80, 80)
    a.op2("v_mul_f32", 81, "0xbfb8aa3b", 80)
    a.op1("v_exp_f32", 81, 81, kind="trans")
    a.op2("v_add_f32", 81, "1.0", 81)
    a.op1("v_rcp_f32", 81, 81, kind="trans")
    a.op2("v_mul_f32", 80, 80, 81)
    a.op2e("v_cvt_pk_bf16_f32", 80, 80, 80)
    dsw(80, 1, 119, L_G, op="ds_write_b16")
    a.raw("s_waitcnt lgkmcnt(0)")
    stamp(4)
    for c in range(8):
        dsr(84 + 4 * c, 4, 192 + c, L_G)
    for c in range(8):
        a.raw(f"s_waitcnt lgkmcnt({7 - c})")
        a.mfma16(64, 84 + 4 * c, W2P + 4 * c, None if c == 0 else 64)
    for r in range(4):
        a.op2("v_min_u32", 64 + r, "-2", 64 + r)
    bstore(64, 4, 200, R_WS, soff="s12", flags="sc1")
    stamp(6)
    a.label("L_exit")
    dump_stamps()
    a.label("L_end")
    a.raw("s_endpgm")

    if opts.get("order", 0) == 1:
        L, m = a.lines, marks
        pro, t0, a0, rest = L[:m["tail0"]], L[m["tail0"]:m["att0"]], L[m["att0"]:m["tail1"]], L[m["tail1"]:]
        pro[-1] = "    s_cbranch_scc1 L_tail0"
        a.lines = pro + a0 + ["L_tail0:"] + t0 + rest

    hdr = open(f"cdna_kernels/{NAME}.s.ref").read().split("; Override launch")[0]
    out = hdr
    out += "; Override launch geometry by editing the next line (default: block=256,\n"
    out += "; grid=ceil(out_elems/256), lds=0). Harness parses it; keep it on one line.\n"
    out += f"; @launch grid=(256,1,1) block=(512,1,1) lds={LDS_BYTES}\n"
    out += '.amdgcn_target "amdgcn-amd-amdhsa--gfx950"\n.text\n'
    out += f".globl {NAME}_kernel\n.p2align 8\n.type {NAME}_kernel,@function\n{NAME}_kernel:\n"
    out += a.text()
    out += '.section .rodata,"a"\n.p2align 6\n'
    out += f".amdhsa_kernel {NAME}_kernel\n"
    out += "  .amdhsa_next_free_vgpr 208\n  .amdhsa_next_free_sgpr 102\n  .amdhsa_accum_offset 208\n"
    out += "  .amdhsa_group_segment_fixed_size 0\n  .amdhsa_kernarg_size 88\n  .amdhsa_user_sgpr_count 2\n"
    out += "  .amdhsa_user_sgpr_kernarg_segment_ptr 1\n  .amdhsa_system_sgpr_workgroup_id_x 1\n"
    out += "  .amdhsa_float_denorm_mode_32 3\n"
    out += ".end_amdhsa_kernel\n"
    return out


if __name__ == "__main__":
    debug = "--debug" in sys.argv
    path = [x for x in sys.argv[1:] if not x.startswith("--")]
    path = path[0] if path else f"cdna_kernels/{NAME}.s"
    opts = {}
    for x in sys.argv[1:]:
        if x.startswith("--opt="):
            k, v = x[6:].split(":")
            opts[k] = int(v) if v.lstrip("-").isdigit() else v
    open(path, "w").write(gen(debug, opts))
    print("wrote", path)
```

```python
import sys
from asmlib import Asm, vr, sr

NAME = "sequential_preLN__sliding_block_cached__dense_activation_silu__decode"

QB = 0
OB = 64 * 1024
AB = 384 * 1024
FB = 416 * 1024
OX = 704 * 1024
WS_BYTES = 1 << 20
TS_BASE = WS_BYTES
WS_SIZE_DBG = WS_BYTES + 256 * 8 * 128

L_Q = 0
L_ST = 1024
L_K = 2048
L_ON = 0
L_H = 2048
L_G = 4096
L_P3 = 4352
LDS_BYTES = 2048 + 65536

LOG2E = "0x3fb8aa3b"
SCALE = "0x3db504f3"
INV512 = "0x3b000000"
EPS = "0x3727c5ac"
POLL_MAX = 1 << 15

S_WG, S_WAVE, S_G, S_IDX = 2, 3, 4, 5
P_X, P_K, P_V, P_WQ, P_WO, P_W1, P_W2, P_OUT, P_DBG, P_WS = 16, 18, 20, 22, 24, 28, 30, 32, 34, 36
S_CNT = 38
S_PHI = 39
R_WS, R_A, R_B, R_C, R_D = 40, 44, 48, 52, 56
S_SELLO, S_SELHI = 60, 61
S_PM = 64
S_MASK = 80
S_TS = 88


def gen(debug=False, opts=None):
    opts = opts or {}
    SF = opts.get("stream_flags", "nt")
    a = Asm()
    marks = {}

    def mark(name):
        marks[name] = len(a.lines)

    def stamp(k):
        if debug:
            a.raw(f"s_memrealtime {sr(S_TS + 2 * k, 2)}")

    def dump_stamps():
        if not debug:
            return
        a.raw("s_waitcnt vmcnt(0) lgkmcnt(0)")
        a.raw("s_mov_b64 exec, 1")
        a.raw(f"s_lshl_b32 s6, s{S_WG}, 3")
        a.raw(f"s_add_u32 s6, s6, s{S_WAVE}")
        a.raw("s_lshl_b32 s6, s6, 7")
        a.raw(f"s_add_u32 s6, s6, {TS_BASE}")
        a.op1("v_mov_b32", 1, "s6")
        for k in range(7):
            a.op1("v_mov_b32", 2, f"s{S_TS + 2 * k}")
            a.op1("v_mov_b32", 3, f"s{S_TS + 2 * k + 1}")
            a.mem(f"buffer_store_dwordx2 v[2:3], v1, {sr(R_WS, 4)}, 0 offen offset:{8 * k}", src=[1, 2, 3])
            a.nop(2)

    def srd(dst, ptr, size):
        a.raw(f"s_mov_b32 s{dst}, s{ptr}")
        a.raw(f"s_and_b32 s{dst + 1}, s{ptr + 1}, 0xffff")
        a.raw(f"s_mov_b32 s{dst + 2}, {size}")
        a.raw(f"s_mov_b32 s{dst + 3}, 0x20000")

    def srd_ws():
        srd(R_WS, P_WS, WS_SIZE_DBG if debug else WS_BYTES)

    def bload(d, n, off, srdb, soff="0", imm=0, flags=""):
        op = {1: "buffer_load_dword", 2: "buffer_load_dwordx2", 4: "buffer_load_dwordx4"}[n]
        t = f"{op} {vr(d, n)}, v{off}, {sr(srdb, 4)}, {soff} offen"
        if imm:
            t += f" offset:{imm}"
        if flags:
            t += " " + flags
        a.mem(t, src=[off], dst=list(range(d, d + n)))

    def bstore(s, n, off, srdb, soff="0", imm=0, flags="", op=None):
        op = op or {1: "buffer_store_dword", 2: "buffer_store_dwordx2", 4: "buffer_store_dwordx4"}[n]
        t = f"{op} {vr(s, n)}, v{off}, {sr(srdb, 4)}, {soff} offen"
        if imm:
            t += f" offset:{imm}"
        if flags:
            t += " " + flags
        regs = list(range(s, s + n))
        a.mem(t, src=[off] + regs, wide_store=regs if n == 4 else ())

    def dsr(d, n, addr, off):
        op = {1: "ds_read_b32", 2: "ds_read_b64", 4: "ds_read_b128"}[n]
        a.mem(f"{op} {vr(d, n)}, v{addr} offset:{off}", src=[addr], dst=list(range(d, d + n)))

    def dsw(s, n, addr, off, op=None):
        op = op or {1: "ds_write_b32", 2: "ds_write_b64", 4: "ds_write_b128"}[n]
        a.mem(f"{op} v{addr}, {vr(s, n)} offset:{off}", src=[addr] + list(range(s, s + n)))

    def poll_flags(voff, imm, lanes, tmp, pre_loaded=False, sleep=4):
        lp, dn, ck = a.newlabel("fp"), a.newlabel("fd"), a.newlabel("fc")
        a.raw(f"s_mov_b32 s{S_CNT}, {POLL_MAX}")
        a.raw(f"s_mov_b64 exec, {lanes}")
        if pre_loaded:
            a.raw(f"s_branch {ck}")
        a.label(lp)
        bload(tmp, 1, voff, R_C, imm=imm, flags="sc1")
        a.raw("s_waitcnt vmcnt(0)")
        a.label(ck)
        a.valu(f"v_cmp_ne_u32_e32 vcc, 1, v{tmp}", src=[tmp], sdst=["vcc"])
        a.raw(f"s_cbranch_vccz {dn}")
        a.raw(f"s_sleep {sleep}")
        a.raw(f"s_sub_u32 s{S_CNT}, s{S_CNT}, 1")
        a.raw(f"s_cmp_eq_u32 s{S_CNT}, 0")
        a.raw(f"s_cbranch_scc0 {lp}")
        a.label(dn)
        a.raw("s_mov_b64 exec, -1")

    def poll_masked(loads, tmp, sleep=2, width=4, last_hi=None, alt=None):
        n = len(loads)
        lp, dn = a.newlabel("pl"), a.newlabel("pd")
        a.raw(f"s_mov_b32 s{S_CNT}, {POLL_MAX}")
        for k, (d, vo, so, im) in enumerate(loads):
            if last_hi is not None and k == n - 1:
                a.raw(f"s_mov_b32 exec_hi, {last_hi}")
            bload(d, width, vo, R_WS, soff=so, imm=im, flags="sc1")
        if last_hi is not None:
            a.raw("s_mov_b64 exec, -1")
        a.label(lp)
        a.raw("s_waitcnt vmcnt(0)")
        for k, (d, vo, so, im) in enumerate(loads):
            t = tmp + (k & 1)
            if width == 4:
                a.op3("v_max3_u32", t, d, d + 1, d + 2)
                a.op2("v_max_u32", t, t, d + 3)
            else:
                t = d
            a.cmp("v_cmp_eq_u32", sr(S_PM + 2 * k, 2), "-1", t)
        a.nop(1)
        if n == 1:
            a.raw(f"s_cmp_eq_u64 {sr(S_PM, 2)}, 0")
        else:
            a.raw(f"s_or_b64 s[6:7], {sr(S_PM, 2)}, {sr(S_PM + 2, 2)}")
            for k in range(2, n):
                a.raw(f"s_or_b64 s[6:7], s[6:7], {sr(S_PM + 2 * k, 2)}")
            a.raw("s_cmp_eq_u64 s[6:7], 0")
        a.raw(f"s_cbranch_scc1 {dn}")
        if sleep:
            a.raw(f"s_sleep {sleep}")
        if alt is not None:
            a.raw(f"s_and_b32 s6, s{S_CNT}, {opts.get('altm', 3)}")
            a.raw("s_cmp_eq_u32 s6, 1")
            a.raw(f"s_cselect_b32 s7, {alt}, 0")
            a.raw("s_cmp_eq_u32 s6, 0")
            a.raw(f"s_cselect_b32 s7, {-alt & 0xffffffff:#x}, s7")
            a.raw(f"s_cmp_eq_u32 s{S_CNT}, {POLL_MAX}")
            a.raw("s_cselect_b32 s7, 0, s7")
            for so_ in dict.fromkeys(l[2] for l in loads):
                a.raw(f"s_add_u32 {so_}, {so_}, s7")
        for k, (d, vo, so, im) in enumerate(loads):
            sk = a.newlabel("sk")
            a.raw(f"s_mov_b64 exec, {sr(S_PM + 2 * k, 2)}")
            a.raw(f"s_cbranch_execz {sk}")
            bload(d, width, vo, R_WS, soff=so, imm=im, flags="sc1")
            a.label(sk)
        a.raw("s_mov_b64 exec, -1")
        a.raw(f"s_sub_u32 s{S_CNT}, s{S_CNT}, 1")
        a.raw(f"s_cmp_eq_u32 s{S_CNT}, 0")
        a.raw(f"s_cbranch_scc0 {lp}")
        a.raw("s_waitcnt vmcnt(0)")
        a.label(dn)

    def doorbell(soff, tmp, lanes="15", sleep=2):
        lp, dn = a.newlabel("db"), a.newlabel("dd")
        a.raw(f"s_mov_b32 s{S_CNT}, {POLL_MAX}")
        a.raw(f"s_mov_b64 exec, {lanes}")
        a.label(lp)
        bload(tmp, 1, 7, R_WS, soff=soff, flags="sc1")
        a.raw("s_waitcnt vmcnt(0)")
        a.valu(f"v_cmp_eq_u32_e32 vcc, -1, v{tmp}", src=[tmp], sdst=["vcc"])
        a.raw(f"s_cbranch_vccz {dn}")
        a.raw(f"s_sleep {sleep}")
        a.raw(f"s_sub_u32 s{S_CNT}, s{S_CNT}, 1")
        a.raw(f"s_cmp_eq_u32 s{S_CNT}, 0")
        a.raw(f"s_cbranch_scc0 {lp}")
        a.label(dn)
        a.raw("s_mov_b64 exec, -1")

    def perm8(raw, out, xs=(0, 1, 2, 3)):
        for x in xs:
            for j in range(4):
                lo, hi = raw + (2 * x) * 4 + j, raw + (2 * x + 1) * 4 + j
                a.op3("v_perm_b32", out + (2 * j) * 4 + x, hi, lo, f"s{S_SELLO}")
                a.op3("v_perm_b32", out + (2 * j + 1) * 4 + x, hi, lo, f"s{S_SELHI}")

    def perm4(raw, out):
        for j in range(4):
            for x in range(2):
                lo, hi = raw + (2 * x) * 4 + j, raw + (2 * x + 1) * 4 + j
                a.op3("v_perm_b32", out + (2 * j) * 2 + x, hi, lo, f"s{S_SELLO}")
                a.op3("v_perm_b32", out + (2 * j + 1) * 2 + x, hi, lo, f"s{S_SELHI}")

    def round_bf16(d, s):
        a.op2e("v_cvt_pk_bf16_f32", d, s, s)
        a.op2("v_lshlrev_b32", d, "16", d)

    def unpack(V, R, n):
        for d in range(n):
            a.op2("v_lshlrev_b32", V + 2 * d, "16", R + d)
            a.op2("v_and_b32", V + 2 * d + 1, "0xffff0000", R + d)

    LN_STEPS = ["quad_perm:[1,0,3,2]", "quad_perm:[2,3,0,1]", "row_ror:8", "x16", "x32"]

    def pk(op, d, x, y, z=None):
        regs = [x, x + 1, y, y + 1] + ([z, z + 1] if z is not None else [])
        t = f"{op} {vr(d, 2)}, {vr(x, 2)}, {vr(y, 2)}" + (f", {vr(z, 2)}" if z is not None else "")
        a.valu(t, dst=[d, d + 1], src=regs)

    def pkb(op, d, e, x, z=None):
        t = f"{op} {vr(d, 2)}, {vr(e, 2)}, {vr(x, 2)}" + (f", {vr(z, 2)}" if z is not None else "")
        t += " op_sel_hi:[0,1,1]" if z is not None else " op_sel_hi:[0,1]"
        a.valu(t, dst=[d, d + 1], src=[e, x, x + 1] + ([z, z + 1] if z is not None else []))

    def ln_norm4(R, XA, V, T, nA=2, steps=None):
        S, Q, MN, t0, M, RC = T, T + 2, T + 4, T + 6, T + 8, T + 6
        slow, join = a.newlabel("lnslow"), a.newlabel("lnjoin")
        if opts.get("fastln", 1):
            a.raw("s_mov_b32 s6, 0x3f803f80")

            def dot(d, x, y, c):
                yt = f"v{y}" if isinstance(y, int) else y
                ct = f"v{c}" if isinstance(c, int) else c
                a.valu(f"v_dot2_f32_bf16 v{d}, v{x}, {yt}, {ct}", dst=[d], src=[x])
            for d in range(0, 8, 2):
                dot(S, R + d, "s6", "0" if d == 0 else S)
                dot(Q, R + d, R + d, "0" if d == 0 else Q)
                dot(S + 1, R + d + 1, "s6", "0" if d == 0 else S + 1)
                dot(Q + 1, R + d + 1, R + d + 1, "0" if d == 0 else Q + 1)
            a.nop(3)
            a.op2("v_add_f32", S, S, S + 1)
            a.op2("v_add_f32", Q, Q, Q + 1)
            a.allreduce("v_add_f32", [S, Q], steps or LN_STEPS, [t0, t0 + 1])
            a.op2("v_mul_f32", MN, "0xbb000000", S)
            a.op2("v_mul_f32", t0, MN, S)
            a.op2("v_add_f32", Q, Q, t0)
            a.valu(f"v_cmp_nle_f32_e64 vcc, -v{t0}, v{Q}", src=[t0, Q], sdst=["vcc"])
            a.raw(f"s_cbranch_vccz {join}")
        unpack(V, R, 8)
        pk("v_pk_add_f32", S, V, V + 2)
        pk("v_pk_add_f32", Q, V + 4, V + 6)
        pk("v_pk_add_f32", S, S, V + 8)
        pk("v_pk_add_f32", Q, Q, V + 10)
        pk("v_pk_add_f32", S, S, V + 12)
        pk("v_pk_add_f32", Q, Q, V + 14)
        pk("v_pk_add_f32", S, S, Q)
        a.op2("v_add_f32", S, S, S + 1)
        a.allreduce("v_add_f32", [S], steps or LN_STEPS, [t0])
        a.op2("v_mul_f32", MN, "0xbb000000", S)
        for i in range(0, 16, 2):
            pkb("v_pk_add_f32", V + i, MN, V + i)
        pk("v_pk_mul_f32", Q, V, V)
        pk("v_pk_mul_f32", S, V + 2, V + 2)
        for i in range(4, 16, 4):
            pk("v_pk_fma_f32", Q, V + i, V + i, Q)
            pk("v_pk_fma_f32", S, V + i + 2, V + i + 2, S)
        pk("v_pk_add_f32", Q, Q, S)
        a.op2("v_add_f32", Q, Q, Q + 1)
        a.allreduce("v_add_f32", [Q], steps or LN_STEPS, [t0])
        a.label(join)
        a.fence(4)
        round_bf16(M, MN)
        unpack(V, XA, nA)
        a.op2("v_mul_f32", Q, INV512, Q)
        round_bf16(Q, Q)
        a.op2("v_add_f32", Q, EPS, Q)
        round_bf16(Q, Q)
        a.op1("v_sqrt_f32", Q, Q, kind="trans")
        for i in range(0, 2 * nA, 2):
            pkb("v_pk_add_f32", V + i, M, V + i)
        round_bf16(Q, Q)
        a.op1("v_rcp_f32", RC, Q, kind="trans")
        for d in range(nA):
            a.op2e("v_cvt_pk_bf16_f32", XA + d, V + 2 * d, V + 2 * d + 1)
        unpack(V, XA, nA)
        for i in range(0, 2 * nA, 2):
            pkb("v_pk_mul_f32", V + i, RC, V + i)
        for d in range(nA):
            a.op2e("v_cvt_pk_bf16_f32", XA + d, V + 2 * d, V + 2 * d + 1)

    def n32_masks(t):
        a.op2("v_lshrrev_b32", t, "2", 0)
        a.op2("v_and_b32", t, "3", t)
        for r in (1, 2, 3):
            a.cmp("v_cmp_eq_u32", sr(S_MASK + 2 * (r - 1), 2), str(r), t)
        a.op2("v_and_b32", t, "8", 0)
        a.cmp("v_cmp_ne_u32", sr(S_MASK + 6, 2), "0", t)

    def n32_core(PA, WP, ACC, T, P3ADDR):
        for x in range(2):
            a.cndmask(T + x, PA + x, "0", sr(S_MASK + 6, 2))
            a.cndmask(T + 2 + x, "0", PA + x, sr(S_MASK + 6, 2))
        for cc in range(2):
            for t in range(4):
                a.mfma16k16(ACC + 4 * t, T + 2 * cc, WP + 2 * (2 * t + cc), None if cc == 0 else ACC + 4 * t)
        for t in range(4):
            a.cndmask(T + 4 + t, ACC + 4 * t, ACC + 4 * t + 1, sr(S_MASK, 2))
            a.cndmask(T + 4 + t, T + 4 + t, ACC + 4 * t + 2, sr(S_MASK + 2, 2))
            a.cndmask(T + 4 + t, T + 4 + t, ACC + 4 * t + 3, sr(S_MASK + 4, 2))
        a.allreduce("v_add_f32", [T + 4 + t for t in range(4)], ["row_ror:4", "row_ror:8"], [])
        a.raw("s_mov_b32 exec_lo, 0x000f000f")
        a.raw("s_mov_b32 exec_hi, 0x000f000f")
        dsw(T + 4, 4, P3ADDR, L_P3)
        a.raw("s_mov_b64 exec, -1")

    def n32_final(L16, T):
        dsr(T, 4, L16, L_P3)
        dsr(T + 4, 4, L16, L_P3 + 1024)
        a.raw("s_waitcnt lgkmcnt(0)")
        pk("v_pk_add_f32", T, T, T + 4)
        pk("v_pk_add_f32", T + 2, T + 2, T + 6)
        a.swap32(T, T + 1)
        a.swap32(T + 2, T + 3)
        a.op2("v_add_f32", T, T, T + 1)
        a.op2("v_add_f32", T + 2, T + 2, T + 3)
        a.swap16(T, T + 2)
        a.op2("v_add_f32", T, T, T + 2)

    def n32_out_addr(d, t):
        a.op2("v_and_b32", d, "3", 0)
        a.op2("v_lshlrev_b32", d, "4", d)
        a.op2("v_and_b32", t, "4", 0)
        a.op3("v_lshl_add_u32", d, t, "4", d)
        a.op2("v_and_b32", t, "8", 0)
        a.op2("v_lshrrev_b32", t, "2", t)
        a.op2("v_add_u32", d, d, t)
        a.op2("v_and_b32", t, "16", 0)
        a.op2("v_lshrrev_b32", t, "1", t)
        a.op2("v_add_u32", d, d, t)
        a.op2("v_and_b32", t, "32", 0)
        a.op2("v_lshrrev_b32", t, "3", t)
        a.op2("v_add_u32", d, d, t)

    a.raw("s_cmp_ge_u32 s2, 256")
    a.raw("s_cbranch_scc1 L_end")
    a.raw("s_load_dwordx16 s[16:31], s[0:1], 0")
    a.raw("s_load_dwordx4 s[32:35], s[0:1], 64")
    a.raw("s_load_dwordx2 s[36:37], s[0:1], 80")
    stamp(0)
    if opts.get("padto"):
        a.raw("s_memrealtime s[100:101]")
    a.op2("v_lshrrev_b32", 1, "6", 0)
    a.op2("v_and_b32", 0, "63", 0)
    a.op2("v_lshrrev_b32", 3, "4", 0)
    a.valu("v_readfirstlane_b32 s3, v1", src=[1], sdst=["s3"])
    a.raw("s_and_b32 s4, s2, 7")
    a.raw("s_lshr_b32 s5, s2, 4")
    a.op2("v_lshlrev_b32", 7, "4", 0)
    a.raw("s_bitcmp1_b32 s2, 3")
    a.raw("s_cbranch_scc0 L_att")

    mark("tail0")
    XS, XA = 8, 16
    WR1, WP1 = 24, 56
    a.raw("s_lshl_b32 s14, s4, 4")
    a.raw("s_add_u32 s14, s14, s5")
    a.raw("s_cmp_ge_u32 s3, 4")
    a.raw("s_cbranch_scc1 L_t_aux")
    a.op2("v_lshrrev_b32", 2, "3", 0)
    a.op2("v_lshlrev_b32", 2, "13" if opts.get("wqpat") else "16", 2)
    a.op2("v_and_b32", 4, "7", 0)
    a.op3("v_lshl_add_u32", 6, 4, "4", 2)
    a.raw("s_lshr_b32 s10, s5, 3")
    a.raw("s_and_b32 s11, s5, 7")
    a.raw("s_lshl_b32 s8, s4, 10")
    a.raw("s_lshl_b32 s9, s11, 7")
    a.raw("s_add_u32 s8, s8, s9")
    a.raw("s_lshl_b32 s9, s10, 2")
    a.raw("s_add_u32 s9, s9, s3")
    a.raw("s_lshl_b32 s9, s9, 19")
    a.raw("s_add_u32 s8, s8, s9")
    a.raw("s_waitcnt lgkmcnt(0)")
    srd(R_B, P_WQ, 512 * 8192)
    if not opts.get("nob0t"):
        a.raw("s_barrier")
    for i in range(8):
        bload(WR1 + 4 * i, 4, 6, R_B, soff="s8", flags={"def": ""}.get(opts.get("wqf", SF), opts.get("wqf", SF)))
        if i < 7:
            a.raw(f"s_add_u32 s8, s8, {65536 if opts.get('wqpat') else 8192}")
    a.raw("s_branch L_tail1")
    a.label("L_t_aux")
    for r in range(4):
        a.op1("v_mov_b32", 124 + r, "-1")
    a.raw("s_waitcnt lgkmcnt(0)")
    srd_ws()
    srd(R_A, P_X, 2048)
    a.raw("s_cmp_eq_u32 s3, 4")
    a.raw("s_cbranch_scc1 L_t_x")
    a.raw("s_cmp_eq_u32 s3, 5")
    a.raw("s_cbranch_scc1 L_t_co")
    a.raw("s_cmp_eq_u32 s3, 6")
    a.raw("s_cbranch_scc1 L_t_ca")
    a.raw("s_cmp_lg_u32 s5, 0")
    a.raw("s_cbranch_scc1 L_t_auxb")
    a.raw("s_lshl_b32 s6, s4, 13")
    a.raw("s_add_u32 s7, s6, 4096")
    for k in range(8):
        bstore(124, 4, 7, R_WS, soff="s6" if k < 4 else "s7", imm=QB + (k & 3) * 1024, flags="sc1")
    a.raw("s_branch L_t_auxb")
    a.label("L_t_x")
    bload(XS, 4, 7, R_A)
    bload(XS + 4, 4, 7, R_A, imm=1024)
    a.raw("s_branch L_t_auxb")
    a.label("L_t_co")
    a.raw("s_lshl_b32 s9, s14, 11")
    a.raw(f"s_add_u32 s9, s9, {OB}")
    bstore(124, 4, 7, R_WS, soff="s9", flags="sc1")
    bstore(124, 4, 7, R_WS, soff="s9", imm=1024, flags="sc1")
    if opts.get("dual", 0):
        a.raw(f"s_add_u32 s9, s9, {OX - OB}")
        bstore(124, 4, 7, R_WS, soff="s9", flags="sc1")
        bstore(124, 4, 7, R_WS, soff="s9", imm=1024, flags="sc1")
    a.raw("s_branch L_t_auxb")
    a.label("L_t_ca")
    a.raw("s_cmp_ge_u32 s5, 8")
    a.raw("s_cbranch_scc1 L_t_auxb")
    a.raw("s_lshl_b32 s10, s4, 3")
    a.raw("s_add_u32 s10, s10, s5")
    a.raw("s_lshl_b32 s10, s10, 9")
    a.raw(f"s_add_u32 s10, s10, {AB}")
    a.raw("s_mov_b32 exec_hi, 0")
    bstore(124, 4, 7, R_WS, soff="s10", flags="sc1")
    a.raw("s_mov_b64 exec, -1")
    a.label("L_t_auxb")
    if not opts.get("nob0t"):
        a.raw("s_barrier")
    a.raw("s_branch L_tail1")

    mark("att0")
    a.label("L_att")
    VOFF, QOFF = 5, 6
    KR, VRAW, QR, SACC, PR, PM, OACC = 16, 48, 80, 96, 104, 108, 8
    a.op2("v_and_b32", 2, "15", 0)
    a.op2("v_xor_b32", 4, 2, 3)
    a.op2("v_lshlrev_b32", 4, "4", 4)
    for q in range(4):
        a.op2("v_xor_b32", 116 + q, str(64 * q), 4)
        a.op3("v_lshl_add_u32", 112 + q, 3, "8", 116 + q)
    a.op2("v_lshlrev_b32", 4, "10", 3)
    a.op3("v_lshl_add_u32", VOFF, 2, "4", 4)
    for t in ["s_lshr_b32 s6, s5, 3", "s_and_b32 s7, s5, 7", "s_lshl_b32 s8, s6, 3", "s_add_u32 s8, s8, s4",
              "s_lshl_b32 s8, s8, 13", "s_lshl_b32 s9, s7, 8", "s_add_u32 s8, s8, s9", "s_lshl_b32 s9, s3, 5",
              "s_add_u32 s8, s8, s9", "s_add_u32 s8, s8, 6144", "s_lshl_b32 s8, s8, 8", "s_add_u32 s9, s8, 4096",
              "s_lshl_b32 s13, s3, 13", f"s_add_u32 s13, s13, {L_K}", "s_add_u32 s12, s13, 4096", "s_mov_b32 m0, s13"]:
        a.raw(t)
    a.raw("s_waitcnt lgkmcnt(0)")
    srd(R_A, P_K, 0x2000000)
    for rr in range(opts.get("adelay", 0)):
        a.raw("s_mov_b64 exec, 1")
        bload(126, 1, 112 + rr, R_A, soff="s9", imm=2048 * rr, flags=SF)
        a.raw("s_mov_b64 exec, -1")
        a.raw("s_waitcnt vmcnt(0)")
    for T in range(2):
        if T:
            if opts.get("kpace", -1) >= 0:
                a.raw(f"s_waitcnt vmcnt({opts['kpace']})")
            a.raw("s_mov_b32 m0, s12")
            a.nop(1)
        for q in range(4):
            a.mem(f"buffer_load_dwordx4 v{112 + q}, {sr(R_A, 4)}, s{8 + T} offen offset:{q * 1024} {SF} lds",
                  src=[112 + q])
    srd(R_B, P_V, 0x2000000)
    if opts.get("vpace", -1) >= 0:
        a.raw(f"s_waitcnt vmcnt({opts['vpace']})")
    if opts.get("kbar", 1):
        a.raw("s_barrier")
    NV1 = opts.get("nv1", 6)
    srd(R_C, P_DBG, 256)
    a.raw("s_lshl_b32 s6, s4, 2")
    a.op1("v_mov_b32", 124, "s6")
    a.raw("s_cmp_lg_u32 s3, 0")
    a.raw("s_cbranch_scc1 L_a_nfs")
    a.raw("s_mov_b64 exec, 1")
    bload(125, 1, 124, R_C, imm=128, flags="sc1")
    a.raw("s_mov_b64 exec, -1")
    a.label("L_a_nfs")
    for i in range(NV1):
        bload(VRAW + i * 4, 4, VOFF, R_B, soff=f"s{8 + i // 4}", imm=(i % 4) * 256, flags=SF)
    a.raw("s_branch L_att1")

    mark("tail1")
    a.label("L_tail1")
    a.raw(f"s_mov_b32 s{S_SELLO}, 0x05040100")
    a.raw(f"s_mov_b32 s{S_SELHI}, 0x07060302")
    srd_ws()
    srd(R_A, P_X, 2048)
    srd(R_C, P_DBG, 256)
    a.raw("s_lshl_b32 s6, s4, 2")
    a.op1("v_mov_b32", 123, "s6")
    a.raw("s_cmp_lt_u32 s3, 4")
    a.raw("s_cbranch_scc1 L_t_main")
    a.raw("s_waitcnt vmcnt(0)")
    a.raw("s_cmp_lg_u32 s3, 4")
    a.raw("s_cbranch_scc1 L_t_a1")
    dsw(XS, 4, 7, L_H)
    dsw(XS + 4, 4, 7, L_H + 1024)
    a.raw("s_waitcnt lgkmcnt(0)")
    stamp(3)
    a.raw("s_barrier")
    a.raw("s_barrier")
    a.raw("s_branch L_t_np")
    a.label("L_t_a1")
    a.raw("s_lshl_b32 s6, s5, 3")
    a.raw("s_add_u32 s6, s6, s3")
    a.raw("s_cmp_lg_u32 s6, 7")
    a.raw("s_cbranch_scc1 L_t_a2")
    a.op1("v_mov_b32", 4, "1")
    a.raw("s_mov_b64 exec, 1")
    bstore(4, 1, 123, R_C, imm=128, flags="sc1")
    a.raw("s_mov_b64 exec, -1")
    a.label("L_t_a2")
    stamp(5)
    a.raw("s_barrier")
    a.raw("s_barrier")
    a.raw("s_branch L_t_np")
    a.label("L_t_main")
    a.op2("v_lshrrev_b32", 2, "2", 0)
    a.op2("v_and_b32", 5, "1", 0)
    a.op3("v_lshl_add_u32", 2, 2, "1", 5)
    a.op2("v_lshlrev_b32", 2, "4", 2)
    a.op2("v_and_b32", 6, "2", 0)
    a.op3("v_lshl_add_u32", 20, 6, "9", 2)
    a.op3("v_lshl_add_u32", 2, 3, "1", 5)
    a.raw("s_lshl_b32 s6, s10, 2")
    a.raw("s_add_u32 s6, s6, s3")
    a.raw("s_lshl_b32 s6, s6, 7")
    a.op3("v_lshl_add_u32", 21, 2, "4", "s6")
    a.op3("v_lshl_add_u32", 21, 6, "9", 21)
    a.op3("v_lshl_add_u32", 2, 3, "3", 4)
    a.raw("s_lshl_b32 s7, s3, 9")
    a.op3("v_lshl_add_u32", 22, 2, "4", "s7")
    a.op2("v_and_b32", 2, "31", 0)
    a.op2("v_lshlrev_b32", 2, "4", 2)
    a.op2("v_and_b32", 5, "32", 0)
    a.op3("v_lshl_add_u32", 23, 5, "5", 2)
    a.op2("v_lshrrev_b32", 2, "2", 0)
    a.op2("v_and_b32", 2, "3", 2)
    for c in range(4):
        a.cmp("v_cmp_eq_u32", sr(S_MASK + 2 * c, 2), str(c), 2)
    a.op2("v_and_b32", 2, "8", 0)
    a.cmp("v_cmp_ne_u32", "s[12:13]", "0", 2)
    a.raw("s_lshl_b32 s8, s14, 9")
    a.op2("v_lshlrev_b32", 6, "3", 0)
    a.raw("s_barrier")
    for s_ in range(2):
        dsr(XS + 4 * s_, 4, 20, L_H + 512 * s_)
    dsr(XA, 4, 21, L_H)
    a.raw("s_waitcnt lgkmcnt(0)")
    ln_norm4(XS, XA, 88, 104, nA=4, steps=["quad_perm:[1,0,3,2]", "row_ror:4", "row_ror:8", "x16", "x32"])
    for c in range(4):
        for x in range(4):
            a.cndmask(88 + 4 * c + x, "0", XA + x, sr(S_MASK + 2 * c, 2))
    stamp(2)
    a.raw("s_waitcnt vmcnt(4)")
    a.raw("s_cmp_lg_u32 s3, 0")
    a.raw("s_cbranch_scc1 L_t_nfs")
    a.raw("s_mov_b64 exec, 1")
    bload(5, 1, 123, R_C, imm=128, flags="sc1")
    a.raw("s_mov_b64 exec, -1")
    perm8(WR1, WP1, (0, 1))
    a.raw("s_waitcnt vmcnt(1)")
    a.raw("s_branch L_t_nfs2")
    a.label("L_t_nfs")
    perm8(WR1, WP1, (0, 1))
    a.raw("s_waitcnt vmcnt(0)")
    a.label("L_t_nfs2")
    stamp(1)
    perm8(WR1, WP1, (2, 3))
    for c in range(4):
        for t in range(2):
            a.mfma16(8 + 4 * t, 88 + 4 * c, WP1 + 4 * (2 * c + t), None if c == 0 else 8 + 4 * t)
    for b in range(2):
        for t in range(2):
            a.cndmask(16 + 2 * b + t, 8 + 4 * t + 2 * b, 8 + 4 * t + 2 * b + 1, "s[12:13]")
    a.allreduce("v_add_f32", [16, 17, 18, 19], ["row_ror:8"], [])
    a.raw("s_mov_b32 exec_lo, 0x00ff00ff")
    a.raw("s_mov_b32 exec_hi, 0x00ff00ff")
    dsw(16, 4, 22, L_P3)
    a.raw("s_mov_b64 exec, -1")
    a.raw("s_waitcnt lgkmcnt(0)")
    a.raw("s_barrier")
    stamp(4)
    a.raw("s_cmp_lg_u32 s3, 0")
    a.raw("s_cbranch_scc1 L_t_np")
    dsr(8, 4, 23, L_P3)
    dsr(12, 4, 23, L_P3 + 512)
    a.raw("s_waitcnt lgkmcnt(0)")
    for r in range(4):
        a.op2("v_add_f32", 8 + r, 8 + r, 12 + r)
    a.swap32(8, 10)
    a.swap32(9, 11)
    a.op2("v_add_f32", 8, 8, 10)
    a.op2("v_add_f32", 9, 9, 11)
    for r in range(2):
        a.op2("v_min_u32", 8 + r, "-2", 8 + r)
    a.raw("s_waitcnt vmcnt(0)")
    poll_flags(123, 128, "1", 5, pre_loaded=True)
    bstore(8, 2, 6, R_WS, soff="s8", imm=QB, flags="sc1")
    stamp(2)
    a.label("L_t_np")
    a.raw("s_barrier")
    a.raw("s_cmp_lt_u32 s5, 8")
    a.raw("s_cbranch_scc1 L_s3")
    a.raw("s_cmp_lt_u32 s5, 15")
    a.raw("s_cbranch_scc1 L_ffn")
    a.raw("s_cmp_eq_u32 s3, 1")
    a.raw("s_cbranch_scc1 L_touch")
    a.raw("s_cmp_lg_u32 s3, 0")
    a.raw("s_cbranch_scc1 L_exit")
    a.raw("s_lshl_b32 s8, s4, 13")
    a.raw("s_add_u32 s9, s8, 4096")
    a.op2("v_and_b32", 2, "15", 0)
    a.op2("v_lshlrev_b32", 2, "4", 2)
    a.op3("v_lshl_add_u32", 2, 3, "9", 2)
    poll_masked([(8 + 4 * k, 2, "s8" if k < 2 else "s9", QB + (k & 1) * 2048) for k in range(4)], 24, sleep=2)
    a.op1("v_mov_b32", 4, "1")
    a.raw("s_mov_b64 exec, 1")
    bstore(4, 1, 123, R_C, flags="sc1")
    a.raw("s_mov_b64 exec, -1")
    stamp(3)
    a.raw("s_branch L_exit")
    a.label("L_touch")
    a.raw("s_getpc_b64 s[6:7]")
    a.label("L_pc")
    a.raw(f"s_sub_u32 s6, s6, L_pc - {NAME}_kernel")
    a.raw("s_subb_u32 s7, s7, 0")
    for k in range(opts.get("code_kb", 10)):
        if k % 4 == 0 and k:
            a.op2("v_add_u32", 7, "4096", 7)
        a.mem(f"global_load_dwordx4 v[12:15], v7, s[6:7] offset:{(k % 4) * 1024}", src=[7], dst=[12, 13, 14, 15])
    a.raw("s_branch L_exit")

    a.label("L_att1")
    a.raw(f"s_mov_b32 s{S_SELLO}, 0x05040100")
    a.raw(f"s_mov_b32 s{S_SELHI}, 0x07060302")
    srd_ws()
    srd(R_A, P_X, 2048)
    srd(R_D, P_OUT, 2048)
    a.raw("s_lshl_b32 s14, s5, 3")
    a.raw("s_add_u32 s14, s14, s4")
    a.raw("s_lshl_b32 s15, s14, 12")
    a.raw(f"s_add_u32 s15, s15, {FB}")
    a.raw("s_lshl_b32 s12, s4, 13")
    a.raw("s_lshr_b32 s7, s5, 3")
    a.raw("s_lshl_b32 s7, s7, 8")
    a.raw("s_add_u32 s12, s12, s7")
    a.op2("v_lshlrev_b32", 126, "4", 2)
    a.op3("v_lshl_add_u32", 144, 3, "9", 126)
    a.op2("v_lshlrev_b32", 145, "7", 3)
    a.op2("v_and_b32", 126, "3", 0)
    a.op3("v_lshl_add_u32", 145, 126, "5", 145)
    a.op2("v_and_b32", 126, "12", 0)
    a.op2("v_add_u32", 145, 145, 126)
    for q in range(4):
        a.op3("v_lshl_add_u32", 116 + q, 2, "8", 116 + q)
        a.op2("v_add_u32", 116 + q, "s13", 116 + q)
    a.op2("v_and_b32", 2, "3", 0)
    a.op2("v_lshlrev_b32", 2, "8", 2)
    a.op3("v_lshl_add_u32", QOFF, 3, "4", 2)
    a.op2("v_lshrrev_b32", 2, "2", 0)
    a.op2("v_and_b32", 2, "3", 2)
    for c in range(4):
        a.cmp("v_cmp_eq_u32", sr(S_MASK + 2 * c, 2), str(c), 2)
    VOP = 160
    a.raw(f"s_mov_b32 s10, {SCALE}")
    a.raw(f"s_mov_b32 s11, {SCALE}")
    a.raw(f"s_mov_b32 s62, {LOG2E}")
    a.raw(f"s_mov_b32 s63, {LOG2E}")
    a.raw("s_add_u32 s39, s12, 4096")
    for r in range(4):
        a.op1("v_mov_b32", 12 + r, "-1")
    a.raw("s_lshl_b32 s6, s3, 3")
    a.op2("v_lshlrev_b32", 146, "6", 0)
    a.op2("v_add_u32", 146, "s6", 146)
    a.raw("s_lshl_b32 s6, s3, 13")
    a.op2("v_add_u32", 147, "s6", 7)
    a.op2("v_and_b32", 148, "3", 0)
    a.op2("v_lshlrev_b32", 148, "8", 148)
    a.op2("v_and_b32", 126, "12", 0)
    a.op3("v_lshl_add_u32", 148, 126, "4", 148)
    a.op2("v_and_b32", 126, "16", 0)
    a.op3("v_lshl_add_u32", 148, 126, "6", 148)
    a.op2("v_lshrrev_b32", 126, "5", 0)
    a.raw("s_lshl_b32 s6, s3, 1")
    a.op2("v_add_u32", 126, "s6", 126)
    a.op3("v_lshl_add_u32", 148, 126, "4", 148)
    a.op2("v_lshlrev_b32", 149, "6", 126)
    a.raw("s_lshl_b32 s6, s4, 4")
    a.raw("s_add_u32 s6, s6, s5")
    a.raw("s_lshl_b32 s6, s6, 1")
    a.raw("s_add_u32 s6, s6, s3")
    a.raw("s_lshl_b32 s6, s6, 10")
    a.raw(f"s_add_u32 s13, s6, {OB}")
    for r in range(4):
        a.raw(f"s_mov_b32 s{16 + r}, {0x07060500 + r:#x}")
    q1 = [(128 + 4 * k, 144, "s12" if k < 2 else "s39", QB + (k & 1) * 2048) for k in range(4)]
    q2 = [(192 + 4 * k, 144, "s12" if k < 2 else "s39", QB + (k & 1) * 2048) for k in range(4)]

    def q_check(base, lab):
        a.op3("v_max3_u32", 126, base, base + 1, base + 2)
        for r in range(base + 3, base + 15, 2):
            a.op3("v_max3_u32", 126, 126, r, r + 1)
        a.op2("v_max_u32", 126, 126, base + 15)
        a.valu("v_cmp_eq_u32_e32 vcc, -1, v126", src=[126], sdst=["vcc"])
        a.raw(f"s_cbranch_vccz {lab}")

    def q_fin(base):
        for k in range(2):
            pk("v_pk_add_f32", base + 4 * k, base + 4 * k, base + 8 + 4 * k)
            pk("v_pk_add_f32", base + 2 + 4 * k, base + 2 + 4 * k, base + 10 + 4 * k)
        for k in range(2):
            for x in range(2):
                a.op2e("v_cvt_pk_bf16_f32", base + 8 + 2 * k + x, base + 4 * k + 2 * x, base + 4 * k + 2 * x + 1)
        for k in range(2):
            for x in range(2):
                dsw(base + 8 + 2 * k + x, 1, 145, L_Q + 512 * k + 16 * x)

    def vload(i):
        bload(VRAW + i * 4, 4, VOFF, R_B, soff=f"s{8 + i // 4}", imm=(i % 4) * 256, flags=SF)

    NV2 = opts.get("nv2", 6)
    a.raw(f"s_waitcnt vmcnt({NV1})")
    for T in range(2):
        for s in range(4):
            dsr(KR + T * 16 + s * 4, 4, 116 + s, T * 4096)
    a.raw(f"s_cmp_ge_u32 s3, {opts.get('qw', 4)}")
    a.raw("s_cbranch_scc1 L_a_nt")
    a.raw(f"s_waitcnt vmcnt({NV1 - opts.get('qtrig', 1)})")
    a.label("L_a_nt")
    stamp(1)
    a.raw("s_barrier")
    a.raw("s_cmp_lg_u32 s3, 0")
    a.raw("s_cbranch_scc1 L_a_nq")
    poll_flags(124, 128, "1", 125, pre_loaded=True)
    for (d, vo, so, im) in q1:
        bload(d, 4, vo, R_WS, soff=so, imm=im, flags="sc1")
    a.label("L_a_nq")
    a.raw("s_barrier")
    for i in range(NV1, NV2):
        vload(i)
    if NV2 > NV1:
        a.raw("s_barrier")
        a.raw("s_cmp_lg_u32 s3, 0")
        a.raw("s_cbranch_scc1 L_a_nq1")
        for (d, vo, so, im) in q2:
            bload(d, 4, vo, R_WS, soff=so, imm=im, flags="sc1")
        a.label("L_a_nq1")
        a.raw("s_barrier")
    for i in range(NV2, 8):
        vload(i)
    a.raw("s_cmp_eq_u32 s3, 0")
    a.raw("s_cbranch_scc1 L_a_q")
    a.raw("s_cmp_lg_u32 s3, 1")
    a.raw("s_cbranch_scc1 L_a_nc")
    a.raw("s_cmp_ge_u32 s5, 8")
    a.raw("s_cbranch_scc1 L_a_nc")
    a.raw(f"s_waitcnt vmcnt({8 - NV1})")
    for k in range(4):
        bstore(12, 4, 7, R_WS, soff="s15", imm=k * 1024, flags="sc1")
    perm8(VRAW, VOP, tuple(range(NV1 // 2)))
    a.raw("s_branch L_a_nq2")
    a.label("L_a_nc")
    a.raw(f"s_waitcnt vmcnt({8 - NV1})")
    perm8(VRAW, VOP, tuple(range(NV1 // 2)))
    a.raw("s_branch L_a_nq2")
    a.label("L_a_q")
    nq2 = 4 if NV2 > NV1 else 0
    a.raw(f"s_waitcnt vmcnt({8 - NV1 + nq2})")
    q_check(128, "L_a_q1ok")
    if nq2:
        a.raw(f"s_waitcnt vmcnt({8 - NV2})")
        q_check(192, "L_a_q2ok")
    poll_masked(q1, 126, sleep=1)
    a.label("L_a_q1ok")
    q_fin(128)
    a.raw("s_branch L_a_q3")
    a.label("L_a_q2ok")
    q_fin(192)
    a.label("L_a_q3")
    a.raw("s_waitcnt lgkmcnt(0)")
    a.raw("s_barrier")
    for s in range(4):
        dsr(QR + 4 * s, 4, QOFF, L_Q + 64 * s)
    perm8(VRAW, VOP, tuple(range(NV1 // 2)))
    a.raw("s_branch L_a_qk")
    a.label("L_a_nq2")
    a.raw("s_waitcnt lgkmcnt(0)")
    a.raw("s_barrier")
    for s in range(4):
        dsr(QR + 4 * s, 4, QOFF, L_Q + 64 * s)
    a.label("L_a_qk")
    stamp(2)
    a.raw("s_waitcnt lgkmcnt(0)")
    for s in range(4):
        for T in range(2):
            a.mfma16(SACC + 4 * T, KR + T * 16 + s * 4, QR + 4 * s, None if s == 0 else SACC + 4 * T)
    SV = QR
    PK = QR + 8
    for d in range(4):
        a.op2e("v_cvt_pk_bf16_f32", PK + d, SACC + 2 * d, SACC + 2 * d + 1)
    unpack(SV, PK, 4)
    for i in range(0, 8, 2):
        a.valu(f"v_pk_mul_f32 {vr(SV + i, 2)}, {vr(SV + i, 2)}, s[10:11]", dst=[SV + i, SV + i + 1], src=[SV + i, SV + i + 1])
    for d in range(4):
        a.op2e("v_cvt_pk_bf16_f32", PK + d, SV + 2 * d, SV + 2 * d + 1)
    unpack(SV, PK, 4)
    MX, LS, TT, NM = QR + 12, QR + 13, QR + 14, SACC
    a.op3("v_max3_f32", MX, SV + 0, SV + 1, SV + 2)
    a.op3("v_max3_f32", TT, SV + 3, SV + 4, SV + 5)
    a.op3("v_max3_f32", MX, MX, SV + 6, SV + 7)
    a.op2("v_max_f32", MX, MX, TT)
    a.allreduce("v_max_f32", [MX], ["x16", "x32"], [TT])
    a.op2("v_mul_f32", MX, "s62", MX)
    a.op2("v_sub_f32", NM, "0", MX)
    a.op2("v_sub_f32", NM + 1, "0", MX)
    for i in range(0, 8, 2):
        a.valu(f"v_pk_fma_f32 {vr(SV + i, 2)}, {vr(SV + i, 2)}, s[62:63], {vr(NM, 2)}",
               dst=[SV + i, SV + i + 1], src=[SV + i, SV + i + 1, NM, NM + 1])
    for i in range(8):
        a.op1("v_exp_f32", SV + i, SV + i, kind="trans")
    for d in range(4):
        a.op2e("v_cvt_pk_bf16_f32", PR + d, SV + 2 * d, SV + 2 * d + 1)
    pk("v_pk_add_f32", SV, SV, SV + 2)
    pk("v_pk_add_f32", SV + 4, SV + 4, SV + 6)
    pk("v_pk_add_f32", SV, SV, SV + 4)
    a.op2("v_add_f32", LS, SV, SV + 1)
    for c in range(4):
        for x in range(4):
            a.cndmask(PM + 4 * c + x, "0", PR + x, sr(S_MASK + 2 * c, 2))
    a.raw("s_waitcnt vmcnt(0)")
    stamp(3)
    perm8(VRAW, VOP, tuple(range(NV1 // 2, 4)))
    for c in range(4):
        for ch in range(2):
            a.mfma16(OACC + 4 * ch, VOP + 4 * (ch * 4 + c), PM + 4 * c, None if c == 0 else OACC + 4 * ch)
    a.allreduce("v_add_f32", [LS], ["x16", "x32"], [TT])
    a.raw("s_mov_b64 exec, 15")
    dsw(MX, 2, 146, L_ST)
    a.raw("s_mov_b64 exec, -1")
    for ch in range(2):
        dsw(OACC + 4 * ch, 4, 147, L_K + 1024 * ch)
    a.raw("s_waitcnt lgkmcnt(0)")
    a.raw("s_barrier")
    a.raw("s_cmp_ge_u32 s3, 2")
    a.raw("s_cbranch_scc1 L_a_fin")
    OW, STV = 16, 48
    for k in range(4):
        dsr(STV + 4 * k, 4, 149, L_ST + 16 * k)
    for w in range(8):
        dsr(OW + 4 * w, 4, 148, L_K + 8192 * w)
    a.raw("s_waitcnt lgkmcnt(8)")
    Mx, Lx, E0 = 64, 65, 66
    a.op3("v_max3_f32", Mx, STV + 0, STV + 2, STV + 4)
    a.op3("v_max3_f32", Lx, STV + 6, STV + 8, STV + 10)
    a.op3("v_max3_f32", Mx, Mx, STV + 12, STV + 14)
    a.op2("v_max_f32", Mx, Mx, Lx)
    for w in range(8):
        a.op2("v_sub_f32", E0 + 2 * w, STV + 2 * w, Mx)
    for w in range(8):
        a.op1("v_exp_f32", E0 + 2 * w, E0 + 2 * w, kind="trans")
    a.op2("v_mul_f32", Lx, E0, STV + 1)
    a.op2("v_mul_f32", 84, E0 + 2, STV + 3)
    for w in range(2, 8, 2):
        a.op2("v_fmac_f32", Lx, E0 + 2 * w, STV + 2 * w + 1)
        a.op2("v_fmac_f32", 84, E0 + 2 * w + 2, STV + 2 * w + 3)
    a.op2("v_add_f32", Lx, Lx, 84)
    a.op1("v_rcp_f32", 82, Lx, kind="trans")
    a.op1("v_log_f32", 83, Lx, kind="trans")
    a.raw("s_waitcnt lgkmcnt(0)")

    for h in range(2):
        pkb("v_pk_mul_f32", 84 + 2 * h, E0, OW + 2 * h)
        pkb("v_pk_mul_f32", 88 + 2 * h, E0 + 2, OW + 4 + 2 * h)
    for w in range(2, 8, 2):
        for h in range(2):
            pkb("v_pk_fma_f32", 84 + 2 * h, E0 + 2 * w, OW + 4 * w + 2 * h, 84 + 2 * h)
            pkb("v_pk_fma_f32", 88 + 2 * h, E0 + 2 * w + 2, OW + 4 * w + 4 + 2 * h, 88 + 2 * h)
    a.op2("v_add_f32", 83, 83, Mx)
    for h in range(2):
        pk("v_pk_add_f32", 84 + 2 * h, 84 + 2 * h, 88 + 2 * h)
    for h in range(2):
        pkb("v_pk_mul_f32", 84 + 2 * h, 82, 84 + 2 * h)
    for r in range(4):
        a.op3("v_perm_b32", 84 + r, 84 + r, 83, f"s{16 + r}")
    for r in range(4):
        a.op2("v_min_u32", 84 + r, "-2", 84 + r)
    if opts.get("dual", 0):
        a.raw(f"s_add_u32 s6, s13, {OX - OB}")
        bstore(84, 4, 7, R_WS, soff="s6")
    bstore(84, 4, 7, R_WS, soff="s13", flags="sc1")
    stamp(4)
    a.raw("s_branch L_exit")
    a.label("L_a_fin")
    a.raw("s_cmp_lg_u32 s3, 2")
    a.raw("s_cbranch_scc1 L_exit")
    a.raw("s_cmp_ge_u32 s5, 8")
    a.raw("s_cbranch_scc1 L_exit")
    a.raw("s_lshr_b32 s6, s14, 4")
    a.raw("s_lshl_b32 s6, s6, 7")
    a.raw("s_and_b32 s7, s14, 3")
    a.raw("s_lshl_b32 s7, s7, 5")
    a.raw("s_add_u32 s6, s6, s7")
    a.raw("s_bfe_u32 s7, s14, 0x20002")
    a.raw("s_lshl_b32 s7, s7, 1")
    a.raw("s_add_u32 s6, s6, s7")
    a.op2("v_and_b32", 2, "3", 0)
    a.op2("v_lshlrev_b32", 2, "3", 2)
    a.op2("v_bfe_u32" if False else "v_lshrrev_b32", 3, "3", 0)
    a.op2("v_and_b32", 3, "1", 3)
    a.op3("v_add3_u32", 2, 2, 3, "s6")
    a.op2("v_and_b32", 3, "4", 0)
    a.op2("v_lshlrev_b32", 4, "1", 2)
    a.op3("v_lshl_add_u32", 4, 3, "8", 4)
    a.mem(f"buffer_load_ushort v10, v4, {sr(R_A, 4)}, 0 offen", src=[4], dst=[10])
    a.op2("v_lshrrev_b32", 5, "6", 2)
    a.op2("v_lshlrev_b32", 5, "9", 5)
    a.op3("v_lshl_add_u32", 5, 3, "6", 5)
    a.op2("v_and_b32", 6, "6", 2)
    a.op3("v_lshl_add_u32", 5, 6, "5", 5)
    a.op2("v_and_b32", 6, "56", 2)
    a.op2("v_add_u32", 5, 5, 6)
    a.op2("v_and_b32", 6, "1", 2)
    a.op3("v_lshl_add_u32", 5, 6, "2", 5)
    a.op2("v_lshrrev_b32", 6, "4", 0)
    a.op3("v_lshl_add_u32", 5, 6, "12", 5)
    a.op2("v_lshrrev_b32", 6, "2", 0)
    a.op2("v_and_b32", 6, "3", 6)
    for r in (1, 2, 3):
        a.cmp("v_cmp_eq_u32", sr(S_MASK + 2 * (r - 1), 2), str(r), 6)
    a.op2("v_lshlrev_b32", 6, "2", 0)
    F0 = 16
    for r in range(4):
        a.op1("v_mov_b32", F0 + 12 + r, "0")
    poll_flags(6, 0, "0xff", 8)
    a.raw(f"s_mov_b32 s8, {AB}")
    a.raw(f"s_mov_b32 s9, {AB + 16384}")
    if opts.get("db", 0) & 2:
        a.raw("s_lshl_b32 s6, s4, 12")
        a.raw("s_lshl_b32 s7, s5, 9")
        a.raw("s_add_u32 s6, s6, s7")
        a.raw("s_add_u32 s62, s8, s6")
        doorbell("s62", 8, lanes="1", sleep=8)
    poll_masked([(12, 5, "s8", 0), (13, 5, "s9", 0)], 8, sleep=4, width=1)
    stamp(4)
    a.op2("v_add_f32", 12, 12, 13)
    a.allreduce("v_add_f32", [12], ["x16", "x32"], [13])
    round_bf16(12, 12)
    a.op2("v_lshlrev_b32", 10, "16", 10)
    a.op2("v_add_f32", 12, 12, 10)
    round_bf16(12, 12)
    if opts.get("db", 0) & 4:
        doorbell("s15", 8, lanes="1")
    poll_masked([(F0 + 4 * k, 7, "s15", k * 1024) for k in range(4)], 8, sleep=opts.get("sleep_f", 2), last_hi="0")
    stamp(5)
    for h in range(2):
        pk("v_pk_add_f32", F0 + 2 * h, F0 + 2 * h, F0 + 4 + 2 * h)
        pk("v_pk_add_f32", F0 + 8 + 2 * h, F0 + 8 + 2 * h, F0 + 12 + 2 * h)
    for h in range(2):
        pk("v_pk_add_f32", F0 + 2 * h, F0 + 2 * h, F0 + 8 + 2 * h)
    a.allreduce("v_add_f32", [F0 + r for r in range(4)], ["row_ror:4", "row_ror:8"], [])
    for r in (1, 2, 3):
        a.cndmask(F0, F0, F0 + r, sr(S_MASK + 2 * (r - 1), 2))
    a.allreduce("v_add_f32", [F0], ["x16", "x32"], [F0 + 4])
    round_bf16(F0, F0)
    a.op2("v_add_f32", F0, F0, 12)
    a.op2e("v_cvt_pk_bf16_f32", F0, F0, F0)
    if opts.get("padto"):
        a.label("L_pad")
        a.raw("s_memrealtime s[6:7]")
        a.raw("s_waitcnt lgkmcnt(0)")
        a.raw("s_sub_u32 s6, s6, s100")
        a.raw(f"s_cmp_lt_u32 s6, {opts['padto']}")
        a.raw("s_cbranch_scc1 L_pad")
    a.raw("s_mov_b64 exec, 0xffff")
    bstore(F0, 1, 4, R_D, op="buffer_store_short", flags=opts.get("outf", ""))
    a.raw("s_mov_b64 exec, -1")
    stamp(6)
    a.raw("s_branch L_exit")

    a.label("L_s3")
    WR3, WP3, C, T = 16, 48, 80, 96
    srd(R_D, P_WO, 4096 * 1024)

    def s3_flags():
        a.raw("s_cmp_lg_u32 s3, 0")
        a.raw("s_cbranch_scc1 L_s3_nf")
        poll_flags(123, 0, "1", 5, sleep=8)
        a.label("L_s3_nf")
        a.raw("s_barrier")
    if opts.get("slate", 0):
        s3_flags()
    a.op2("v_and_b32", 2, "8", 0)
    a.op3("v_lshl_add_u32", 2, 2, "3", 3)
    a.op2("v_lshlrev_b32", 2, "10", 2)
    a.op2("v_and_b32", 4, "7", 0)
    a.op3("v_lshl_add_u32", 2, 4, "4", 2)
    a.raw("s_lshl_b32 s6, s4, 2")
    a.raw("s_lshr_b32 s7, s3, 1")
    a.raw("s_add_u32 s6, s6, s7")
    a.raw("s_lshl_b32 s6, s6, 7")
    a.raw("s_and_b32 s7, s3, 1")
    a.raw("s_lshl_b32 s7, s7, 2")
    a.raw("s_add_u32 s6, s6, s7")
    a.raw("s_lshl_b32 s6, s6, 10")
    a.raw("s_lshl_b32 s7, s5, 7")
    a.raw("s_add_u32 s6, s6, s7")
    for i in range(8):
        bload(WR3 + 4 * i, 4, 2, R_D, soff="s6", flags=SF)
        if i < 7:
            a.raw("s_add_u32 s6, s6, 8192")
    a.op2("v_lshlrev_b32", 5, "11", 3)
    a.op2("v_and_b32", 6, "15", 0)
    a.op3("v_lshl_add_u32", 8, 6, "4", 5)
    a.raw("s_lshl_b32 s6, s3, 8")
    a.op3("v_lshl_add_u32", 9, 6, "3", "s6")
    a.op2("v_and_b32", 5, "32", 0)
    a.op3("v_lshl_add_u32", 9, 5, "2", 9)
    a.op2("v_and_b32", 5, "1", 3)
    a.op3("v_lshl_add_u32", 9, 5, "2", 9)
    a.op2("v_and_b32", 5, "1", 0)
    a.op3("v_lshl_add_u32", 5, 3, "1", 5)
    a.op3("v_lshl_add_u32", 10, 5, "4", "s6")
    a.op2("v_and_b32", 5, "2", 0)
    a.op3("v_lshl_add_u32", 10, 5, "6", 10)
    a.op3("v_lshl_add_u32", 5, 3, "3", 4)
    a.raw("s_lshl_b32 s7, s3, 9")
    a.op3("v_lshl_add_u32", 11, 5, "4", "s7")
    a.op2("v_and_b32", 5, "31", 0)
    a.op2("v_lshlrev_b32", 5, "4", 5)
    a.op2("v_and_b32", 6, "32", 0)
    a.op3("v_lshl_add_u32", 12, 6, "6", 5)
    a.op2("v_lshlrev_b32", 13, "3", 0)
    a.raw("s_lshl_b32 s7, s4, 15")
    a.raw("s_add_u32 s6, s6, s7")
    for k in range(4):
        a.raw(f"s_add_u32 s{8 + k}, s6, {(OX if opts.get('dual', 0) else OB) + k * 8192}")
    a.raw("s_lshl_b32 s6, s4, 3")
    a.raw("s_add_u32 s6, s6, s5")
    a.raw("s_lshl_b32 s12, s6, 9")
    a.raw(f"s_add_u32 s12, s12, {AB}")
    a.op2("v_lshrrev_b32", 5, "2", 0)
    a.op2("v_and_b32", 5, "3", 5)
    a.op1("v_mov_b32", 6, str(L_G + 128))
    for c in range(4):
        a.cmp("v_cmp_eq_u32", "vcc", str(c), 5)
        a.cndmask(116 + c, 6, 10, "vcc")
    for r in range(4):
        a.op1("v_mov_b32", 112 + r, "0")
    dsw(112, 4, 6, 0)
    a.op2("v_and_b32", 5, "8", 0)
    a.cmp("v_cmp_ne_u32", "s[14:15]", "0", 5)
    a.raw("s_mov_b32 s13, 0x0c0c0400")
    a.raw("s_waitcnt vmcnt(0)")
    stamp(1)
    perm8(WR3, WP3)
    if not opts.get("slate", 0):
        s3_flags()
    stamp(3)
    if opts.get("db", 0) & 1:
        a.raw("s_lshl_b32 s6, s5, 12")
        a.raw("s_add_u32 s62, s8, s6")
        doorbell("s62", 5, lanes="1")
    poll_masked([(C + 4 * k, 8, f"s{8 + k}", 0) for k in range(4)], 5, sleep=opts.get("sleep_o", 2),
                alt=((OB - OX) & 0xffffffff) if opts.get("dual", 0) else None)
    stamp(4)
    LK = T
    for k in range(4):
        a.op3("v_perm_b32", LK + 2 * k, C + 4 * k + 1, C + 4 * k, "s13")
        a.op3("v_perm_b32", LK + 2 * k + 1, C + 4 * k + 3, C + 4 * k + 2, "s13")
    for k in range(4):
        a.op3("v_perm_b32", LK + 2 * k, LK + 2 * k + 1, LK + 2 * k, f"s{S_SELLO}")
    MM = T + 18
    for b in range(2):
        a.op2("v_max_f32", MM + b, LK + 4 * b, LK + 4 * b + 2)
    a.allreduce("v_max_f32", [MM, MM + 1], ["x16", "x32"], [T + 1, T + 3])
    for k in range(4):
        a.op2("v_sub_f32", LK + 2 * k, LK + 2 * k, MM + (k >> 1))
    for k in range(4):
        a.op1("v_exp_f32", LK + 2 * k, LK + 2 * k, kind="trans")
    AC = T + 8
    SS = T + 16
    for b in range(2):
        for h in range(2):
            pkb("v_pk_mul_f32", AC + 4 * b + 2 * h, LK + 4 * b, C + 8 * b + 2 * h)
        a.op2("v_add_f32", SS + b, LK + 4 * b, LK + 4 * b + 2)
    for b in range(2):
        for h in range(2):
            pkb("v_pk_fma_f32", AC + 4 * b + 2 * h, LK + 4 * b + 2, C + 8 * b + 4 + 2 * h, AC + 4 * b + 2 * h)
    a.swap32(SS, SS + 1)
    for r in range(4):
        a.swap32(AC + r, AC + 4 + r)
    a.op2("v_add_f32", SS, SS, SS + 1)
    pk("v_pk_add_f32", AC, AC, AC + 4)
    pk("v_pk_add_f32", AC + 2, AC + 2, AC + 6)
    a.op1("v_mov_b32", SS + 1, SS)
    a.swap16(AC, AC + 2)
    a.swap16(AC + 1, AC + 3)
    a.swap16(SS, SS + 1)
    a.op2("v_add_f32", SS, SS, SS + 1)
    pk("v_pk_add_f32", AC, AC, AC + 2)
    a.op1("v_rcp_f32", SS, SS, kind="trans")
    pkb("v_pk_mul_f32", AC, SS, AC)
    a.op2e("v_cvt_pk_bf16_f32", AC, AC, AC + 1)
    dsw(AC, 1, 9, L_ON)
    a.raw("s_waitcnt lgkmcnt(0)")
    AM, D0 = 16, 32
    for c in range(4):
        dsr(AM + 4 * c, 4, 116 + c, 0)
    for c in range(4):
        a.raw(f"s_waitcnt lgkmcnt({3 - c})")
        for t in range(2):
            a.mfma16(D0 + 4 * t, AM + 4 * c, WP3 + 4 * (2 * c + t), None if c == 0 else D0 + 4 * t)
    for b in range(2):
        for t in range(2):
            a.cndmask(T + 2 * b + t, D0 + 4 * t + 2 * b, D0 + 4 * t + 2 * b + 1, "s[14:15]")
    a.allreduce("v_add_f32", [T, T + 1, T + 2, T + 3], ["row_ror:8"], [])
    a.raw("s_mov_b32 exec_lo, 0x00ff00ff")
    a.raw("s_mov_b32 exec_hi, 0x00ff00ff")
    dsw(T, 4, 11, L_P3)
    a.raw("s_mov_b64 exec, -1")
    a.raw("s_waitcnt lgkmcnt(0)")
    a.raw("s_barrier")
    a.raw("s_cmp_lg_u32 s3, 2")
    a.raw("s_cbranch_scc1 L_exit")
    for w in range(4):
        dsr(T + 4 * w, 4, 12, L_P3 + 512 * w)
    a.raw("s_waitcnt lgkmcnt(0)")
    for h in range(2):
        pk("v_pk_add_f32", T + 2 * h, T + 2 * h, T + 4 + 2 * h)
        pk("v_pk_add_f32", T + 8 + 2 * h, T + 8 + 2 * h, T + 12 + 2 * h)
    for h in range(2):
        pk("v_pk_add_f32", T + 2 * h, T + 2 * h, T + 8 + 2 * h)
    a.swap32(T, T + 2)
    a.swap32(T + 1, T + 3)
    pk("v_pk_add_f32", T, T, T + 2)
    for r in range(2):
        a.op2("v_min_u32", T + r, "-2", T + r)
    bstore(T, 2, 13, R_WS, soff="s12", flags="sc1")
    stamp(2)
    a.raw("s_branch L_exit")

    a.label("L_ffn")
    a.op2("v_lshrrev_b32", 2, "3", 0)
    a.op2("v_and_b32", 4, "3", 0)
    a.op3("v_lshl_add_u32", 2, 2, "2", 4)
    a.op2("v_lshlrev_b32", 2, "4", 2)
    a.op2("v_and_b32", 5, "4", 0)
    a.op3("v_lshl_add_u32", 120, 5, "8", 2)
    a.op3("v_lshl_add_u32", 2, 3, "2", 4)
    a.raw("s_lshl_b32 s6, s3, 7")
    a.op3("v_lshl_add_u32", 121, 2, "3", "s6")
    a.op3("v_lshl_add_u32", 121, 5, "8", 121)
    a.raw("s_lshl_b32 s6, s3, 8")
    a.op3("v_lshl_add_u32", 122, 2, "4", "s6")
    n32_masks(2)
    n32_out_addr(119, 2)
    W1R, W1P, W2R, W2P, C, T = 20, 36, 128, 160, 96, 64
    a.raw("s_mul_i32 s6, s4, 7")
    a.raw("s_add_u32 s6, s6, s5")
    a.raw(f"s_sub_u32 s{S_PHI}, s6, 8")
    srd(R_D, P_W1, 512 * 3584)
    srd(R_B, P_W2, 1792 * 1024)

    def ffn_flags():
        a.op2("v_lshlrev_b32", 6, "2", 0)
        a.raw("s_cmp_lg_u32 s3, 0")
        a.raw("s_cbranch_scc1 L_f_nf")
        poll_flags(6, 0, "0xff", 5, sleep=16)
        a.label("L_f_nf")
        a.raw("s_barrier")
    if opts.get("flate", 0) == 1:
        ffn_flags()
    if opts.get("flate", 0) == 3:
        a.raw("s_cmp_lg_u32 s3, 0")
        a.raw("s_cbranch_scc1 L_f_nf3")
        poll_flags(123, 0, "1", 5, sleep=8)
        a.raw("s_lshl_b32 s62, s14, 11")
        a.raw(f"s_add_u32 s62, s62, {OB}")
        doorbell("s62", 5, lanes="1", sleep=8)
        a.label("L_f_nf3")
        a.raw("s_barrier")
    if opts.get("flate", 0) == 2:
        a.raw("s_cmp_lg_u32 s3, 0")
        a.raw("s_cbranch_scc1 L_f_nf0")
        poll_flags(123, 0, "1", 5, sleep=8)
        a.label("L_f_nf0")
        a.raw("s_barrier")
    a.op2("v_and_b32", 2, "12", 0)
    a.op2("v_lshlrev_b32", 2, "2", 2)
    a.op3("v_lshl_add_u32", 2, 3, "1", 2)
    a.op2("v_mul_u32_u24", 2, "3584", 2)
    a.op2("v_and_b32", 4, "3", 0)
    a.op3("v_lshl_add_u32", 2, 4, "4", 2)
    a.raw(f"s_mul_i32 s6, s3, {64 * 3584}")
    a.raw(f"s_lshl_b32 s7, s{S_PHI}, 6")
    a.raw("s_add_u32 s6, s6, s7")
    for i in range(4):
        a.raw(f"s_add_u32 s7, s6, {((i >> 1) * 8 + (i & 1)) * 3584}")
        bload(W1R + 4 * i, 4, 2, R_D, soff="s7", flags=SF)
    a.raw("s_cmp_ge_u32 s3, 4")
    a.raw("s_cbranch_scc1 L_f_n2")
    a.op2("v_lshlrev_b32", 2, "13", 3)
    a.op2("v_and_b32", 4, "15", 0)
    a.op3("v_lshl_add_u32", 2, 4, "4", 2)
    a.raw(f"s_lshl_b32 s6, s{S_PHI}, 15")
    a.raw("s_lshl_b32 s7, s3, 8")
    a.raw("s_add_u32 s6, s6, s7")
    a.raw("s_add_u32 s7, s6, 4096")
    for i in range(8):
        bload(W2R + 4 * i, 4, 2, R_B, soff="s6" if i < 4 else "s7", imm=(i & 3) * 1024, flags=SF)
    a.label("L_f_n2")
    a.op2("v_and_b32", 4, "31", 0)
    a.op2("v_and_b32", 5, "32", 0)
    a.op2("v_lshlrev_b32", 5, "7", 5)
    a.op3("v_lshl_add_u32", 8, 4, "4", 5)
    a.op2("v_and_b32", 5, "15", 0)
    a.raw("s_lshl_b32 s6, s3, 7")
    a.op3("v_lshl_add_u32", 9, 5, "3", "s6")
    a.op2("v_and_b32", 5, "16", 0)
    a.op3("v_lshl_add_u32", 9, 5, "6", 9)
    a.op2("v_and_b32", 6, "3", 0)
    a.op3("v_lshl_add_u32", 6, 6, "5", "s6")
    a.op3("v_lshl_add_u32", 6, 5, "6", 6)
    a.op2("v_and_b32", 5, "12", 0)
    a.op2("v_add_u32", 6, 6, 5)
    a.op2("v_and_b32", 5, "32", 0)
    a.op2("v_lshrrev_b32", 5, "1", 5)
    a.op2("v_add_u32", 6, 6, 5)
    a.op2("v_lshrrev_b32", 5, "2", 5)
    a.op2("v_add_u32", 9, 9, 5)
    bload(10, 1, 6, R_A)
    a.raw("s_lshl_b32 s6, s3, 9")
    for k in range(4):
        a.raw(f"s_add_u32 s{8 + k}, s6, {AB + k * 8192}")
    a.op2("v_and_b32", 5, "1", 0)
    a.op2("v_lshlrev_b32", 5, "6", 5)
    a.op3("v_lshl_add_u32", 5, 3, "4", 5)
    a.op2("v_lshrrev_b32", 6, "1", 0)
    a.op2("v_and_b32", 6, "7", 6)
    a.op1("v_mov_b32", 4, "0x80")
    for c in range(8):
        a.cmp("v_cmp_eq_u32", "vcc", str(c), 6)
        a.cndmask(192 + c, 4, 5, "vcc")
    for r in range(4):
        a.op1("v_mov_b32", 12 + r, "0")
    dsw(12, 4, 4, L_G)
    a.op2("v_and_b32", 5, "15", 0)
    a.op2("v_lshrrev_b32", 5, "2", 5)
    a.op3("v_lshl_add_u32", 5, 3, "2", 5)
    a.op2("v_lshlrev_b32", 5, "12", 5)
    a.op2("v_and_b32", 6, "3", 0)
    a.op3("v_lshl_add_u32", 200, 6, "4", 5)
    a.raw("s_lshl_b32 s12, s3, 16")
    a.raw(f"s_lshl_b32 s6, s{S_PHI}, 6")
    a.raw("s_add_u32 s12, s12, s6")
    a.raw(f"s_add_u32 s12, s12, {FB}")
    a.op2("v_lshlrev_b32", 6, "2", 0)
    a.raw("s_waitcnt vmcnt(0)")
    stamp(1)
    perm4(W1R, W1P)
    perm8(W2R, W2P)
    unpack(12, 10, 1)
    if opts.get("flate", 0) != 1:
        ffn_flags()
    stamp(3)
    if opts.get("db", 0) & 2:
        a.raw("s_lshl_b32 s6, s4, 12")
        a.raw("s_add_u32 s62, s8, s6")
        doorbell("s62", 5, lanes="1")
    poll_masked([(C + 4 * k, 8, f"s{8 + k}", 0) for k in range(4)], 4, sleep=opts.get("sleep_a", 2))
    stamp(5)
    pk("v_pk_add_f32", C, C, C + 4)
    pk("v_pk_add_f32", C + 2, C + 2, C + 6)
    pk("v_pk_add_f32", C + 8, C + 8, C + 12)
    pk("v_pk_add_f32", C + 10, C + 10, C + 14)
    pk("v_pk_add_f32", C, C, C + 8)
    pk("v_pk_add_f32", C + 2, C + 2, C + 10)
    a.swap32(C, C + 2)
    a.swap32(C + 1, C + 3)
    pk("v_pk_add_f32", C, C, C + 2)
    a.op2e("v_cvt_pk_bf16_f32", C + 4, C, C + 1)
    unpack(C, C + 4, 1)
    pk("v_pk_add_f32", C, C, 12)
    a.op2e("v_cvt_pk_bf16_f32", C + 4, C, C + 1)
    dsw(C + 4, 1, 9, L_H)
    a.raw("s_waitcnt lgkmcnt(0)")
    a.raw("s_barrier")
    for s in range(2):
        dsr(XS + 4 * s, 4, 120, L_H + 512 * s)
    dsr(XA, 2, 121, L_H)
    a.raw("s_waitcnt lgkmcnt(0)")
    ln_norm4(XS, XA, 64, 80)
    n32_core(XA, W1P, 64, 80, 122)
    a.raw("s_waitcnt lgkmcnt(0)")
    a.raw("s_barrier")
    a.raw("s_cmp_ge_u32 s3, 4")
    a.raw("s_cbranch_scc1 L_exit")
    n32_final(7, 80)
    round_bf16(80, 80)
    a.op2("v_mul_f32", 81, "0xbfb8aa3b", 80)
    a.op1("v_exp_f32", 81, 81, kind="trans")
    a.op2("v_add_f32", 81, "1.0", 81)
    a.op1("v_rcp_f32", 81, 81, kind="trans")
    a.op2("v_mul_f32", 80, 80, 81)
    a.op2e("v_cvt_pk_bf16_f32", 80, 80, 80)
    dsw(80, 1, 119, L_G, op="ds_write_b16")
    a.raw("s_waitcnt lgkmcnt(0)")
    stamp(4)
    for c in range(8):
        dsr(84 + 4 * c, 4, 192 + c, L_G)
    for c in range(8):
        a.raw(f"s_waitcnt lgkmcnt({7 - c})")
        a.mfma16(64, 84 + 4 * c, W2P + 4 * c, None if c == 0 else 64)
    for r in range(4):
        a.op2("v_min_u32", 64 + r, "-2", 64 + r)
    bstore(64, 4, 200, R_WS, soff="s12", flags="sc1")
    stamp(6)
    a.label("L_exit")
    dump_stamps()
    a.label("L_end")
    a.raw("s_endpgm")

    if opts.get("order", 0) == 1:
        L, m = a.lines, marks
        pro, t0, a0, rest = L[:m["tail0"]], L[m["tail0"]:m["att0"]], L[m["att0"]:m["tail1"]], L[m["tail1"]:]
        pro[-1] = "    s_cbranch_scc1 L_tail0"
        a.lines = pro + a0 + ["L_tail0:"] + t0 + rest

    hdr = open(f"cdna_kernels/{NAME}.s.ref").read().split("; Override launch")[0]
    out = hdr
    out += "; Override launch geometry by editing the next line (default: block=256,\n"
    out += "; grid=ceil(out_elems/256), lds=0). Harness parses it; keep it on one line.\n"
    out += f"; @launch grid=(256,1,1) block=(512,1,1) lds={LDS_BYTES}\n"
    out += '.amdgcn_target "amdgcn-amd-amdhsa--gfx950"\n.text\n'
    out += f".globl {NAME}_kernel\n.p2align 8\n.type {NAME}_kernel,@function\n{NAME}_kernel:\n"
    out += a.text()
    out += '.section .rodata,"a"\n.p2align 6\n'
    out += f".amdhsa_kernel {NAME}_kernel\n"
    out += "  .amdhsa_next_free_vgpr 208\n  .amdhsa_next_free_sgpr 102\n  .amdhsa_accum_offset 208\n"
    out += "  .amdhsa_group_segment_fixed_size 0\n  .amdhsa_kernarg_size 88\n  .amdhsa_user_sgpr_count 2\n"
    out += "  .amdhsa_user_sgpr_kernarg_segment_ptr 1\n  .amdhsa_system_sgpr_workgroup_id_x 1\n"
    out += "  .amdhsa_float_denorm_mode_32 3\n"
    out += ".end_amdhsa_kernel\n"
    return out


if __name__ == "__main__":
    debug = "--debug" in sys.argv
    path = [x for x in sys.argv[1:] if not x.startswith("--")]
    path = path[0] if path else f"cdna_kernels/{NAME}.s"
    opts = {}
    for x in sys.argv[1:]:
        if x.startswith("--opt="):
            k, v = x[6:].split(":")
            opts[k] = int(v) if v.lstrip("-").isdigit() else v
    open(path, "w").write(gen(debug, opts))
    print("wrote", path)
```

```python
import sys
from asmlib import Asm, vr, sr

NAME = "sequential_preLN__sliding_block_cached__dense_activation_silu__decode"

QB = 0
OB = 64 * 1024
AB = 384 * 1024
FB = 416 * 1024
OX = 704 * 1024
WS_BYTES = 1 << 20
TS_BASE = WS_BYTES
WS_SIZE_DBG = WS_BYTES + 256 * 8 * 128

L_Q = 0
L_ST = 1024
L_K = 2048
L_ON = 0
L_H = 2048
L_G = 4096
L_P3 = 4352
LDS_BYTES = 2048 + 65536

LOG2E = "0x3fb8aa3b"
SCALE = "0x3db504f3"
INV512 = "0x3b000000"
EPS = "0x3727c5ac"
POLL_MAX = 1 << 15

S_WG, S_WAVE, S_G, S_IDX = 2, 3, 4, 5
P_X, P_K, P_V, P_WQ, P_WO, P_W1, P_W2, P_OUT, P_DBG, P_WS = 16, 18, 20, 22, 24, 28, 30, 32, 34, 36
S_CNT = 38
S_PHI = 39
R_WS, R_A, R_B, R_C, R_D = 40, 44, 48, 52, 56
S_SELLO, S_SELHI = 60, 61
S_PM = 64
S_MASK = 80
S_TS = 88


def gen(debug=False, opts=None):
    opts = opts or {}
    SF = opts.get("stream_flags", "nt")
    a = Asm()
    marks = {}

    def mark(name):
        marks[name] = len(a.lines)

    site = [0]

    def stamp(k):
        import inspect
        site[0] += 1
        if opts.get("listsites"):
            print("site", site[0], "line", inspect.currentframe().f_back.f_lineno, "stamp", k)
        if opts.get("probe") == site[0]:
            a.raw("s_memrealtime s[98:99]")
            a.raw("s_mov_b32 s97, 1")
        if debug:
            a.raw(f"s_memrealtime {sr(S_TS + 2 * k, 2)}")

    def dump_stamps():
        if not debug:
            return
        a.raw("s_waitcnt vmcnt(0) lgkmcnt(0)")
        a.raw("s_mov_b64 exec, 1")
        a.raw(f"s_lshl_b32 s6, s{S_WG}, 3")
        a.raw(f"s_add_u32 s6, s6, s{S_WAVE}")
        a.raw("s_lshl_b32 s6, s6, 7")
        a.raw(f"s_add_u32 s6, s6, {TS_BASE}")
        a.op1("v_mov_b32", 1, "s6")
        for k in range(7):
            a.op1("v_mov_b32", 2, f"s{S_TS + 2 * k}")
            a.op1("v_mov_b32", 3, f"s{S_TS + 2 * k + 1}")
            a.mem(f"buffer_store_dwordx2 v[2:3], v1, {sr(R_WS, 4)}, 0 offen offset:{8 * k}", src=[1, 2, 3])
            a.nop(2)

    def srd(dst, ptr, size):
        a.raw(f"s_mov_b32 s{dst}, s{ptr}")
        a.raw(f"s_and_b32 s{dst + 1}, s{ptr + 1}, 0xffff")
        a.raw(f"s_mov_b32 s{dst + 2}, {size}")
        a.raw(f"s_mov_b32 s{dst + 3}, 0x20000")

    def srd_ws():
        srd(R_WS, P_WS, WS_SIZE_DBG if debug else WS_BYTES)

    def bload(d, n, off, srdb, soff="0", imm=0, flags=""):
        op = {1: "buffer_load_dword", 2: "buffer_load_dwordx2", 4: "buffer_load_dwordx4"}[n]
        t = f"{op} {vr(d, n)}, v{off}, {sr(srdb, 4)}, {soff} offen"
        if imm:
            t += f" offset:{imm}"
        if flags:
            t += " " + flags
        a.mem(t, src=[off], dst=list(range(d, d + n)))

    def bstore(s, n, off, srdb, soff="0", imm=0, flags="", op=None):
        op = op or {1: "buffer_store_dword", 2: "buffer_store_dwordx2", 4: "buffer_store_dwordx4"}[n]
        t = f"{op} {vr(s, n)}, v{off}, {sr(srdb, 4)}, {soff} offen"
        if imm:
            t += f" offset:{imm}"
        if flags:
            t += " " + flags
        regs = list(range(s, s + n))
        a.mem(t, src=[off] + regs, wide_store=regs if n == 4 else ())

    def dsr(d, n, addr, off):
        op = {1: "ds_read_b32", 2: "ds_read_b64", 4: "ds_read_b128"}[n]
        a.mem(f"{op} {vr(d, n)}, v{addr} offset:{off}", src=[addr], dst=list(range(d, d + n)))

    def dsw(s, n, addr, off, op=None):
        op = op or {1: "ds_write_b32", 2: "ds_write_b64", 4: "ds_write_b128"}[n]
        a.mem(f"{op} v{addr}, {vr(s, n)} offset:{off}", src=[addr] + list(range(s, s + n)))

    def poll_flags(voff, imm, lanes, tmp, pre_loaded=False, sleep=4):
        lp, dn, ck = a.newlabel("fp"), a.newlabel("fd"), a.newlabel("fc")
        a.raw(f"s_mov_b32 s{S_CNT}, {POLL_MAX}")
        a.raw(f"s_mov_b64 exec, {lanes}")
        if pre_loaded:
            a.raw(f"s_branch {ck}")
        a.label(lp)
        bload(tmp, 1, voff, R_C, imm=imm, flags="sc1")
        a.raw("s_waitcnt vmcnt(0)")
        a.label(ck)
        a.valu(f"v_cmp_ne_u32_e32 vcc, 1, v{tmp}", src=[tmp], sdst=["vcc"])
        a.raw(f"s_cbranch_vccz {dn}")
        a.raw(f"s_sleep {sleep}")
        a.raw(f"s_sub_u32 s{S_CNT}, s{S_CNT}, 1")
        a.raw(f"s_cmp_eq_u32 s{S_CNT}, 0")
        a.raw(f"s_cbranch_scc0 {lp}")
        a.label(dn)
        a.raw("s_mov_b64 exec, -1")

    def poll_masked(loads, tmp, sleep=2, width=4, last_hi=None, alt=None):
        n = len(loads)
        lp, dn = a.newlabel("pl"), a.newlabel("pd")
        a.raw(f"s_mov_b32 s{S_CNT}, {POLL_MAX}")
        for k, (d, vo, so, im) in enumerate(loads):
            if last_hi is not None and k == n - 1:
                a.raw(f"s_mov_b32 exec_hi, {last_hi}")
            bload(d, width, vo, R_WS, soff=so, imm=im, flags="sc1")
        if last_hi is not None:
            a.raw("s_mov_b64 exec, -1")
        a.label(lp)
        a.raw("s_waitcnt vmcnt(0)")
        for k, (d, vo, so, im) in enumerate(loads):
            t = tmp + (k & 1)
            if width == 4:
                a.op3("v_max3_u32", t, d, d + 1, d + 2)
                a.op2("v_max_u32", t, t, d + 3)
            else:
                t = d
            a.cmp("v_cmp_eq_u32", sr(S_PM + 2 * k, 2), "-1", t)
        a.nop(1)
        if n == 1:
            a.raw(f"s_cmp_eq_u64 {sr(S_PM, 2)}, 0")
        else:
            a.raw(f"s_or_b64 s[6:7], {sr(S_PM, 2)}, {sr(S_PM + 2, 2)}")
            for k in range(2, n):
                a.raw(f"s_or_b64 s[6:7], s[6:7], {sr(S_PM + 2 * k, 2)}")
            a.raw("s_cmp_eq_u64 s[6:7], 0")
        a.raw(f"s_cbranch_scc1 {dn}")
        if sleep:
            a.raw(f"s_sleep {sleep}")
        if alt is not None:
            a.raw(f"s_and_b32 s6, s{S_CNT}, {opts.get('altm', 3)}")
            a.raw("s_cmp_eq_u32 s6, 1")
            a.raw(f"s_cselect_b32 s7, {alt}, 0")
            a.raw("s_cmp_eq_u32 s6, 0")
            a.raw(f"s_cselect_b32 s7, {-alt & 0xffffffff:#x}, s7")
            a.raw(f"s_cmp_eq_u32 s{S_CNT}, {POLL_MAX}")
            a.raw("s_cselect_b32 s7, 0, s7")
            for so_ in dict.fromkeys(l[2] for l in loads):
                a.raw(f"s_add_u32 {so_}, {so_}, s7")
        for k, (d, vo, so, im) in enumerate(loads):
            sk = a.newlabel("sk")
            a.raw(f"s_mov_b64 exec, {sr(S_PM + 2 * k, 2)}")
            a.raw(f"s_cbranch_execz {sk}")
            bload(d, width, vo, R_WS, soff=so, imm=im, flags="sc1")
            a.label(sk)
        a.raw("s_mov_b64 exec, -1")
        a.raw(f"s_sub_u32 s{S_CNT}, s{S_CNT}, 1")
        a.raw(f"s_cmp_eq_u32 s{S_CNT}, 0")
        a.raw(f"s_cbranch_scc0 {lp}")
        a.raw("s_waitcnt vmcnt(0)")
        a.label(dn)

    def doorbell(soff, tmp, lanes="15", sleep=2):
        lp, dn = a.newlabel("db"), a.newlabel("dd")
        a.raw(f"s_mov_b32 s{S_CNT}, {POLL_MAX}")
        a.raw(f"s_mov_b64 exec, {lanes}")
        a.label(lp)
        bload(tmp, 1, 7, R_WS, soff=soff, flags="sc1")
        a.raw("s_waitcnt vmcnt(0)")
        a.valu(f"v_cmp_eq_u32_e32 vcc, -1, v{tmp}", src=[tmp], sdst=["vcc"])
        a.raw(f"s_cbranch_vccz {dn}")
        a.raw(f"s_sleep {sleep}")
        a.raw(f"s_sub_u32 s{S_CNT}, s{S_CNT}, 1")
        a.raw(f"s_cmp_eq_u32 s{S_CNT}, 0")
        a.raw(f"s_cbranch_scc0 {lp}")
        a.label(dn)
        a.raw("s_mov_b64 exec, -1")

    def perm8(raw, out, xs=(0, 1, 2, 3)):
        for x in xs:
            for j in range(4):
                lo, hi = raw + (2 * x) * 4 + j, raw + (2 * x + 1) * 4 + j
                a.op3("v_perm_b32", out + (2 * j) * 4 + x, hi, lo, f"s{S_SELLO}")
                a.op3("v_perm_b32", out + (2 * j + 1) * 4 + x, hi, lo, f"s{S_SELHI}")

    def perm4(raw, out):
        for j in range(4):
            for x in range(2):
                lo, hi = raw + (2 * x) * 4 + j, raw + (2 * x + 1) * 4 + j
                a.op3("v_perm_b32", out + (2 * j) * 2 + x, hi, lo, f"s{S_SELLO}")
                a.op3("v_perm_b32", out + (2 * j + 1) * 2 + x, hi, lo, f"s{S_SELHI}")

    def round_bf16(d, s):
        a.op2e("v_cvt_pk_bf16_f32", d, s, s)
        a.op2("v_lshlrev_b32", d, "16", d)

    def unpack(V, R, n):
        for d in range(n):
            a.op2("v_lshlrev_b32", V + 2 * d, "16", R + d)
            a.op2("v_and_b32", V + 2 * d + 1, "0xffff0000", R + d)

    LN_STEPS = ["quad_perm:[1,0,3,2]", "quad_perm:[2,3,0,1]", "row_ror:8", "x16", "x32"]

    def pk(op, d, x, y, z=None):
        regs = [x, x + 1, y, y + 1] + ([z, z + 1] if z is not None else [])
        t = f"{op} {vr(d, 2)}, {vr(x, 2)}, {vr(y, 2)}" + (f", {vr(z, 2)}" if z is not None else "")
        a.valu(t, dst=[d, d + 1], src=regs)

    def pkb(op, d, e, x, z=None):
        t = f"{op} {vr(d, 2)}, {vr(e, 2)}, {vr(x, 2)}" + (f", {vr(z, 2)}" if z is not None else "")
        t += " op_sel_hi:[0,1,1]" if z is not None else " op_sel_hi:[0,1]"
        a.valu(t, dst=[d, d + 1], src=[e, x, x + 1] + ([z, z + 1] if z is not None else []))

    def ln_norm4(R, XA, V, T, nA=2, steps=None):
        S, Q, MN, t0, M, RC = T, T + 2, T + 4, T + 6, T + 8, T + 6
        slow, join = a.newlabel("lnslow"), a.newlabel("lnjoin")
        if opts.get("fastln", 1):
            a.raw("s_mov_b32 s6, 0x3f803f80")

            def dot(d, x, y, c):
                yt = f"v{y}" if isinstance(y, int) else y
                ct = f"v{c}" if isinstance(c, int) else c
                a.valu(f"v_dot2_f32_bf16 v{d}, v{x}, {yt}, {ct}", dst=[d], src=[x])
            for d in range(0, 8, 2):
                dot(S, R + d, "s6", "0" if d == 0 else S)
                dot(Q, R + d, R + d, "0" if d == 0 else Q)
                dot(S + 1, R + d + 1, "s6", "0" if d == 0 else S + 1)
                dot(Q + 1, R + d + 1, R + d + 1, "0" if d == 0 else Q + 1)
            a.nop(3)
            a.op2("v_add_f32", S, S, S + 1)
            a.op2("v_add_f32", Q, Q, Q + 1)
            a.allreduce("v_add_f32", [S, Q], steps or LN_STEPS, [t0, t0 + 1])
            a.op2("v_mul_f32", MN, "0xbb000000", S)
            a.op2("v_mul_f32", t0, MN, S)
            a.op2("v_add_f32", Q, Q, t0)
            a.valu(f"v_cmp_nle_f32_e64 vcc, -v{t0}, v{Q}", src=[t0, Q], sdst=["vcc"])
            a.raw(f"s_cbranch_vccz {join}")
        unpack(V, R, 8)
        pk("v_pk_add_f32", S, V, V + 2)
        pk("v_pk_add_f32", Q, V + 4, V + 6)
        pk("v_pk_add_f32", S, S, V + 8)
        pk("v_pk_add_f32", Q, Q, V + 10)
        pk("v_pk_add_f32", S, S, V + 12)
        pk("v_pk_add_f32", Q, Q, V + 14)
        pk("v_pk_add_f32", S, S, Q)
        a.op2("v_add_f32", S, S, S + 1)
        a.allreduce("v_add_f32", [S], steps or LN_STEPS, [t0])
        a.op2("v_mul_f32", MN, "0xbb000000", S)
        for i in range(0, 16, 2):
            pkb("v_pk_add_f32", V + i, MN, V + i)
        pk("v_pk_mul_f32", Q, V, V)
        pk("v_pk_mul_f32", S, V + 2, V + 2)
        for i in range(4, 16, 4):
            pk("v_pk_fma_f32", Q, V + i, V + i, Q)
            pk("v_pk_fma_f32", S, V + i + 2, V + i + 2, S)
        pk("v_pk_add_f32", Q, Q, S)
        a.op2("v_add_f32", Q, Q, Q + 1)
        a.allreduce("v_add_f32", [Q], steps or LN_STEPS, [t0])
        a.label(join)
        a.fence(4)
        round_bf16(M, MN)
        unpack(V, XA, nA)
        a.op2("v_mul_f32", Q, INV512, Q)
        round_bf16(Q, Q)
        a.op2("v_add_f32", Q, EPS, Q)
        round_bf16(Q, Q)
        a.op1("v_sqrt_f32", Q, Q, kind="trans")
        for i in range(0, 2 * nA, 2):
            pkb("v_pk_add_f32", V + i, M, V + i)
        round_bf16(Q, Q)
        a.op1("v_rcp_f32", RC, Q, kind="trans")
        for d in range(nA):
            a.op2e("v_cvt_pk_bf16_f32", XA + d, V + 2 * d, V + 2 * d + 1)
        unpack(V, XA, nA)
        for i in range(0, 2 * nA, 2):
            pkb("v_pk_mul_f32", V + i, RC, V + i)
        for d in range(nA):
            a.op2e("v_cvt_pk_bf16_f32", XA + d, V + 2 * d, V + 2 * d + 1)

    def n32_masks(t):
        a.op2("v_lshrrev_b32", t, "2", 0)
        a.op2("v_and_b32", t, "3", t)
        for r in (1, 2, 3):
            a.cmp("v_cmp_eq_u32", sr(S_MASK + 2 * (r - 1), 2), str(r), t)
        a.op2("v_and_b32", t, "8", 0)
        a.cmp("v_cmp_ne_u32", sr(S_MASK + 6, 2), "0", t)

    def n32_core(PA, WP, ACC, T, P3ADDR):
        for x in range(2):
            a.cndmask(T + x, PA + x, "0", sr(S_MASK + 6, 2))
            a.cndmask(T + 2 + x, "0", PA + x, sr(S_MASK + 6, 2))
        for cc in range(2):
            for t in range(4):
                a.mfma16k16(ACC + 4 * t, T + 2 * cc, WP + 2 * (2 * t + cc), None if cc == 0 else ACC + 4 * t)
        for t in range(4):
            a.cndmask(T + 4 + t, ACC + 4 * t, ACC + 4 * t + 1, sr(S_MASK, 2))
            a.cndmask(T + 4 + t, T + 4 + t, ACC + 4 * t + 2, sr(S_MASK + 2, 2))
            a.cndmask(T + 4 + t, T + 4 + t, ACC + 4 * t + 3, sr(S_MASK + 4, 2))
        a.allreduce("v_add_f32", [T + 4 + t for t in range(4)], ["row_ror:4", "row_ror:8"], [])
        a.raw("s_mov_b32 exec_lo, 0x000f000f")
        a.raw("s_mov_b32 exec_hi, 0x000f000f")
        dsw(T + 4, 4, P3ADDR, L_P3)
        a.raw("s_mov_b64 exec, -1")

    def n32_final(L16, T):
        dsr(T, 4, L16, L_P3)
        dsr(T + 4, 4, L16, L_P3 + 1024)
        a.raw("s_waitcnt lgkmcnt(0)")
        pk("v_pk_add_f32", T, T, T + 4)
        pk("v_pk_add_f32", T + 2, T + 2, T + 6)
        a.swap32(T, T + 1)
        a.swap32(T + 2, T + 3)
        a.op2("v_add_f32", T, T, T + 1)
        a.op2("v_add_f32", T + 2, T + 2, T + 3)
        a.swap16(T, T + 2)
        a.op2("v_add_f32", T, T, T + 2)

    def n32_out_addr(d, t):
        a.op2("v_and_b32", d, "3", 0)
        a.op2("v_lshlrev_b32", d, "4", d)
        a.op2("v_and_b32", t, "4", 0)
        a.op3("v_lshl_add_u32", d, t, "4", d)
        a.op2("v_and_b32", t, "8", 0)
        a.op2("v_lshrrev_b32", t, "2", t)
        a.op2("v_add_u32", d, d, t)
        a.op2("v_and_b32", t, "16", 0)
        a.op2("v_lshrrev_b32", t, "1", t)
        a.op2("v_add_u32", d, d, t)
        a.op2("v_and_b32", t, "32", 0)
        a.op2("v_lshrrev_b32", t, "3", t)
        a.op2("v_add_u32", d, d, t)

    a.raw("s_cmp_ge_u32 s2, 256")
    a.raw("s_cbranch_scc1 L_end")
    a.raw("s_load_dwordx16 s[16:31], s[0:1], 0")
    a.raw("s_load_dwordx4 s[32:35], s[0:1], 64")
    a.raw("s_load_dwordx2 s[36:37], s[0:1], 80")
    if opts.get("probe"):
        a.raw("s_mov_b32 s97, 0")
    stamp(0)
    if opts.get("padto"):
        a.raw("s_memrealtime s[100:101]")
    a.op2("v_lshrrev_b32", 1, "6", 0)
    a.op2("v_and_b32", 0, "63", 0)
    a.op2("v_lshrrev_b32", 3, "4", 0)
    a.valu("v_readfirstlane_b32 s3, v1", src=[1], sdst=["s3"])
    a.raw("s_and_b32 s4, s2, 7")
    a.raw("s_lshr_b32 s5, s2, 4")
    a.op2("v_lshlrev_b32", 7, "4", 0)
    a.raw("s_bitcmp1_b32 s2, 3")
    a.raw("s_cbranch_scc0 L_att")

    mark("tail0")
    XS, XA = 8, 16
    WR1, WP1 = 24, 56
    a.raw("s_lshl_b32 s14, s4, 4")
    a.raw("s_add_u32 s14, s14, s5")
    a.raw("s_cmp_ge_u32 s3, 4")
    a.raw("s_cbranch_scc1 L_t_aux")
    a.op2("v_lshrrev_b32", 2, "3", 0)
    a.op2("v_lshlrev_b32", 2, "13" if opts.get("wqpat") else "16", 2)
    a.op2("v_and_b32", 4, "7", 0)
    a.op3("v_lshl_add_u32", 6, 4, "4", 2)
    a.raw("s_lshr_b32 s10, s5, 3")
    a.raw("s_and_b32 s11, s5, 7")
    a.raw("s_lshl_b32 s8, s4, 10")
    a.raw("s_lshl_b32 s9, s11, 7")
    a.raw("s_add_u32 s8, s8, s9")
    a.raw("s_lshl_b32 s9, s10, 2")
    a.raw("s_add_u32 s9, s9, s3")
    a.raw("s_lshl_b32 s9, s9, 19")
    a.raw("s_add_u32 s8, s8, s9")
    a.raw("s_waitcnt lgkmcnt(0)")
    srd(R_B, P_WQ, 512 * 8192)
    if not opts.get("nob0t"):
        a.raw("s_barrier")
    for i in range(8):
        bload(WR1 + 4 * i, 4, 6, R_B, soff="s8", flags={"def": ""}.get(opts.get("wqf", SF), opts.get("wqf", SF)))
        if i < 7:
            a.raw(f"s_add_u32 s8, s8, {65536 if opts.get('wqpat') else 8192}")
    a.raw("s_branch L_tail1")
    a.label("L_t_aux")
    for r in range(4):
        a.op1("v_mov_b32", 124 + r, "-1")
    a.raw("s_waitcnt lgkmcnt(0)")
    srd_ws()
    srd(R_A, P_X, 2048)
    a.raw("s_cmp_eq_u32 s3, 4")
    a.raw("s_cbranch_scc1 L_t_x")
    a.raw("s_cmp_eq_u32 s3, 5")
    a.raw("s_cbranch_scc1 L_t_co")
    a.raw("s_cmp_eq_u32 s3, 6")
    a.raw("s_cbranch_scc1 L_t_ca")
    a.raw("s_cmp_lg_u32 s5, 0")
    a.raw("s_cbranch_scc1 L_t_auxb")
    a.raw("s_lshl_b32 s6, s4, 13")
    a.raw("s_add_u32 s7, s6, 4096")
    for k in range(8):
        bstore(124, 4, 7, R_WS, soff="s6" if k < 4 else "s7", imm=QB + (k & 3) * 1024, flags="sc1")
    a.raw("s_branch L_t_auxb")
    a.label("L_t_x")
    bload(XS, 4, 7, R_A)
    bload(XS + 4, 4, 7, R_A, imm=1024)
    a.raw("s_branch L_t_auxb")
    a.label("L_t_co")
    a.raw("s_lshl_b32 s9, s14, 11")
    a.raw(f"s_add_u32 s9, s9, {OB}")
    bstore(124, 4, 7, R_WS, soff="s9", flags="sc1")
    bstore(124, 4, 7, R_WS, soff="s9", imm=1024, flags="sc1")
    if opts.get("dual", 0):
        a.raw(f"s_add_u32 s9, s9, {OX - OB}")
        bstore(124, 4, 7, R_WS, soff="s9", flags="sc1")
        bstore(124, 4, 7, R_WS, soff="s9", imm=1024, flags="sc1")
    a.raw("s_branch L_t_auxb")
    a.label("L_t_ca")
    a.raw("s_cmp_ge_u32 s5, 8")
    a.raw("s_cbranch_scc1 L_t_auxb")
    a.raw("s_lshl_b32 s10, s4, 3")
    a.raw("s_add_u32 s10, s10, s5")
    a.raw("s_lshl_b32 s10, s10, 9")
    a.raw(f"s_add_u32 s10, s10, {AB}")
    a.raw("s_mov_b32 exec_hi, 0")
    bstore(124, 4, 7, R_WS, soff="s10", flags="sc1")
    a.raw("s_mov_b64 exec, -1")
    a.label("L_t_auxb")
    if not opts.get("nob0t"):
        a.raw("s_barrier")
    a.raw("s_branch L_tail1")

    mark("att0")
    a.label("L_att")
    VOFF, QOFF = 5, 6
    KR, VRAW, QR, SACC, PR, PM, OACC = 16, 48, 80, 96, 104, 108, 8
    a.op2("v_and_b32", 2, "15", 0)
    a.op2("v_xor_b32", 4, 2, 3)
    a.op2("v_lshlrev_b32", 4, "4", 4)
    for q in range(4):
        a.op2("v_xor_b32", 116 + q, str(64 * q), 4)
        a.op3("v_lshl_add_u32", 112 + q, 3, "8", 116 + q)
    a.op2("v_lshlrev_b32", 4, "10", 3)
    a.op3("v_lshl_add_u32", VOFF, 2, "4", 4)
    for t in ["s_lshr_b32 s6, s5, 3", "s_and_b32 s7, s5, 7", "s_lshl_b32 s8, s6, 3", "s_add_u32 s8, s8, s4",
              "s_lshl_b32 s8, s8, 13", "s_lshl_b32 s9, s7, 8", "s_add_u32 s8, s8, s9", "s_lshl_b32 s9, s3, 5",
              "s_add_u32 s8, s8, s9", "s_add_u32 s8, s8, 6144", "s_lshl_b32 s8, s8, 8", "s_add_u32 s9, s8, 4096",
              "s_lshl_b32 s13, s3, 13", f"s_add_u32 s13, s13, {L_K}", "s_add_u32 s12, s13, 4096", "s_mov_b32 m0, s13"]:
        a.raw(t)
    a.raw("s_waitcnt lgkmcnt(0)")
    srd(R_A, P_K, 0x2000000)
    for rr in range(opts.get("adelay", 0)):
        a.raw("s_mov_b64 exec, 1")
        bload(126, 1, 112 + rr, R_A, soff="s9", imm=2048 * rr, flags=SF)
        a.raw("s_mov_b64 exec, -1")
        a.raw("s_waitcnt vmcnt(0)")
    for T in range(2):
        if T:
            if opts.get("kpace", -1) >= 0:
                a.raw(f"s_waitcnt vmcnt({opts['kpace']})")
            a.raw("s_mov_b32 m0, s12")
            a.nop(1)
        for q in range(4):
            a.mem(f"buffer_load_dwordx4 v{112 + q}, {sr(R_A, 4)}, s{8 + T} offen offset:{q * 1024} {SF} lds",
                  src=[112 + q])
    srd(R_B, P_V, 0x2000000)
    if opts.get("vpace", -1) >= 0:
        a.raw(f"s_waitcnt vmcnt({opts['vpace']})")
    if opts.get("kbar", 1):
        a.raw("s_barrier")
    NV1 = opts.get("nv1", 6)
    srd(R_C, P_DBG, 256)
    a.raw("s_lshl_b32 s6, s4, 2")
    a.op1("v_mov_b32", 124, "s6")
    a.raw("s_cmp_lg_u32 s3, 0")
    a.raw("s_cbranch_scc1 L_a_nfs")
    a.raw("s_mov_b64 exec, 1")
    bload(125, 1, 124, R_C, imm=128, flags="sc1")
    a.raw("s_mov_b64 exec, -1")
    a.label("L_a_nfs")
    for i in range(NV1):
        bload(VRAW + i * 4, 4, VOFF, R_B, soff=f"s{8 + i // 4}", imm=(i % 4) * 256, flags=SF)
    a.raw("s_branch L_att1")

    mark("tail1")
    a.label("L_tail1")
    a.raw(f"s_mov_b32 s{S_SELLO}, 0x05040100")
    a.raw(f"s_mov_b32 s{S_SELHI}, 0x07060302")
    srd_ws()
    srd(R_A, P_X, 2048)
    srd(R_C, P_DBG, 256)
    a.raw("s_lshl_b32 s6, s4, 2")
    a.op1("v_mov_b32", 123, "s6")
    a.raw("s_cmp_lt_u32 s3, 4")
    a.raw("s_cbranch_scc1 L_t_main")
    a.raw("s_waitcnt vmcnt(0)")
    a.raw("s_cmp_lg_u32 s3, 4")
    a.raw("s_cbranch_scc1 L_t_a1")
    dsw(XS, 4, 7, L_H)
    dsw(XS + 4, 4, 7, L_H + 1024)
    a.raw("s_waitcnt lgkmcnt(0)")
    stamp(3)
    a.raw("s_barrier")
    a.raw("s_barrier")
    a.raw("s_branch L_t_np")
    a.label("L_t_a1")
    a.raw("s_lshl_b32 s6, s5, 3")
    a.raw("s_add_u32 s6, s6, s3")
    a.raw("s_cmp_lg_u32 s6, 7")
    a.raw("s_cbranch_scc1 L_t_a2")
    a.op1("v_mov_b32", 4, "1")
    a.raw("s_mov_b64 exec, 1")
    bstore(4, 1, 123, R_C, imm=128, flags="sc1")
    a.raw("s_mov_b64 exec, -1")
    a.label("L_t_a2")
    stamp(5)
    a.raw("s_barrier")
    a.raw("s_barrier")
    a.raw("s_branch L_t_np")
    a.label("L_t_main")
    a.op2("v_lshrrev_b32", 2, "2", 0)
    a.op2("v_and_b32", 5, "1", 0)
    a.op3("v_lshl_add_u32", 2, 2, "1", 5)
    a.op2("v_lshlrev_b32", 2, "4", 2)
    a.op2("v_and_b32", 6, "2", 0)
    a.op3("v_lshl_add_u32", 20, 6, "9", 2)
    a.op3("v_lshl_add_u32", 2, 3, "1", 5)
    a.raw("s_lshl_b32 s6, s10, 2")
    a.raw("s_add_u32 s6, s6, s3")
    a.raw("s_lshl_b32 s6, s6, 7")
    a.op3("v_lshl_add_u32", 21, 2, "4", "s6")
    a.op3("v_lshl_add_u32", 21, 6, "9", 21)
    a.op3("v_lshl_add_u32", 2, 3, "3", 4)
    a.raw("s_lshl_b32 s7, s3, 9")
    a.op3("v_lshl_add_u32", 22, 2, "4", "s7")
    a.op2("v_and_b32", 2, "31", 0)
    a.op2("v_lshlrev_b32", 2, "4", 2)
    a.op2("v_and_b32", 5, "32", 0)
    a.op3("v_lshl_add_u32", 23, 5, "5", 2)
    a.op2("v_lshrrev_b32", 2, "2", 0)
    a.op2("v_and_b32", 2, "3", 2)
    for c in range(4):
        a.cmp("v_cmp_eq_u32", sr(S_MASK + 2 * c, 2), str(c), 2)
    a.op2("v_and_b32", 2, "8", 0)
    a.cmp("v_cmp_ne_u32", "s[12:13]", "0", 2)
    a.raw("s_lshl_b32 s8, s14, 9")
    a.op2("v_lshlrev_b32", 6, "3", 0)
    a.raw("s_barrier")
    for s_ in range(2):
        dsr(XS + 4 * s_, 4, 20, L_H + 512 * s_)
    dsr(XA, 4, 21, L_H)
    a.raw("s_waitcnt lgkmcnt(0)")
    ln_norm4(XS, XA, 88, 104, nA=4, steps=["quad_perm:[1,0,3,2]", "row_ror:4", "row_ror:8", "x16", "x32"])
    for c in range(4):
        for x in range(4):
            a.cndmask(88 + 4 * c + x, "0", XA + x, sr(S_MASK + 2 * c, 2))
    stamp(2)
    a.raw("s_waitcnt vmcnt(4)")
    a.raw("s_cmp_lg_u32 s3, 0")
    a.raw("s_cbranch_scc1 L_t_nfs")
    a.raw("s_mov_b64 exec, 1")
    bload(5, 1, 123, R_C, imm=128, flags="sc1")
    a.raw("s_mov_b64 exec, -1")
    perm8(WR1, WP1, (0, 1))
    a.raw("s_waitcnt vmcnt(1)")
    a.raw("s_branch L_t_nfs2")
    a.label("L_t_nfs")
    perm8(WR1, WP1, (0, 1))
    a.raw("s_waitcnt vmcnt(0)")
    a.label("L_t_nfs2")
    stamp(1)
    perm8(WR1, WP1, (2, 3))
    for c in range(4):
        for t in range(2):
            a.mfma16(8 + 4 * t, 88 + 4 * c, WP1 + 4 * (2 * c + t), None if c == 0 else 8 + 4 * t)
    for b in range(2):
        for t in range(2):
            a.cndmask(16 + 2 * b + t, 8 + 4 * t + 2 * b, 8 + 4 * t + 2 * b + 1, "s[12:13]")
    a.allreduce("v_add_f32", [16, 17, 18, 19], ["row_ror:8"], [])
    a.raw("s_mov_b32 exec_lo, 0x00ff00ff")
    a.raw("s_mov_b32 exec_hi, 0x00ff00ff")
    dsw(16, 4, 22, L_P3)
    a.raw("s_mov_b64 exec, -1")
    a.raw("s_waitcnt lgkmcnt(0)")
    a.raw("s_barrier")
    stamp(4)
    a.raw("s_cmp_lg_u32 s3, 0")
    a.raw("s_cbranch_scc1 L_t_np")
    dsr(8, 4, 23, L_P3)
    dsr(12, 4, 23, L_P3 + 512)
    a.raw("s_waitcnt lgkmcnt(0)")
    for r in range(4):
        a.op2("v_add_f32", 8 + r, 8 + r, 12 + r)
    a.swap32(8, 10)
    a.swap32(9, 11)
    a.op2("v_add_f32", 8, 8, 10)
    a.op2("v_add_f32", 9, 9, 11)
    for r in range(2):
        a.op2("v_min_u32", 8 + r, "-2", 8 + r)
    a.raw("s_waitcnt vmcnt(0)")
    poll_flags(123, 128, "1", 5, pre_loaded=True)
    bstore(8, 2, 6, R_WS, soff="s8", imm=QB, flags="sc1")
    stamp(2)
    a.label("L_t_np")
    a.raw("s_barrier")
    a.raw("s_cmp_lt_u32 s5, 8")
    a.raw("s_cbranch_scc1 L_s3")
    a.raw("s_cmp_lt_u32 s5, 15")
    a.raw("s_cbranch_scc1 L_ffn")
    a.raw("s_cmp_eq_u32 s3, 1")
    a.raw("s_cbranch_scc1 L_touch")
    a.raw("s_cmp_lg_u32 s3, 0")
    a.raw("s_cbranch_scc1 L_exit")
    a.raw("s_lshl_b32 s8, s4, 13")
    a.raw("s_add_u32 s9, s8, 4096")
    a.op2("v_and_b32", 2, "15", 0)
    a.op2("v_lshlrev_b32", 2, "4", 2)
    a.op3("v_lshl_add_u32", 2, 3, "9", 2)
    poll_masked([(8 + 4 * k, 2, "s8" if k < 2 else "s9", QB + (k & 1) * 2048) for k in range(4)], 24, sleep=2)
    a.op1("v_mov_b32", 4, "1")
    a.raw("s_mov_b64 exec, 1")
    bstore(4, 1, 123, R_C, flags="sc1")
    a.raw("s_mov_b64 exec, -1")
    stamp(3)
    a.raw("s_branch L_exit")
    a.label("L_touch")
    a.raw("s_getpc_b64 s[6:7]")
    a.label("L_pc")
    a.raw(f"s_sub_u32 s6, s6, L_pc - {NAME}_kernel")
    a.raw("s_subb_u32 s7, s7, 0")
    for k in range(opts.get("code_kb", 10)):
        if k % 4 == 0 and k:
            a.op2("v_add_u32", 7, "4096", 7)
        a.mem(f"global_load_dwordx4 v[12:15], v7, s[6:7] offset:{(k % 4) * 1024}", src=[7], dst=[12, 13, 14, 15])
    a.raw("s_branch L_exit")

    a.label("L_att1")
    a.raw(f"s_mov_b32 s{S_SELLO}, 0x05040100")
    a.raw(f"s_mov_b32 s{S_SELHI}, 0x07060302")
    srd_ws()
    srd(R_A, P_X, 2048)
    srd(R_D, P_OUT, 2048)
    a.raw("s_lshl_b32 s14, s5, 3")
    a.raw("s_add_u32 s14, s14, s4")
    a.raw("s_lshl_b32 s15, s14, 12")
    a.raw(f"s_add_u32 s15, s15, {FB}")
    a.raw("s_lshl_b32 s12, s4, 13")
    a.raw("s_lshr_b32 s7, s5, 3")
    a.raw("s_lshl_b32 s7, s7, 8")
    a.raw("s_add_u32 s12, s12, s7")
    a.op2("v_lshlrev_b32", 126, "4", 2)
    a.op3("v_lshl_add_u32", 144, 3, "9", 126)
    a.op2("v_lshlrev_b32", 145, "7", 3)
    a.op2("v_and_b32", 126, "3", 0)
    a.op3("v_lshl_add_u32", 145, 126, "5", 145)
    a.op2("v_and_b32", 126, "12", 0)
    a.op2("v_add_u32", 145, 145, 126)
    for q in range(4):
        a.op3("v_lshl_add_u32", 116 + q, 2, "8", 116 + q)
        a.op2("v_add_u32", 116 + q, "s13", 116 + q)
    a.op2("v_and_b32", 2, "3", 0)
    a.op2("v_lshlrev_b32", 2, "8", 2)
    a.op3("v_lshl_add_u32", QOFF, 3, "4", 2)
    a.op2("v_lshrrev_b32", 2, "2", 0)
    a.op2("v_and_b32", 2, "3", 2)
    for c in range(4):
        a.cmp("v_cmp_eq_u32", sr(S_MASK + 2 * c, 2), str(c), 2)
    VOP = 160
    a.raw(f"s_mov_b32 s10, {SCALE}")
    a.raw(f"s_mov_b32 s11, {SCALE}")
    a.raw(f"s_mov_b32 s62, {LOG2E}")
    a.raw(f"s_mov_b32 s63, {LOG2E}")
    a.raw("s_add_u32 s39, s12, 4096")
    for r in range(4):
        a.op1("v_mov_b32", 12 + r, "-1")
    a.raw("s_lshl_b32 s6, s3, 3")
    a.op2("v_lshlrev_b32", 146, "6", 0)
    a.op2("v_add_u32", 146, "s6", 146)
    a.raw("s_lshl_b32 s6, s3, 13")
    a.op2("v_add_u32", 147, "s6", 7)
    a.op2("v_and_b32", 148, "3", 0)
    a.op2("v_lshlrev_b32", 148, "8", 148)
    a.op2("v_and_b32", 126, "12", 0)
    a.op3("v_lshl_add_u32", 148, 126, "4", 148)
    a.op2("v_and_b32", 126, "16", 0)
    a.op3("v_lshl_add_u32", 148, 126, "6", 148)
    a.op2("v_lshrrev_b32", 126, "5", 0)
    a.raw("s_lshl_b32 s6, s3, 1")
    a.op2("v_add_u32", 126, "s6", 126)
    a.op3("v_lshl_add_u32", 148, 126, "4", 148)
    a.op2("v_lshlrev_b32", 149, "6", 126)
    a.raw("s_lshl_b32 s6, s4, 4")
    a.raw("s_add_u32 s6, s6, s5")
    a.raw("s_lshl_b32 s6, s6, 1")
    a.raw("s_add_u32 s6, s6, s3")
    a.raw("s_lshl_b32 s6, s6, 10")
    a.raw(f"s_add_u32 s13, s6, {OB}")
    for r in range(4):
        a.raw(f"s_mov_b32 s{16 + r}, {0x07060500 + r:#x}")
    q1 = [(128 + 4 * k, 144, "s12" if k < 2 else "s39", QB + (k & 1) * 2048) for k in range(4)]
    q2 = [(192 + 4 * k, 144, "s12" if k < 2 else "s39", QB + (k & 1) * 2048) for k in range(4)]

    def q_check(base, lab):
        a.op3("v_max3_u32", 126, base, base + 1, base + 2)
        for r in range(base + 3, base + 15, 2):
            a.op3("v_max3_u32", 126, 126, r, r + 1)
        a.op2("v_max_u32", 126, 126, base + 15)
        a.valu("v_cmp_eq_u32_e32 vcc, -1, v126", src=[126], sdst=["vcc"])
        a.raw(f"s_cbranch_vccz {lab}")

    def q_fin(base):
        for k in range(2):
            pk("v_pk_add_f32", base + 4 * k, base + 4 * k, base + 8 + 4 * k)
            pk("v_pk_add_f32", base + 2 + 4 * k, base + 2 + 4 * k, base + 10 + 4 * k)
        for k in range(2):
            for x in range(2):
                a.op2e("v_cvt_pk_bf16_f32", base + 8 + 2 * k + x, base + 4 * k + 2 * x, base + 4 * k + 2 * x + 1)
        for k in range(2):
            for x in range(2):
                dsw(base + 8 + 2 * k + x, 1, 145, L_Q + 512 * k + 16 * x)

    def vload(i):
        bload(VRAW + i * 4, 4, VOFF, R_B, soff=f"s{8 + i // 4}", imm=(i % 4) * 256, flags=SF)

    NV2 = opts.get("nv2", 6)
    a.raw(f"s_waitcnt vmcnt({NV1})")
    for T in range(2):
        for s in range(4):
            dsr(KR + T * 16 + s * 4, 4, 116 + s, T * 4096)
    a.raw(f"s_cmp_ge_u32 s3, {opts.get('qw', 4)}")
    a.raw("s_cbranch_scc1 L_a_nt")
    a.raw(f"s_waitcnt vmcnt({NV1 - opts.get('qtrig', 1)})")
    a.label("L_a_nt")
    stamp(1)
    a.raw("s_barrier")
    a.raw("s_cmp_lg_u32 s3, 0")
    a.raw("s_cbranch_scc1 L_a_nq")
    poll_flags(124, 128, "1", 125, pre_loaded=True)
    for (d, vo, so, im) in q1:
        bload(d, 4, vo, R_WS, soff=so, imm=im, flags="sc1")
    a.label("L_a_nq")
    a.raw("s_barrier")
    for i in range(NV1, NV2):
        vload(i)
    if NV2 > NV1:
        a.raw("s_barrier")
        a.raw("s_cmp_lg_u32 s3, 0")
        a.raw("s_cbranch_scc1 L_a_nq1")
        for (d, vo, so, im) in q2:
            bload(d, 4, vo, R_WS, soff=so, imm=im, flags="sc1")
        a.label("L_a_nq1")
        a.raw("s_barrier")
    for i in range(NV2, 8):
        vload(i)
    a.raw("s_cmp_eq_u32 s3, 0")
    a.raw("s_cbranch_scc1 L_a_q")
    a.raw("s_cmp_lg_u32 s3, 1")
    a.raw("s_cbranch_scc1 L_a_nc")
    a.raw("s_cmp_ge_u32 s5, 8")
    a.raw("s_cbranch_scc1 L_a_nc")
    a.raw(f"s_waitcnt vmcnt({8 - NV1})")
    for k in range(4):
        bstore(12, 4, 7, R_WS, soff="s15", imm=k * 1024, flags="sc1")
    perm8(VRAW, VOP, tuple(range(NV1 // 2)))
    a.raw("s_branch L_a_nq2")
    a.label("L_a_nc")
    a.raw(f"s_waitcnt vmcnt({8 - NV1})")
    perm8(VRAW, VOP, tuple(range(NV1 // 2)))
    a.raw("s_branch L_a_nq2")
    a.label("L_a_q")
    nq2 = 4 if NV2 > NV1 else 0
    a.raw(f"s_waitcnt vmcnt({8 - NV1 + nq2})")
    q_check(128, "L_a_q1ok")
    if nq2:
        a.raw(f"s_waitcnt vmcnt({8 - NV2})")
        q_check(192, "L_a_q2ok")
    poll_masked(q1, 126, sleep=1)
    a.label("L_a_q1ok")
    q_fin(128)
    a.raw("s_branch L_a_q3")
    a.label("L_a_q2ok")
    q_fin(192)
    a.label("L_a_q3")
    a.raw("s_waitcnt lgkmcnt(0)")
    a.raw("s_barrier")
    for s in range(4):
        dsr(QR + 4 * s, 4, QOFF, L_Q + 64 * s)
    perm8(VRAW, VOP, tuple(range(NV1 // 2)))
    a.raw("s_branch L_a_qk")
    a.label("L_a_nq2")
    a.raw("s_waitcnt lgkmcnt(0)")
    a.raw("s_barrier")
    for s in range(4):
        dsr(QR + 4 * s, 4, QOFF, L_Q + 64 * s)
    a.label("L_a_qk")
    stamp(2)
    a.raw("s_waitcnt lgkmcnt(0)")
    for s in range(4):
        for T in range(2):
            a.mfma16(SACC + 4 * T, KR + T * 16 + s * 4, QR + 4 * s, None if s == 0 else SACC + 4 * T)
    SV = QR
    PK = QR + 8
    for d in range(4):
        a.op2e("v_cvt_pk_bf16_f32", PK + d, SACC + 2 * d, SACC + 2 * d + 1)
    unpack(SV, PK, 4)
    for i in range(0, 8, 2):
        a.valu(f"v_pk_mul_f32 {vr(SV + i, 2)}, {vr(SV + i, 2)}, s[10:11]", dst=[SV + i, SV + i + 1], src=[SV + i, SV + i + 1])
    for d in range(4):
        a.op2e("v_cvt_pk_bf16_f32", PK + d, SV + 2 * d, SV + 2 * d + 1)
    unpack(SV, PK, 4)
    MX, LS, TT, NM = QR + 12, QR + 13, QR + 14, SACC
    a.op3("v_max3_f32", MX, SV + 0, SV + 1, SV + 2)
    a.op3("v_max3_f32", TT, SV + 3, SV + 4, SV + 5)
    a.op3("v_max3_f32", MX, MX, SV + 6, SV + 7)
    a.op2("v_max_f32", MX, MX, TT)
    a.allreduce("v_max_f32", [MX], ["x16", "x32"], [TT])
    a.op2("v_mul_f32", MX, "s62", MX)
    a.op2("v_sub_f32", NM, "0", MX)
    a.op2("v_sub_f32", NM + 1, "0", MX)
    for i in range(0, 8, 2):
        a.valu(f"v_pk_fma_f32 {vr(SV + i, 2)}, {vr(SV + i, 2)}, s[62:63], {vr(NM, 2)}",
               dst=[SV + i, SV + i + 1], src=[SV + i, SV + i + 1, NM, NM + 1])
    for i in range(8):
        a.op1("v_exp_f32", SV + i, SV + i, kind="trans")
    for d in range(4):
        a.op2e("v_cvt_pk_bf16_f32", PR + d, SV + 2 * d, SV + 2 * d + 1)
    pk("v_pk_add_f32", SV, SV, SV + 2)
    pk("v_pk_add_f32", SV + 4, SV + 4, SV + 6)
    pk("v_pk_add_f32", SV, SV, SV + 4)
    a.op2("v_add_f32", LS, SV, SV + 1)
    for c in range(4):
        for x in range(4):
            a.cndmask(PM + 4 * c + x, "0", PR + x, sr(S_MASK + 2 * c, 2))
    a.raw("s_waitcnt vmcnt(0)")
    stamp(3)
    perm8(VRAW, VOP, tuple(range(NV1 // 2, 4)))
    for c in range(4):
        for ch in range(2):
            a.mfma16(OACC + 4 * ch, VOP + 4 * (ch * 4 + c), PM + 4 * c, None if c == 0 else OACC + 4 * ch)
    a.allreduce("v_add_f32", [LS], ["x16", "x32"], [TT])
    a.raw("s_mov_b64 exec, 15")
    dsw(MX, 2, 146, L_ST)
    a.raw("s_mov_b64 exec, -1")
    for ch in range(2):
        dsw(OACC + 4 * ch, 4, 147, L_K + 1024 * ch)
    a.raw("s_waitcnt lgkmcnt(0)")
    a.raw("s_barrier")
    a.raw("s_cmp_ge_u32 s3, 2")
    a.raw("s_cbranch_scc1 L_a_fin")
    OW, STV = 16, 48
    for k in range(4):
        dsr(STV + 4 * k, 4, 149, L_ST + 16 * k)
    for w in range(8):
        dsr(OW + 4 * w, 4, 148, L_K + 8192 * w)
    a.raw("s_waitcnt lgkmcnt(8)")
    Mx, Lx, E0 = 64, 65, 66
    a.op3("v_max3_f32", Mx, STV + 0, STV + 2, STV + 4)
    a.op3("v_max3_f32", Lx, STV + 6, STV + 8, STV + 10)
    a.op3("v_max3_f32", Mx, Mx, STV + 12, STV + 14)
    a.op2("v_max_f32", Mx, Mx, Lx)
    for w in range(8):
        a.op2("v_sub_f32", E0 + 2 * w, STV + 2 * w, Mx)
    for w in range(8):
        a.op1("v_exp_f32", E0 + 2 * w, E0 + 2 * w, kind="trans")
    a.op2("v_mul_f32", Lx, E0, STV + 1)
    a.op2("v_mul_f32", 84, E0 + 2, STV + 3)
    for w in range(2, 8, 2):
        a.op2("v_fmac_f32", Lx, E0 + 2 * w, STV + 2 * w + 1)
        a.op2("v_fmac_f32", 84, E0 + 2 * w + 2, STV + 2 * w + 3)
    a.op2("v_add_f32", Lx, Lx, 84)
    a.op1("v_rcp_f32", 82, Lx, kind="trans")
    a.op1("v_log_f32", 83, Lx, kind="trans")
    a.raw("s_waitcnt lgkmcnt(0)")

    for h in range(2):
        pkb("v_pk_mul_f32", 84 + 2 * h, E0, OW + 2 * h)
        pkb("v_pk_mul_f32", 88 + 2 * h, E0 + 2, OW + 4 + 2 * h)
    for w in range(2, 8, 2):
        for h in range(2):
            pkb("v_pk_fma_f32", 84 + 2 * h, E0 + 2 * w, OW + 4 * w + 2 * h, 84 + 2 * h)
            pkb("v_pk_fma_f32", 88 + 2 * h, E0 + 2 * w + 2, OW + 4 * w + 4 + 2 * h, 88 + 2 * h)
    a.op2("v_add_f32", 83, 83, Mx)
    for h in range(2):
        pk("v_pk_add_f32", 84 + 2 * h, 84 + 2 * h, 88 + 2 * h)
    for h in range(2):
        pkb("v_pk_mul_f32", 84 + 2 * h, 82, 84 + 2 * h)
    for r in range(4):
        a.op3("v_perm_b32", 84 + r, 84 + r, 83, f"s{16 + r}")
    for r in range(4):
        a.op2("v_min_u32", 84 + r, "-2", 84 + r)
    if opts.get("dual", 0):
        a.raw(f"s_add_u32 s6, s13, {OX - OB}")
        bstore(84, 4, 7, R_WS, soff="s6")
    bstore(84, 4, 7, R_WS, soff="s13", flags="sc1")
    stamp(4)
    a.raw("s_branch L_exit")
    a.label("L_a_fin")
    a.raw("s_cmp_lg_u32 s3, 2")
    a.raw("s_cbranch_scc1 L_exit")
    a.raw("s_cmp_ge_u32 s5, 8")
    a.raw("s_cbranch_scc1 L_exit")
    a.raw("s_lshr_b32 s6, s14, 4")
    a.raw("s_lshl_b32 s6, s6, 7")
    a.raw("s_and_b32 s7, s14, 3")
    a.raw("s_lshl_b32 s7, s7, 5")
    a.raw("s_add_u32 s6, s6, s7")
    a.raw("s_bfe_u32 s7, s14, 0x20002")
    a.raw("s_lshl_b32 s7, s7, 1")
    a.raw("s_add_u32 s6, s6, s7")
    a.op2("v_and_b32", 2, "3", 0)
    a.op2("v_lshlrev_b32", 2, "3", 2)
    a.op2("v_bfe_u32" if False else "v_lshrrev_b32", 3, "3", 0)
    a.op2("v_and_b32", 3, "1", 3)
    a.op3("v_add3_u32", 2, 2, 3, "s6")
    a.op2("v_and_b32", 3, "4", 0)
    a.op2("v_lshlrev_b32", 4, "1", 2)
    a.op3("v_lshl_add_u32", 4, 3, "8", 4)
    a.mem(f"buffer_load_ushort v10, v4, {sr(R_A, 4)}, 0 offen", src=[4], dst=[10])
    a.op2("v_lshrrev_b32", 5, "6", 2)
    a.op2("v_lshlrev_b32", 5, "9", 5)
    a.op3("v_lshl_add_u32", 5, 3, "6", 5)
    a.op2("v_and_b32", 6, "6", 2)
    a.op3("v_lshl_add_u32", 5, 6, "5", 5)
    a.op2("v_and_b32", 6, "56", 2)
    a.op2("v_add_u32", 5, 5, 6)
    a.op2("v_and_b32", 6, "1", 2)
    a.op3("v_lshl_add_u32", 5, 6, "2", 5)
    a.op2("v_lshrrev_b32", 6, "4", 0)
    a.op3("v_lshl_add_u32", 5, 6, "12", 5)
    a.op2("v_lshrrev_b32", 6, "2", 0)
    a.op2("v_and_b32", 6, "3", 6)
    for r in (1, 2, 3):
        a.cmp("v_cmp_eq_u32", sr(S_MASK + 2 * (r - 1), 2), str(r), 6)
    a.op2("v_lshlrev_b32", 6, "2", 0)
    F0 = 16
    for r in range(4):
        a.op1("v_mov_b32", F0 + 12 + r, "0")
    poll_flags(6, 0, "0xff", 8)
    a.raw(f"s_mov_b32 s8, {AB}")
    a.raw(f"s_mov_b32 s9, {AB + 16384}")
    if opts.get("db", 0) & 2:
        a.raw("s_lshl_b32 s6, s4, 12")
        a.raw("s_lshl_b32 s7, s5, 9")
        a.raw("s_add_u32 s6, s6, s7")
        a.raw("s_add_u32 s62, s8, s6")
        doorbell("s62", 8, lanes="1", sleep=8)
    poll_masked([(12, 5, "s8", 0), (13, 5, "s9", 0)], 8, sleep=4, width=1)
    stamp(4)
    a.op2("v_add_f32", 12, 12, 13)
    a.allreduce("v_add_f32", [12], ["x16", "x32"], [13])
    round_bf16(12, 12)
    a.op2("v_lshlrev_b32", 10, "16", 10)
    a.op2("v_add_f32", 12, 12, 10)
    round_bf16(12, 12)
    if opts.get("db", 0) & 4:
        doorbell("s15", 8, lanes="1")
    poll_masked([(F0 + 4 * k, 7, "s15", k * 1024) for k in range(4)], 8, sleep=opts.get("sleep_f", 2), last_hi="0")
    stamp(5)
    for h in range(2):
        pk("v_pk_add_f32", F0 + 2 * h, F0 + 2 * h, F0 + 4 + 2 * h)
        pk("v_pk_add_f32", F0 + 8 + 2 * h, F0 + 8 + 2 * h, F0 + 12 + 2 * h)
    for h in range(2):
        pk("v_pk_add_f32", F0 + 2 * h, F0 + 2 * h, F0 + 8 + 2 * h)
    a.allreduce("v_add_f32", [F0 + r for r in range(4)], ["row_ror:4", "row_ror:8"], [])
    for r in (1, 2, 3):
        a.cndmask(F0, F0, F0 + r, sr(S_MASK + 2 * (r - 1), 2))
    a.allreduce("v_add_f32", [F0], ["x16", "x32"], [F0 + 4])
    round_bf16(F0, F0)
    a.op2("v_add_f32", F0, F0, 12)
    a.op2e("v_cvt_pk_bf16_f32", F0, F0, F0)
    if opts.get("padto"):
        a.label("L_pad")
        a.raw("s_memrealtime s[6:7]")
        a.raw("s_waitcnt lgkmcnt(0)")
        a.raw("s_sub_u32 s6, s6, s100")
        a.raw(f"s_cmp_lt_u32 s6, {opts['padto']}")
        a.raw("s_cbranch_scc1 L_pad")
    a.raw("s_mov_b64 exec, 0xffff")
    bstore(F0, 1, 4, R_D, op="buffer_store_short", flags=opts.get("outf", ""))
    a.raw("s_mov_b64 exec, -1")
    stamp(6)
    a.raw("s_branch L_exit")

    a.label("L_s3")
    WR3, WP3, C, T = 16, 48, 80, 96
    srd(R_D, P_WO, 4096 * 1024)

    def s3_flags():
        a.raw("s_cmp_lg_u32 s3, 0")
        a.raw("s_cbranch_scc1 L_s3_nf")
        poll_flags(123, 0, "1", 5, sleep=8)
        a.label("L_s3_nf")
        a.raw("s_barrier")
    if opts.get("slate", 0):
        s3_flags()
    a.op2("v_and_b32", 2, "8", 0)
    a.op3("v_lshl_add_u32", 2, 2, "3", 3)
    a.op2("v_lshlrev_b32", 2, "10", 2)
    a.op2("v_and_b32", 4, "7", 0)
    a.op3("v_lshl_add_u32", 2, 4, "4", 2)
    a.raw("s_lshl_b32 s6, s4, 2")
    a.raw("s_lshr_b32 s7, s3, 1")
    a.raw("s_add_u32 s6, s6, s7")
    a.raw("s_lshl_b32 s6, s6, 7")
    a.raw("s_and_b32 s7, s3, 1")
    a.raw("s_lshl_b32 s7, s7, 2")
    a.raw("s_add_u32 s6, s6, s7")
    a.raw("s_lshl_b32 s6, s6, 10")
    a.raw("s_lshl_b32 s7, s5, 7")
    a.raw("s_add_u32 s6, s6, s7")
    for i in range(8):
        bload(WR3 + 4 * i, 4, 2, R_D, soff="s6", flags=SF)
        if i < 7:
            a.raw("s_add_u32 s6, s6, 8192")
    a.op2("v_lshlrev_b32", 5, "11", 3)
    a.op2("v_and_b32", 6, "15", 0)
    a.op3("v_lshl_add_u32", 8, 6, "4", 5)
    a.raw("s_lshl_b32 s6, s3, 8")
    a.op3("v_lshl_add_u32", 9, 6, "3", "s6")
    a.op2("v_and_b32", 5, "32", 0)
    a.op3("v_lshl_add_u32", 9, 5, "2", 9)
    a.op2("v_and_b32", 5, "1", 3)
    a.op3("v_lshl_add_u32", 9, 5, "2", 9)
    a.op2("v_and_b32", 5, "1", 0)
    a.op3("v_lshl_add_u32", 5, 3, "1", 5)
    a.op3("v_lshl_add_u32", 10, 5, "4", "s6")
    a.op2("v_and_b32", 5, "2", 0)
    a.op3("v_lshl_add_u32", 10, 5, "6", 10)
    a.op3("v_lshl_add_u32", 5, 3, "3", 4)
    a.raw("s_lshl_b32 s7, s3, 9")
    a.op3("v_lshl_add_u32", 11, 5, "4", "s7")
    a.op2("v_and_b32", 5, "31", 0)
    a.op2("v_lshlrev_b32", 5, "4", 5)
    a.op2("v_and_b32", 6, "32", 0)
    a.op3("v_lshl_add_u32", 12, 6, "6", 5)
    a.op2("v_lshlrev_b32", 13, "3", 0)
    a.raw("s_lshl_b32 s7, s4, 15")
    a.raw("s_add_u32 s6, s6, s7")
    for k in range(4):
        a.raw(f"s_add_u32 s{8 + k}, s6, {(OX if opts.get('dual', 0) else OB) + k * 8192}")
    a.raw("s_lshl_b32 s6, s4, 3")
    a.raw("s_add_u32 s6, s6, s5")
    a.raw("s_lshl_b32 s12, s6, 9")
    a.raw(f"s_add_u32 s12, s12, {AB}")
    a.op2("v_lshrrev_b32", 5, "2", 0)
    a.op2("v_and_b32", 5, "3", 5)
    a.op1("v_mov_b32", 6, str(L_G + 128))
    for c in range(4):
        a.cmp("v_cmp_eq_u32", "vcc", str(c), 5)
        a.cndmask(116 + c, 6, 10, "vcc")
    for r in range(4):
        a.op1("v_mov_b32", 112 + r, "0")
    dsw(112, 4, 6, 0)
    a.op2("v_and_b32", 5, "8", 0)
    a.cmp("v_cmp_ne_u32", "s[14:15]", "0", 5)
    a.raw("s_mov_b32 s13, 0x0c0c0400")
    a.raw("s_waitcnt vmcnt(0)")
    stamp(1)
    perm8(WR3, WP3)
    if not opts.get("slate", 0):
        s3_flags()
    stamp(3)
    if opts.get("db", 0) & 1:
        a.raw("s_lshl_b32 s6, s5, 12")
        a.raw("s_add_u32 s62, s8, s6")
        doorbell("s62", 5, lanes="1")
    poll_masked([(C + 4 * k, 8, f"s{8 + k}", 0) for k in range(4)], 5, sleep=opts.get("sleep_o", 2),
                alt=((OB - OX) & 0xffffffff) if opts.get("dual", 0) else None)
    stamp(4)
    LK = T
    for k in range(4):
        a.op3("v_perm_b32", LK + 2 * k, C + 4 * k + 1, C + 4 * k, "s13")
        a.op3("v_perm_b32", LK + 2 * k + 1, C + 4 * k + 3, C + 4 * k + 2, "s13")
    for k in range(4):
        a.op3("v_perm_b32", LK + 2 * k, LK + 2 * k + 1, LK + 2 * k, f"s{S_SELLO}")
    MM = T + 18
    for b in range(2):
        a.op2("v_max_f32", MM + b, LK + 4 * b, LK + 4 * b + 2)
    a.allreduce("v_max_f32", [MM, MM + 1], ["x16", "x32"], [T + 1, T + 3])
    for k in range(4):
        a.op2("v_sub_f32", LK + 2 * k, LK + 2 * k, MM + (k >> 1))
    for k in range(4):
        a.op1("v_exp_f32", LK + 2 * k, LK + 2 * k, kind="trans")
    AC = T + 8
    SS = T + 16
    for b in range(2):
        for h in range(2):
            pkb("v_pk_mul_f32", AC + 4 * b + 2 * h, LK + 4 * b, C + 8 * b + 2 * h)
        a.op2("v_add_f32", SS + b, LK + 4 * b, LK + 4 * b + 2)
    for b in range(2):
        for h in range(2):
            pkb("v_pk_fma_f32", AC + 4 * b + 2 * h, LK + 4 * b + 2, C + 8 * b + 4 + 2 * h, AC + 4 * b + 2 * h)
    a.swap32(SS, SS + 1)
    for r in range(4):
        a.swap32(AC + r, AC + 4 + r)
    a.op2("v_add_f32", SS, SS, SS + 1)
    pk("v_pk_add_f32", AC, AC, AC + 4)
    pk("v_pk_add_f32", AC + 2, AC + 2, AC + 6)
    a.op1("v_mov_b32", SS + 1, SS)
    a.swap16(AC, AC + 2)
    a.swap16(AC + 1, AC + 3)
    a.swap16(SS, SS + 1)
    a.op2("v_add_f32", SS, SS, SS + 1)
    pk("v_pk_add_f32", AC, AC, AC + 2)
    a.op1("v_rcp_f32", SS, SS, kind="trans")
    pkb("v_pk_mul_f32", AC, SS, AC)
    a.op2e("v_cvt_pk_bf16_f32", AC, AC, AC + 1)
    dsw(AC, 1, 9, L_ON)
    a.raw("s_waitcnt lgkmcnt(0)")
    AM, D0 = 16, 32
    for c in range(4):
        dsr(AM + 4 * c, 4, 116 + c, 0)
    for c in range(4):
        a.raw(f"s_waitcnt lgkmcnt({3 - c})")
        for t in range(2):
            a.mfma16(D0 + 4 * t, AM + 4 * c, WP3 + 4 * (2 * c + t), None if c == 0 else D0 + 4 * t)
    for b in range(2):
        for t in range(2):
            a.cndmask(T + 2 * b + t, D0 + 4 * t + 2 * b, D0 + 4 * t + 2 * b + 1, "s[14:15]")
    a.allreduce("v_add_f32", [T, T + 1, T + 2, T + 3], ["row_ror:8"], [])
    a.raw("s_mov_b32 exec_lo, 0x00ff00ff")
    a.raw("s_mov_b32 exec_hi, 0x00ff00ff")
    dsw(T, 4, 11, L_P3)
    a.raw("s_mov_b64 exec, -1")
    a.raw("s_waitcnt lgkmcnt(0)")
    a.raw("s_barrier")
    a.raw("s_cmp_lg_u32 s3, 2")
    a.raw("s_cbranch_scc1 L_exit")
    for w in range(4):
        dsr(T + 4 * w, 4, 12, L_P3 + 512 * w)
    a.raw("s_waitcnt lgkmcnt(0)")
    for h in range(2):
        pk("v_pk_add_f32", T + 2 * h, T + 2 * h, T + 4 + 2 * h)
        pk("v_pk_add_f32", T + 8 + 2 * h, T + 8 + 2 * h, T + 12 + 2 * h)
    for h in range(2):
        pk("v_pk_add_f32", T + 2 * h, T + 2 * h, T + 8 + 2 * h)
    a.swap32(T, T + 2)
    a.swap32(T + 1, T + 3)
    pk("v_pk_add_f32", T, T, T + 2)
    for r in range(2):
        a.op2("v_min_u32", T + r, "-2", T + r)
    bstore(T, 2, 13, R_WS, soff="s12", flags="sc1")
    stamp(2)
    a.raw("s_branch L_exit")

    a.label("L_ffn")
    a.op2("v_lshrrev_b32", 2, "3", 0)
    a.op2("v_and_b32", 4, "3", 0)
    a.op3("v_lshl_add_u32", 2, 2, "2", 4)
    a.op2("v_lshlrev_b32", 2, "4", 2)
    a.op2("v_and_b32", 5, "4", 0)
    a.op3("v_lshl_add_u32", 120, 5, "8", 2)
    a.op3("v_lshl_add_u32", 2, 3, "2", 4)
    a.raw("s_lshl_b32 s6, s3, 7")
    a.op3("v_lshl_add_u32", 121, 2, "3", "s6")
    a.op3("v_lshl_add_u32", 121, 5, "8", 121)
    a.raw("s_lshl_b32 s6, s3, 8")
    a.op3("v_lshl_add_u32", 122, 2, "4", "s6")
    n32_masks(2)
    n32_out_addr(119, 2)
    W1R, W1P, W2R, W2P, C, T = 20, 36, 128, 160, 96, 64
    a.raw("s_mul_i32 s6, s4, 7")
    a.raw("s_add_u32 s6, s6, s5")
    a.raw(f"s_sub_u32 s{S_PHI}, s6, 8")
    srd(R_D, P_W1, 512 * 3584)
    srd(R_B, P_W2, 1792 * 1024)

    def ffn_flags():
        a.op2("v_lshlrev_b32", 6, "2", 0)
        a.raw("s_cmp_lg_u32 s3, 0")
        a.raw("s_cbranch_scc1 L_f_nf")
        poll_flags(6, 0, "0xff", 5, sleep=16)
        a.label("L_f_nf")
        a.raw("s_barrier")
    if opts.get("flate", 0) == 1:
        ffn_flags()
    if opts.get("flate", 0) == 3:
        a.raw("s_cmp_lg_u32 s3, 0")
        a.raw("s_cbranch_scc1 L_f_nf3")
        poll_flags(123, 0, "1", 5, sleep=8)
        a.raw("s_lshl_b32 s62, s14, 11")
        a.raw(f"s_add_u32 s62, s62, {OB}")
        doorbell("s62", 5, lanes="1", sleep=8)
        a.label("L_f_nf3")
        a.raw("s_barrier")
    if opts.get("flate", 0) == 2:
        a.raw("s_cmp_lg_u32 s3, 0")
        a.raw("s_cbranch_scc1 L_f_nf0")
        poll_flags(123, 0, "1", 5, sleep=8)
        a.label("L_f_nf0")
        a.raw("s_barrier")
    a.op2("v_and_b32", 2, "12", 0)
    a.op2("v_lshlrev_b32", 2, "2", 2)
    a.op3("v_lshl_add_u32", 2, 3, "1", 2)
    a.op2("v_mul_u32_u24", 2, "3584", 2)
    a.op2("v_and_b32", 4, "3", 0)
    a.op3("v_lshl_add_u32", 2, 4, "4", 2)
    a.raw(f"s_mul_i32 s6, s3, {64 * 3584}")
    a.raw(f"s_lshl_b32 s7, s{S_PHI}, 6")
    a.raw("s_add_u32 s6, s6, s7")
    for i in range(4):
        a.raw(f"s_add_u32 s7, s6, {((i >> 1) * 8 + (i & 1)) * 3584}")
        bload(W1R + 4 * i, 4, 2, R_D, soff="s7", flags=SF)
    a.raw("s_cmp_ge_u32 s3, 4")
    a.raw("s_cbranch_scc1 L_f_n2")
    a.op2("v_lshlrev_b32", 2, "13", 3)
    a.op2("v_and_b32", 4, "15", 0)
    a.op3("v_lshl_add_u32", 2, 4, "4", 2)
    a.raw(f"s_lshl_b32 s6, s{S_PHI}, 15")
    a.raw("s_lshl_b32 s7, s3, 8")
    a.raw("s_add_u32 s6, s6, s7")
    a.raw("s_add_u32 s7, s6, 4096")
    for i in range(8):
        bload(W2R + 4 * i, 4, 2, R_B, soff="s6" if i < 4 else "s7", imm=(i & 3) * 1024, flags=SF)
    a.label("L_f_n2")
    a.op2("v_and_b32", 4, "31", 0)
    a.op2("v_and_b32", 5, "32", 0)
    a.op2("v_lshlrev_b32", 5, "7", 5)
    a.op3("v_lshl_add_u32", 8, 4, "4", 5)
    a.op2("v_and_b32", 5, "15", 0)
    a.raw("s_lshl_b32 s6, s3, 7")
    a.op3("v_lshl_add_u32", 9, 5, "3", "s6")
    a.op2("v_and_b32", 5, "16", 0)
    a.op3("v_lshl_add_u32", 9, 5, "6", 9)
    a.op2("v_and_b32", 6, "3", 0)
    a.op3("v_lshl_add_u32", 6, 6, "5", "s6")
    a.op3("v_lshl_add_u32", 6, 5, "6", 6)
    a.op2("v_and_b32", 5, "12", 0)
    a.op2("v_add_u32", 6, 6, 5)
    a.op2("v_and_b32", 5, "32", 0)
    a.op2("v_lshrrev_b32", 5, "1", 5)
    a.op2("v_add_u32", 6, 6, 5)
    a.op2("v_lshrrev_b32", 5, "2", 5)
    a.op2("v_add_u32", 9, 9, 5)
    bload(10, 1, 6, R_A)
    a.raw("s_lshl_b32 s6, s3, 9")
    for k in range(4):
        a.raw(f"s_add_u32 s{8 + k}, s6, {AB + k * 8192}")
    a.op2("v_and_b32", 5, "1", 0)
    a.op2("v_lshlrev_b32", 5, "6", 5)
    a.op3("v_lshl_add_u32", 5, 3, "4", 5)
    a.op2("v_lshrrev_b32", 6, "1", 0)
    a.op2("v_and_b32", 6, "7", 6)
    a.op1("v_mov_b32", 4, "0x80")
    for c in range(8):
        a.cmp("v_cmp_eq_u32", "vcc", str(c), 6)
        a.cndmask(192 + c, 4, 5, "vcc")
    for r in range(4):
        a.op1("v_mov_b32", 12 + r, "0")
    dsw(12, 4, 4, L_G)
    a.op2("v_and_b32", 5, "15", 0)
    a.op2("v_lshrrev_b32", 5, "2", 5)
    a.op3("v_lshl_add_u32", 5, 3, "2", 5)
    a.op2("v_lshlrev_b32", 5, "12", 5)
    a.op2("v_and_b32", 6, "3", 0)
    a.op3("v_lshl_add_u32", 200, 6, "4", 5)
    a.raw("s_lshl_b32 s12, s3, 16")
    a.raw(f"s_lshl_b32 s6, s{S_PHI}, 6")
    a.raw("s_add_u32 s12, s12, s6")
    a.raw(f"s_add_u32 s12, s12, {FB}")
    a.op2("v_lshlrev_b32", 6, "2", 0)
    a.raw("s_waitcnt vmcnt(0)")
    stamp(1)
    perm4(W1R, W1P)
    perm8(W2R, W2P)
    unpack(12, 10, 1)
    if opts.get("flate", 0) != 1:
        ffn_flags()
    stamp(3)
    if opts.get("db", 0) & 2:
        a.raw("s_lshl_b32 s6, s4, 12")
        a.raw("s_add_u32 s62, s8, s6")
        doorbell("s62", 5, lanes="1")
    poll_masked([(C + 4 * k, 8, f"s{8 + k}", 0) for k in range(4)], 4, sleep=opts.get("sleep_a", 2))
    stamp(5)
    pk("v_pk_add_f32", C, C, C + 4)
    pk("v_pk_add_f32", C + 2, C + 2, C + 6)
    pk("v_pk_add_f32", C + 8, C + 8, C + 12)
    pk("v_pk_add_f32", C + 10, C + 10, C + 14)
    pk("v_pk_add_f32", C, C, C + 8)
    pk("v_pk_add_f32", C + 2, C + 2, C + 10)
    a.swap32(C, C + 2)
    a.swap32(C + 1, C + 3)
    pk("v_pk_add_f32", C, C, C + 2)
    a.op2e("v_cvt_pk_bf16_f32", C + 4, C, C + 1)
    unpack(C, C + 4, 1)
    pk("v_pk_add_f32", C, C, 12)
    a.op2e("v_cvt_pk_bf16_f32", C + 4, C, C + 1)
    dsw(C + 4, 1, 9, L_H)
    a.raw("s_waitcnt lgkmcnt(0)")
    a.raw("s_barrier")
    for s in range(2):
        dsr(XS + 4 * s, 4, 120, L_H + 512 * s)
    dsr(XA, 2, 121, L_H)
    a.raw("s_waitcnt lgkmcnt(0)")
    ln_norm4(XS, XA, 64, 80)
    n32_core(XA, W1P, 64, 80, 122)
    a.raw("s_waitcnt lgkmcnt(0)")
    a.raw("s_barrier")
    a.raw("s_cmp_ge_u32 s3, 4")
    a.raw("s_cbranch_scc1 L_exit")
    n32_final(7, 80)
    round_bf16(80, 80)
    a.op2("v_mul_f32", 81, "0xbfb8aa3b", 80)
    a.op1("v_exp_f32", 81, 81, kind="trans")
    a.op2("v_add_f32", 81, "1.0", 81)
    a.op1("v_rcp_f32", 81, 81, kind="trans")
    a.op2("v_mul_f32", 80, 80, 81)
    a.op2e("v_cvt_pk_bf16_f32", 80, 80, 80)
    dsw(80, 1, 119, L_G, op="ds_write_b16")
    a.raw("s_waitcnt lgkmcnt(0)")
    stamp(4)
    for c in range(8):
        dsr(84 + 4 * c, 4, 192 + c, L_G)
    for c in range(8):
        a.raw(f"s_waitcnt lgkmcnt({7 - c})")
        a.mfma16(64, 84 + 4 * c, W2P + 4 * c, None if c == 0 else 64)
    for r in range(4):
        a.op2("v_min_u32", 64 + r, "-2", 64 + r)
    bstore(64, 4, 200, R_WS, soff="s12", flags="sc1")
    stamp(6)
    a.label("L_exit")
    if opts.get("probe"):
        a.raw("s_cmp_lg_u32 s97, 1")
        a.raw("s_cbranch_scc1 L_end")
        a.raw("s_waitcnt lgkmcnt(0)")
        a.label("L_prb")
        a.raw("s_sleep 8")
        a.raw("s_memrealtime s[6:7]")
        a.raw("s_waitcnt lgkmcnt(0)")
        a.raw("s_sub_u32 s6, s6, s98")
        a.raw("s_cmp_lt_u32 s6, 2000")
        a.raw("s_cbranch_scc1 L_prb")
    dump_stamps()
    a.label("L_end")
    a.raw("s_endpgm")

    if opts.get("order", 0) == 1:
        L, m = a.lines, marks
        pro, t0, a0, rest = L[:m["tail0"]], L[m["tail0"]:m["att0"]], L[m["att0"]:m["tail1"]], L[m["tail1"]:]
        pro[-1] = "    s_cbranch_scc1 L_tail0"
        a.lines = pro + a0 + ["L_tail0:"] + t0 + rest

    hdr = open(f"cdna_kernels/{NAME}.s.ref").read().split("; Override launch")[0]
    out = hdr
    out += "; Override launch geometry by editing the next line (default: block=256,\n"
    out += "; grid=ceil(out_elems/256), lds=0). Harness parses it; keep it on one line.\n"
    out += f"; @launch grid=(256,1,1) block=(512,1,1) lds={LDS_BYTES}\n"
    out += '.amdgcn_target "amdgcn-amd-amdhsa--gfx950"\n.text\n'
    out += f".globl {NAME}_kernel\n.p2align 8\n.type {NAME}_kernel,@function\n{NAME}_kernel:\n"
    out += a.text()
    out += '.section .rodata,"a"\n.p2align 6\n'
    out += f".amdhsa_kernel {NAME}_kernel\n"
    out += "  .amdhsa_next_free_vgpr 208\n  .amdhsa_next_free_sgpr 102\n  .amdhsa_accum_offset 208\n"
    out += "  .amdhsa_group_segment_fixed_size 0\n  .amdhsa_kernarg_size 88\n  .amdhsa_user_sgpr_count 2\n"
    out += "  .amdhsa_user_sgpr_kernarg_segment_ptr 1\n  .amdhsa_system_sgpr_workgroup_id_x 1\n"
    out += "  .amdhsa_float_denorm_mode_32 3\n"
    out += ".end_amdhsa_kernel\n"
    return out


if __name__ == "__main__":
    debug = "--debug" in sys.argv
    path = [x for x in sys.argv[1:] if not x.startswith("--")]
    path = path[0] if path else f"cdna_kernels/{NAME}.s"
    opts = {}
    for x in sys.argv[1:]:
        if x.startswith("--opt="):
            k, v = x[6:].split(":")
            opts[k] = int(v) if v.lstrip("-").isdigit() else v
    open(path, "w").write(gen(debug, opts))
    print("wrote", path)
```

```python
import sys
from asmlib import Asm, vr, sr

NAME = "sequential_preLN__sliding_block_cached__dense_activation_silu__decode"

QB = 0
OB = 64 * 1024
AB = 384 * 1024
FB = 416 * 1024
OX = 704 * 1024
WS_BYTES = 1 << 20
TS_BASE = WS_BYTES
WS_SIZE_DBG = WS_BYTES + 256 * 8 * 128

L_Q = 0
L_ST = 1024
L_K = 2048
L_ON = 0
L_H = 2048
L_G = 4096
L_P3 = 4352
LDS_BYTES = 2048 + 65536

LOG2E = "0x3fb8aa3b"
SCALE = "0x3db504f3"
INV512 = "0x3b000000"
EPS = "0x3727c5ac"
POLL_MAX = 1 << 15

S_WG, S_WAVE, S_G, S_IDX = 2, 3, 4, 5
P_X, P_K, P_V, P_WQ, P_WO, P_W1, P_W2, P_OUT, P_DBG, P_WS = 16, 18, 20, 22, 24, 28, 30, 32, 34, 36
S_CNT = 38
S_PHI = 39
R_WS, R_A, R_B, R_C, R_D = 40, 44, 48, 52, 56
S_SELLO, S_SELHI = 60, 61
S_PM = 64
S_MASK = 80
S_TS = 88


def gen(debug=False, opts=None):
    opts = opts or {}
    SF = opts.get("stream_flags", "nt")
    a = Asm()
    marks = {}

    def mark(name):
        marks[name] = len(a.lines)

    site = [0]

    def stamp(k):
        import inspect
        site[0] += 1
        if opts.get("listsites"):
            print("site", site[0], "line", inspect.currentframe().f_back.f_lineno, "stamp", k)
        if opts.get("probe") == site[0]:
            a.raw("s_memrealtime s[98:99]")
            a.raw("s_mov_b32 s97, 1")
        if debug:
            a.raw(f"s_memrealtime {sr(S_TS + 2 * k, 2)}")

    def dump_stamps():
        if not debug:
            return
        a.raw("s_waitcnt vmcnt(0) lgkmcnt(0)")
        a.raw("s_mov_b64 exec, 1")
        a.raw(f"s_lshl_b32 s6, s{S_WG}, 3")
        a.raw(f"s_add_u32 s6, s6, s{S_WAVE}")
        a.raw("s_lshl_b32 s6, s6, 7")
        a.raw(f"s_add_u32 s6, s6, {TS_BASE}")
        a.op1("v_mov_b32", 1, "s6")
        for k in range(7):
            a.op1("v_mov_b32", 2, f"s{S_TS + 2 * k}")
            a.op1("v_mov_b32", 3, f"s{S_TS + 2 * k + 1}")
            a.mem(f"buffer_store_dwordx2 v[2:3], v1, {sr(R_WS, 4)}, 0 offen offset:{8 * k}", src=[1, 2, 3])
            a.nop(2)

    def srd(dst, ptr, size):
        a.raw(f"s_mov_b32 s{dst}, s{ptr}")
        a.raw(f"s_and_b32 s{dst + 1}, s{ptr + 1}, 0xffff")
        a.raw(f"s_mov_b32 s{dst + 2}, {size}")
        a.raw(f"s_mov_b32 s{dst + 3}, 0x20000")

    def srd_ws():
        srd(R_WS, P_WS, WS_SIZE_DBG if debug else WS_BYTES)

    def bload(d, n, off, srdb, soff="0", imm=0, flags=""):
        op = {1: "buffer_load_dword", 2: "buffer_load_dwordx2", 4: "buffer_load_dwordx4"}[n]
        t = f"{op} {vr(d, n)}, v{off}, {sr(srdb, 4)}, {soff} offen"
        if imm:
            t += f" offset:{imm}"
        if flags:
            t += " " + flags
        a.mem(t, src=[off], dst=list(range(d, d + n)))

    def bstore(s, n, off, srdb, soff="0", imm=0, flags="", op=None):
        op = op or {1: "buffer_store_dword", 2: "buffer_store_dwordx2", 4: "buffer_store_dwordx4"}[n]
        t = f"{op} {vr(s, n)}, v{off}, {sr(srdb, 4)}, {soff} offen"
        if imm:
            t += f" offset:{imm}"
        if flags:
            t += " " + flags
        regs = list(range(s, s + n))
        a.mem(t, src=[off] + regs, wide_store=regs if n == 4 else ())

    def dsr(d, n, addr, off):
        op = {1: "ds_read_b32", 2: "ds_read_b64", 4: "ds_read_b128"}[n]
        a.mem(f"{op} {vr(d, n)}, v{addr} offset:{off}", src=[addr], dst=list(range(d, d + n)))

    def dsw(s, n, addr, off, op=None):
        op = op or {1: "ds_write_b32", 2: "ds_write_b64", 4: "ds_write_b128"}[n]
        a.mem(f"{op} v{addr}, {vr(s, n)} offset:{off}", src=[addr] + list(range(s, s + n)))

    def poll_flags(voff, imm, lanes, tmp, pre_loaded=False, sleep=4):
        lp, dn, ck = a.newlabel("fp"), a.newlabel("fd"), a.newlabel("fc")
        a.raw(f"s_mov_b32 s{S_CNT}, {POLL_MAX}")
        a.raw(f"s_mov_b64 exec, {lanes}")
        if pre_loaded:
            a.raw(f"s_branch {ck}")
        a.label(lp)
        bload(tmp, 1, voff, R_C, imm=imm, flags="sc1")
        a.raw("s_waitcnt vmcnt(0)")
        a.label(ck)
        a.valu(f"v_cmp_ne_u32_e32 vcc, 1, v{tmp}", src=[tmp], sdst=["vcc"])
        a.raw(f"s_cbranch_vccz {dn}")
        a.raw(f"s_sleep {sleep}")
        a.raw(f"s_sub_u32 s{S_CNT}, s{S_CNT}, 1")
        a.raw(f"s_cmp_eq_u32 s{S_CNT}, 0")
        a.raw(f"s_cbranch_scc0 {lp}")
        a.label(dn)
        a.raw("s_mov_b64 exec, -1")

    def poll_masked(loads, tmp, sleep=2, width=4, last_hi=None, alt=None):
        n = len(loads)
        lp, dn = a.newlabel("pl"), a.newlabel("pd")
        a.raw(f"s_mov_b32 s{S_CNT}, {POLL_MAX}")
        for k, (d, vo, so, im) in enumerate(loads):
            if last_hi is not None and k == n - 1:
                a.raw(f"s_mov_b32 exec_hi, {last_hi}")
            bload(d, width, vo, R_WS, soff=so, imm=im, flags="sc1")
        if last_hi is not None:
            a.raw("s_mov_b64 exec, -1")
        a.label(lp)
        a.raw("s_waitcnt vmcnt(0)")
        for k, (d, vo, so, im) in enumerate(loads):
            t = tmp + (k & 1)
            if width == 4:
                a.op3("v_max3_u32", t, d, d + 1, d + 2)
                a.op2("v_max_u32", t, t, d + 3)
            else:
                t = d
            a.cmp("v_cmp_eq_u32", sr(S_PM + 2 * k, 2), "-1", t)
        a.nop(1)
        if n == 1:
            a.raw(f"s_cmp_eq_u64 {sr(S_PM, 2)}, 0")
        else:
            a.raw(f"s_or_b64 s[6:7], {sr(S_PM, 2)}, {sr(S_PM + 2, 2)}")
            for k in range(2, n):
                a.raw(f"s_or_b64 s[6:7], s[6:7], {sr(S_PM + 2 * k, 2)}")
            a.raw("s_cmp_eq_u64 s[6:7], 0")
        a.raw(f"s_cbranch_scc1 {dn}")
        if sleep:
            a.raw(f"s_sleep {sleep}")
        if alt is not None:
            a.raw(f"s_and_b32 s6, s{S_CNT}, {opts.get('altm', 3)}")
            a.raw("s_cmp_eq_u32 s6, 1")
            a.raw(f"s_cselect_b32 s7, {alt}, 0")
            a.raw("s_cmp_eq_u32 s6, 0")
            a.raw(f"s_cselect_b32 s7, {-alt & 0xffffffff:#x}, s7")
            a.raw(f"s_cmp_eq_u32 s{S_CNT}, {POLL_MAX}")
            a.raw("s_cselect_b32 s7, 0, s7")
            for so_ in dict.fromkeys(l[2] for l in loads):
                a.raw(f"s_add_u32 {so_}, {so_}, s7")
        for k, (d, vo, so, im) in enumerate(loads):
            sk = a.newlabel("sk")
            a.raw(f"s_mov_b64 exec, {sr(S_PM + 2 * k, 2)}")
            a.raw(f"s_cbranch_execz {sk}")
            bload(d, width, vo, R_WS, soff=so, imm=im, flags="sc1")
            a.label(sk)
        a.raw("s_mov_b64 exec, -1")
        a.raw(f"s_sub_u32 s{S_CNT}, s{S_CNT}, 1")
        a.raw(f"s_cmp_eq_u32 s{S_CNT}, 0")
        a.raw(f"s_cbranch_scc0 {lp}")
        a.raw("s_waitcnt vmcnt(0)")
        a.label(dn)

    def doorbell(soff, tmp, lanes="15", sleep=2):
        lp, dn = a.newlabel("db"), a.newlabel("dd")
        a.raw(f"s_mov_b32 s{S_CNT}, {POLL_MAX}")
        a.raw(f"s_mov_b64 exec, {lanes}")
        a.label(lp)
        bload(tmp, 1, 7, R_WS, soff=soff, flags="sc1")
        a.raw("s_waitcnt vmcnt(0)")
        a.valu(f"v_cmp_eq_u32_e32 vcc, -1, v{tmp}", src=[tmp], sdst=["vcc"])
        a.raw(f"s_cbranch_vccz {dn}")
        a.raw(f"s_sleep {sleep}")
        a.raw(f"s_sub_u32 s{S_CNT}, s{S_CNT}, 1")
        a.raw(f"s_cmp_eq_u32 s{S_CNT}, 0")
        a.raw(f"s_cbranch_scc0 {lp}")
        a.label(dn)
        a.raw("s_mov_b64 exec, -1")

    def perm8(raw, out, xs=(0, 1, 2, 3)):
        for x in xs:
            for j in range(4):
                lo, hi = raw + (2 * x) * 4 + j, raw + (2 * x + 1) * 4 + j
                a.op3("v_perm_b32", out + (2 * j) * 4 + x, hi, lo, f"s{S_SELLO}")
                a.op3("v_perm_b32", out + (2 * j + 1) * 4 + x, hi, lo, f"s{S_SELHI}")

    def perm4(raw, out):
        for j in range(4):
            for x in range(2):
                lo, hi = raw + (2 * x) * 4 + j, raw + (2 * x + 1) * 4 + j
                a.op3("v_perm_b32", out + (2 * j) * 2 + x, hi, lo, f"s{S_SELLO}")
                a.op3("v_perm_b32", out + (2 * j + 1) * 2 + x, hi, lo, f"s{S_SELHI}")

    def round_bf16(d, s):
        a.op2e("v_cvt_pk_bf16_f32", d, s, s)
        a.op2("v_lshlrev_b32", d, "16", d)

    def unpack(V, R, n):
        for d in range(n):
            a.op2("v_lshlrev_b32", V + 2 * d, "16", R + d)
            a.op2("v_and_b32", V + 2 * d + 1, "0xffff0000", R + d)

    LN_STEPS = ["quad_perm:[1,0,3,2]", "quad_perm:[2,3,0,1]", "row_ror:8", "x16", "x32"]

    def pk(op, d, x, y, z=None):
        regs = [x, x + 1, y, y + 1] + ([z, z + 1] if z is not None else [])
        t = f"{op} {vr(d, 2)}, {vr(x, 2)}, {vr(y, 2)}" + (f", {vr(z, 2)}" if z is not None else "")
        a.valu(t, dst=[d, d + 1], src=regs)

    def pkb(op, d, e, x, z=None):
        t = f"{op} {vr(d, 2)}, {vr(e, 2)}, {vr(x, 2)}" + (f", {vr(z, 2)}" if z is not None else "")
        t += " op_sel_hi:[0,1,1]" if z is not None else " op_sel_hi:[0,1]"
        a.valu(t, dst=[d, d + 1], src=[e, x, x + 1] + ([z, z + 1] if z is not None else []))

    def ln_norm4(R, XA, V, T, nA=2, steps=None):
        S, Q, MN, t0, M, RC = T, T + 2, T + 4, T + 6, T + 8, T + 6
        slow, join = a.newlabel("lnslow"), a.newlabel("lnjoin")
        if opts.get("fastln", 1):
            a.raw("s_mov_b32 s6, 0x3f803f80")

            def dot(d, x, y, c):
                yt = f"v{y}" if isinstance(y, int) else y
                ct = f"v{c}" if isinstance(c, int) else c
                a.valu(f"v_dot2_f32_bf16 v{d}, v{x}, {yt}, {ct}", dst=[d], src=[x])
            for d in range(0, 8, 2):
                dot(S, R + d, "s6", "0" if d == 0 else S)
                dot(Q, R + d, R + d, "0" if d == 0 else Q)
                dot(S + 1, R + d + 1, "s6", "0" if d == 0 else S + 1)
                dot(Q + 1, R + d + 1, R + d + 1, "0" if d == 0 else Q + 1)
            a.nop(3)
            a.op2("v_add_f32", S, S, S + 1)
            a.op2("v_add_f32", Q, Q, Q + 1)
            a.allreduce("v_add_f32", [S, Q], steps or LN_STEPS, [t0, t0 + 1])
            a.op2("v_mul_f32", MN, "0xbb000000", S)
            a.op2("v_mul_f32", t0, MN, S)
            a.op2("v_add_f32", Q, Q, t0)
            a.valu(f"v_cmp_nle_f32_e64 vcc, -v{t0}, v{Q}", src=[t0, Q], sdst=["vcc"])
            a.raw(f"s_cbranch_vccz {join}")
        unpack(V, R, 8)
        pk("v_pk_add_f32", S, V, V + 2)
        pk("v_pk_add_f32", Q, V + 4, V + 6)
        pk("v_pk_add_f32", S, S, V + 8)
        pk("v_pk_add_f32", Q, Q, V + 10)
        pk("v_pk_add_f32", S, S, V + 12)
        pk("v_pk_add_f32", Q, Q, V + 14)
        pk("v_pk_add_f32", S, S, Q)
        a.op2("v_add_f32", S, S, S + 1)
        a.allreduce("v_add_f32", [S], steps or LN_STEPS, [t0])
        a.op2("v_mul_f32", MN, "0xbb000000", S)
        for i in range(0, 16, 2):
            pkb("v_pk_add_f32", V + i, MN, V + i)
        pk("v_pk_mul_f32", Q, V, V)
        pk("v_pk_mul_f32", S, V + 2, V + 2)
        for i in range(4, 16, 4):
            pk("v_pk_fma_f32", Q, V + i, V + i, Q)
            pk("v_pk_fma_f32", S, V + i + 2, V + i + 2, S)
        pk("v_pk_add_f32", Q, Q, S)
        a.op2("v_add_f32", Q, Q, Q + 1)
        a.allreduce("v_add_f32", [Q], steps or LN_STEPS, [t0])
        a.label(join)
        a.fence(4)
        round_bf16(M, MN)
        unpack(V, XA, nA)
        a.op2("v_mul_f32", Q, INV512, Q)
        round_bf16(Q, Q)
        a.op2("v_add_f32", Q, EPS, Q)
        round_bf16(Q, Q)
        a.op1("v_sqrt_f32", Q, Q, kind="trans")
        for i in range(0, 2 * nA, 2):
            pkb("v_pk_add_f32", V + i, M, V + i)
        round_bf16(Q, Q)
        a.op1("v_rcp_f32", RC, Q, kind="trans")
        for d in range(nA):
            a.op2e("v_cvt_pk_bf16_f32", XA + d, V + 2 * d, V + 2 * d + 1)
        unpack(V, XA, nA)
        for i in range(0, 2 * nA, 2):
            pkb("v_pk_mul_f32", V + i, RC, V + i)
        for d in range(nA):
            a.op2e("v_cvt_pk_bf16_f32", XA + d, V + 2 * d, V + 2 * d + 1)

    def n32_masks(t):
        a.op2("v_lshrrev_b32", t, "2", 0)
        a.op2("v_and_b32", t, "3", t)
        for r in (1, 2, 3):
            a.cmp("v_cmp_eq_u32", sr(S_MASK + 2 * (r - 1), 2), str(r), t)
        a.op2("v_and_b32", t, "8", 0)
        a.cmp("v_cmp_ne_u32", sr(S_MASK + 6, 2), "0", t)

    def n32_core(PA, WP, ACC, T, P3ADDR):
        for x in range(2):
            a.cndmask(T + x, PA + x, "0", sr(S_MASK + 6, 2))
            a.cndmask(T + 2 + x, "0", PA + x, sr(S_MASK + 6, 2))
        for cc in range(2):
            for t in range(4):
                a.mfma16k16(ACC + 4 * t, T + 2 * cc, WP + 2 * (2 * t + cc), None if cc == 0 else ACC + 4 * t)
        for t in range(4):
            a.cndmask(T + 4 + t, ACC + 4 * t, ACC + 4 * t + 1, sr(S_MASK, 2))
            a.cndmask(T + 4 + t, T + 4 + t, ACC + 4 * t + 2, sr(S_MASK + 2, 2))
            a.cndmask(T + 4 + t, T + 4 + t, ACC + 4 * t + 3, sr(S_MASK + 4, 2))
        a.allreduce("v_add_f32", [T + 4 + t for t in range(4)], ["row_ror:4", "row_ror:8"], [])
        a.raw("s_mov_b32 exec_lo, 0x000f000f")
        a.raw("s_mov_b32 exec_hi, 0x000f000f")
        dsw(T + 4, 4, P3ADDR, L_P3)
        a.raw("s_mov_b64 exec, -1")

    def n32_final(L16, T):
        dsr(T, 4, L16, L_P3)
        dsr(T + 4, 4, L16, L_P3 + 1024)
        a.raw("s_waitcnt lgkmcnt(0)")
        pk("v_pk_add_f32", T, T, T + 4)
        pk("v_pk_add_f32", T + 2, T + 2, T + 6)
        a.swap32(T, T + 1)
        a.swap32(T + 2, T + 3)
        a.op2("v_add_f32", T, T, T + 1)
        a.op2("v_add_f32", T + 2, T + 2, T + 3)
        a.swap16(T, T + 2)
        a.op2("v_add_f32", T, T, T + 2)

    def n32_out_addr(d, t):
        a.op2("v_and_b32", d, "3", 0)
        a.op2("v_lshlrev_b32", d, "4", d)
        a.op2("v_and_b32", t, "4", 0)
        a.op3("v_lshl_add_u32", d, t, "4", d)
        a.op2("v_and_b32", t, "8", 0)
        a.op2("v_lshrrev_b32", t, "2", t)
        a.op2("v_add_u32", d, d, t)
        a.op2("v_and_b32", t, "16", 0)
        a.op2("v_lshrrev_b32", t, "1", t)
        a.op2("v_add_u32", d, d, t)
        a.op2("v_and_b32", t, "32", 0)
        a.op2("v_lshrrev_b32", t, "3", t)
        a.op2("v_add_u32", d, d, t)

    a.raw("s_cmp_ge_u32 s2, 256")
    a.raw("s_cbranch_scc1 L_end")
    a.raw("s_load_dwordx16 s[16:31], s[0:1], 0")
    a.raw("s_load_dwordx4 s[32:35], s[0:1], 64")
    a.raw("s_load_dwordx2 s[36:37], s[0:1], 80")
    if opts.get("probe"):
        a.raw("s_mov_b32 s97, 0")
    stamp(0)
    if opts.get("padto"):
        a.raw("s_memrealtime s[100:101]")
    a.op2("v_lshrrev_b32", 1, "6", 0)
    a.op2("v_and_b32", 0, "63", 0)
    a.op2("v_lshrrev_b32", 3, "4", 0)
    a.valu("v_readfirstlane_b32 s3, v1", src=[1], sdst=["s3"])
    a.raw("s_and_b32 s4, s2, 7")
    a.raw("s_lshr_b32 s5, s2, 4")
    a.op2("v_lshlrev_b32", 7, "4", 0)
    a.raw("s_bitcmp1_b32 s2, 3")
    a.raw("s_cbranch_scc0 L_att")

    mark("tail0")
    XS, XA = 8, 16
    WR1, WP1 = 24, 56
    a.raw("s_lshl_b32 s14, s4, 4")
    a.raw("s_add_u32 s14, s14, s5")
    a.raw("s_cmp_ge_u32 s3, 4")
    a.raw("s_cbranch_scc1 L_t_aux")
    a.op2("v_lshrrev_b32", 2, "3", 0)
    a.op2("v_lshlrev_b32", 2, "13" if opts.get("wqpat") else "16", 2)
    a.op2("v_and_b32", 4, "7", 0)
    a.op3("v_lshl_add_u32", 6, 4, "4", 2)
    a.raw("s_lshr_b32 s10, s5, 3")
    a.raw("s_and_b32 s11, s5, 7")
    a.raw("s_lshl_b32 s8, s4, 10")
    a.raw("s_lshl_b32 s9, s11, 7")
    a.raw("s_add_u32 s8, s8, s9")
    a.raw("s_lshl_b32 s9, s10, 2")
    a.raw("s_add_u32 s9, s9, s3")
    a.raw("s_lshl_b32 s9, s9, 19")
    a.raw("s_add_u32 s8, s8, s9")
    a.raw("s_waitcnt lgkmcnt(0)")
    srd(R_B, P_WQ, 512 * 8192)
    if not opts.get("nob0t"):
        a.raw("s_barrier")
    for i in range(8):
        bload(WR1 + 4 * i, 4, 6, R_B, soff="s8", flags={"def": ""}.get(opts.get("wqf", SF), opts.get("wqf", SF)))
        if i < 7:
            a.raw(f"s_add_u32 s8, s8, {65536 if opts.get('wqpat') else 8192}")
    a.raw("s_branch L_tail1")
    a.label("L_t_aux")
    for r in range(4):
        a.op1("v_mov_b32", 124 + r, "-1")
    a.raw("s_waitcnt lgkmcnt(0)")
    srd_ws()
    srd(R_A, P_X, 2048)
    a.raw("s_cmp_eq_u32 s3, 4")
    a.raw("s_cbranch_scc1 L_t_x")
    a.raw("s_cmp_eq_u32 s3, 5")
    a.raw("s_cbranch_scc1 L_t_co")
    a.raw("s_cmp_eq_u32 s3, 6")
    a.raw("s_cbranch_scc1 L_t_ca")
    a.raw("s_cmp_lg_u32 s5, 0")
    a.raw("s_cbranch_scc1 L_t_auxb")
    a.raw("s_lshl_b32 s6, s4, 13")
    a.raw("s_add_u32 s7, s6, 4096")
    for k in range(8):
        bstore(124, 4, 7, R_WS, soff="s6" if k < 4 else "s7", imm=QB + (k & 3) * 1024, flags="sc1")
    a.raw("s_branch L_t_auxb")
    a.label("L_t_x")
    bload(XS, 4, 7, R_A)
    bload(XS + 4, 4, 7, R_A, imm=1024)
    a.raw("s_branch L_t_auxb")
    a.label("L_t_co")
    a.raw("s_lshl_b32 s9, s14, 11")
    a.raw(f"s_add_u32 s9, s9, {OB}")
    bstore(124, 4, 7, R_WS, soff="s9", flags="sc1")
    bstore(124, 4, 7, R_WS, soff="s9", imm=1024, flags="sc1")
    if opts.get("dual", 0):
        a.raw(f"s_add_u32 s9, s9, {OX - OB}")
        bstore(124, 4, 7, R_WS, soff="s9", flags="sc1")
        bstore(124, 4, 7, R_WS, soff="s9", imm=1024, flags="sc1")
    a.raw("s_branch L_t_auxb")
    a.label("L_t_ca")
    a.raw("s_cmp_ge_u32 s5, 8")
    a.raw("s_cbranch_scc1 L_t_auxb")
    a.raw("s_lshl_b32 s10, s4, 3")
    a.raw("s_add_u32 s10, s10, s5")
    a.raw("s_lshl_b32 s10, s10, 9")
    a.raw(f"s_add_u32 s10, s10, {AB}")
    a.raw("s_mov_b32 exec_hi, 0")
    bstore(124, 4, 7, R_WS, soff="s10", flags="sc1")
    a.raw("s_mov_b64 exec, -1")
    a.label("L_t_auxb")
    if not opts.get("nob0t"):
        a.raw("s_barrier")
    a.raw("s_branch L_tail1")

    mark("att0")
    a.label("L_att")
    VOFF, QOFF = 5, 6
    KR, VRAW, QR, SACC, PR, PM, OACC = 16, 48, 80, 96, 104, 108, 8
    a.op2("v_and_b32", 2, "15", 0)
    a.op2("v_xor_b32", 4, 2, 3)
    a.op2("v_lshlrev_b32", 4, "4", 4)
    for q in range(4):
        a.op2("v_xor_b32", 116 + q, str(64 * q), 4)
        a.op3("v_lshl_add_u32", 112 + q, 3, "8", 116 + q)
    a.op2("v_lshlrev_b32", 4, "10", 3)
    a.op3("v_lshl_add_u32", VOFF, 2, "4", 4)
    for t in ["s_lshr_b32 s6, s5, 3", "s_and_b32 s7, s5, 7", "s_lshl_b32 s8, s6, 3", "s_add_u32 s8, s8, s4",
              "s_lshl_b32 s8, s8, 13", "s_lshl_b32 s9, s7, 8", "s_add_u32 s8, s8, s9", "s_lshl_b32 s9, s3, 5",
              "s_add_u32 s8, s8, s9", "s_add_u32 s8, s8, 6144", "s_lshl_b32 s8, s8, 8", "s_add_u32 s9, s8, 4096",
              "s_lshl_b32 s13, s3, 13", f"s_add_u32 s13, s13, {L_K}", "s_add_u32 s12, s13, 4096", "s_mov_b32 m0, s13"]:
        a.raw(t)
    a.raw("s_waitcnt lgkmcnt(0)")
    srd(R_A, P_K, 0x2000000)
    for rr in range(opts.get("adelay", 0)):
        a.raw("s_mov_b64 exec, 1")
        bload(126, 1, 112 + rr, R_A, soff="s9", imm=2048 * rr, flags=SF)
        a.raw("s_mov_b64 exec, -1")
        a.raw("s_waitcnt vmcnt(0)")
    for T in range(2):
        if T:
            if opts.get("kpace", -1) >= 0:
                a.raw(f"s_waitcnt vmcnt({opts['kpace']})")
            a.raw("s_mov_b32 m0, s12")
            a.nop(1)
        for q in range(4):
            a.mem(f"buffer_load_dwordx4 v{112 + q}, {sr(R_A, 4)}, s{8 + T} offen offset:{q * 1024} {SF} lds",
                  src=[112 + q])
    srd(R_B, P_V, 0x2000000)
    if opts.get("vpace", -1) >= 0:
        a.raw(f"s_waitcnt vmcnt({opts['vpace']})")
    if opts.get("kbar", 1):
        a.raw("s_barrier")
    NV1 = opts.get("nv1", 6)
    srd(R_C, P_DBG, 256)
    a.raw("s_lshl_b32 s6, s4, 2")
    a.op1("v_mov_b32", 124, "s6")
    a.raw("s_cmp_lg_u32 s3, 0")
    a.raw("s_cbranch_scc1 L_a_nfs")
    a.raw("s_mov_b64 exec, 1")
    bload(125, 1, 124, R_C, imm=128, flags="sc1")
    a.raw("s_mov_b64 exec, -1")
    a.label("L_a_nfs")
    for i in range(NV1):
        bload(VRAW + i * 4, 4, VOFF, R_B, soff=f"s{8 + i // 4}", imm=(i % 4) * 256, flags=SF)
    a.raw("s_branch L_att1")

    mark("tail1")
    a.label("L_tail1")
    a.raw(f"s_mov_b32 s{S_SELLO}, 0x05040100")
    a.raw(f"s_mov_b32 s{S_SELHI}, 0x07060302")
    srd_ws()
    srd(R_A, P_X, 2048)
    srd(R_C, P_DBG, 256)
    a.raw("s_lshl_b32 s6, s4, 2")
    a.op1("v_mov_b32", 123, "s6")
    a.raw("s_cmp_lt_u32 s3, 4")
    a.raw("s_cbranch_scc1 L_t_main")
    a.raw("s_waitcnt vmcnt(0)")
    a.raw("s_cmp_lg_u32 s3, 4")
    a.raw("s_cbranch_scc1 L_t_a1")
    dsw(XS, 4, 7, L_H)
    dsw(XS + 4, 4, 7, L_H + 1024)
    a.raw("s_waitcnt lgkmcnt(0)")
    stamp(3)
    a.raw("s_barrier")
    a.raw("s_barrier")
    a.raw("s_branch L_t_np")
    a.label("L_t_a1")
    a.raw("s_lshl_b32 s6, s5, 3")
    a.raw("s_add_u32 s6, s6, s3")
    a.raw("s_cmp_lg_u32 s6, 7")
    a.raw("s_cbranch_scc1 L_t_a2")
    a.op1("v_mov_b32", 4, "1")
    a.raw("s_mov_b64 exec, 1")
    bstore(4, 1, 123, R_C, imm=128, flags="sc1")
    a.raw("s_mov_b64 exec, -1")
    a.label("L_t_a2")
    stamp(5)
    a.raw("s_barrier")
    a.raw("s_barrier")
    a.raw("s_branch L_t_np")
    a.label("L_t_main")
    a.op2("v_lshrrev_b32", 2, "2", 0)
    a.op2("v_and_b32", 5, "1", 0)
    a.op3("v_lshl_add_u32", 2, 2, "1", 5)
    a.op2("v_lshlrev_b32", 2, "4", 2)
    a.op2("v_and_b32", 6, "2", 0)
    a.op3("v_lshl_add_u32", 20, 6, "9", 2)
    a.op3("v_lshl_add_u32", 2, 3, "1", 5)
    a.raw("s_lshl_b32 s6, s10, 2")
    a.raw("s_add_u32 s6, s6, s3")
    a.raw("s_lshl_b32 s6, s6, 7")
    a.op3("v_lshl_add_u32", 21, 2, "4", "s6")
    a.op3("v_lshl_add_u32", 21, 6, "9", 21)
    a.op3("v_lshl_add_u32", 2, 3, "3", 4)
    a.raw("s_lshl_b32 s7, s3, 9")
    a.op3("v_lshl_add_u32", 22, 2, "4", "s7")
    a.op2("v_and_b32", 2, "31", 0)
    a.op2("v_lshlrev_b32", 2, "4", 2)
    a.op2("v_and_b32", 5, "32", 0)
    a.op3("v_lshl_add_u32", 23, 5, "5", 2)
    a.op2("v_lshrrev_b32", 2, "2", 0)
    a.op2("v_and_b32", 2, "3", 2)
    for c in range(4):
        a.cmp("v_cmp_eq_u32", sr(S_MASK + 2 * c, 2), str(c), 2)
    a.op2("v_and_b32", 2, "8", 0)
    a.cmp("v_cmp_ne_u32", "s[12:13]", "0", 2)
    a.raw("s_lshl_b32 s8, s14, 9")
    a.op2("v_lshlrev_b32", 6, "3", 0)
    a.raw("s_barrier")
    for s_ in range(2):
        dsr(XS + 4 * s_, 4, 20, L_H + 512 * s_)
    dsr(XA, 4, 21, L_H)
    a.raw("s_waitcnt lgkmcnt(0)")
    ln_norm4(XS, XA, 88, 104, nA=4, steps=["quad_perm:[1,0,3,2]", "row_ror:4", "row_ror:8", "x16", "x32"])
    for c in range(4):
        for x in range(4):
            a.cndmask(88 + 4 * c + x, "0", XA + x, sr(S_MASK + 2 * c, 2))
    stamp(2)
    a.raw("s_waitcnt vmcnt(4)")
    a.raw("s_cmp_lg_u32 s3, 0")
    a.raw("s_cbranch_scc1 L_t_nfs")
    a.raw("s_mov_b64 exec, 1")
    bload(5, 1, 123, R_C, imm=128, flags="sc1")
    a.raw("s_mov_b64 exec, -1")
    perm8(WR1, WP1, (0, 1))
    a.raw("s_waitcnt vmcnt(1)")
    a.raw("s_branch L_t_nfs2")
    a.label("L_t_nfs")
    perm8(WR1, WP1, (0, 1))
    a.raw("s_waitcnt vmcnt(0)")
    a.label("L_t_nfs2")
    stamp(1)
    perm8(WR1, WP1, (2, 3))
    for c in range(4):
        for t in range(2):
            a.mfma16(8 + 4 * t, 88 + 4 * c, WP1 + 4 * (2 * c + t), None if c == 0 else 8 + 4 * t)
    for b in range(2):
        for t in range(2):
            a.cndmask(16 + 2 * b + t, 8 + 4 * t + 2 * b, 8 + 4 * t + 2 * b + 1, "s[12:13]")
    a.allreduce("v_add_f32", [16, 17, 18, 19], ["row_ror:8"], [])
    a.raw("s_mov_b32 exec_lo, 0x00ff00ff")
    a.raw("s_mov_b32 exec_hi, 0x00ff00ff")
    dsw(16, 4, 22, L_P3)
    a.raw("s_mov_b64 exec, -1")
    a.raw("s_waitcnt lgkmcnt(0)")
    a.raw("s_barrier")
    stamp(4)
    a.raw("s_cmp_lg_u32 s3, 0")
    a.raw("s_cbranch_scc1 L_t_np")
    dsr(8, 4, 23, L_P3)
    dsr(12, 4, 23, L_P3 + 512)
    a.raw("s_waitcnt lgkmcnt(0)")
    for r in range(4):
        a.op2("v_add_f32", 8 + r, 8 + r, 12 + r)
    a.swap32(8, 10)
    a.swap32(9, 11)
    a.op2("v_add_f32", 8, 8, 10)
    a.op2("v_add_f32", 9, 9, 11)
    for r in range(2):
        a.op2("v_min_u32", 8 + r, "-2", 8 + r)
    a.raw("s_waitcnt vmcnt(0)")
    poll_flags(123, 128, "1", 5, pre_loaded=True)
    bstore(8, 2, 6, R_WS, soff="s8", imm=QB, flags="sc1")
    stamp(2)
    a.label("L_t_np")
    a.raw("s_barrier")
    a.raw("s_cmp_lt_u32 s5, 8")
    a.raw("s_cbranch_scc1 L_s3")
    a.raw("s_cmp_lt_u32 s5, 15")
    a.raw("s_cbranch_scc1 L_ffn")
    a.raw("s_cmp_eq_u32 s3, 1")
    a.raw("s_cbranch_scc1 L_touch")
    a.raw("s_cmp_lg_u32 s3, 0")
    a.raw("s_cbranch_scc1 L_exit")
    a.raw("s_lshl_b32 s8, s4, 13")
    a.raw("s_add_u32 s9, s8, 4096")
    a.op2("v_and_b32", 2, "15", 0)
    a.op2("v_lshlrev_b32", 2, "4", 2)
    a.op3("v_lshl_add_u32", 2, 3, "9", 2)
    poll_masked([(8 + 4 * k, 2, "s8" if k < 2 else "s9", QB + (k & 1) * 2048) for k in range(4)], 24, sleep=2)
    a.op1("v_mov_b32", 4, "1")
    a.raw("s_mov_b64 exec, 1")
    bstore(4, 1, 123, R_C, flags="sc1")
    a.raw("s_mov_b64 exec, -1")
    stamp(3)
    a.raw("s_branch L_exit")
    a.label("L_touch")
    a.raw("s_getpc_b64 s[6:7]")
    a.label("L_pc")
    a.raw(f"s_sub_u32 s6, s6, L_pc - {NAME}_kernel")
    a.raw("s_subb_u32 s7, s7, 0")
    for k in range(opts.get("code_kb", 10)):
        if k % 4 == 0 and k:
            a.op2("v_add_u32", 7, "4096", 7)
        a.mem(f"global_load_dwordx4 v[12:15], v7, s[6:7] offset:{(k % 4) * 1024}", src=[7], dst=[12, 13, 14, 15])
    a.raw("s_branch L_exit")

    a.label("L_att1")
    a.raw(f"s_mov_b32 s{S_SELLO}, 0x05040100")
    a.raw(f"s_mov_b32 s{S_SELHI}, 0x07060302")
    srd_ws()
    srd(R_A, P_X, 2048)
    srd(R_D, P_OUT, 2048)
    a.raw("s_lshl_b32 s14, s5, 3")
    a.raw("s_add_u32 s14, s14, s4")
    a.raw("s_lshl_b32 s15, s14, 12")
    a.raw(f"s_add_u32 s15, s15, {FB}")
    a.raw("s_lshl_b32 s12, s4, 13")
    a.raw("s_lshr_b32 s7, s5, 3")
    a.raw("s_lshl_b32 s7, s7, 8")
    a.raw("s_add_u32 s12, s12, s7")
    a.op2("v_lshlrev_b32", 126, "4", 2)
    a.op3("v_lshl_add_u32", 144, 3, "9", 126)
    a.op2("v_lshlrev_b32", 145, "7", 3)
    a.op2("v_and_b32", 126, "3", 0)
    a.op3("v_lshl_add_u32", 145, 126, "5", 145)
    a.op2("v_and_b32", 126, "12", 0)
    a.op2("v_add_u32", 145, 145, 126)
    for q in range(4):
        a.op3("v_lshl_add_u32", 116 + q, 2, "8", 116 + q)
        a.op2("v_add_u32", 116 + q, "s13", 116 + q)
    a.op2("v_and_b32", 2, "3", 0)
    a.op2("v_lshlrev_b32", 2, "8", 2)
    a.op3("v_lshl_add_u32", QOFF, 3, "4", 2)
    a.op2("v_lshrrev_b32", 2, "2", 0)
    a.op2("v_and_b32", 2, "3", 2)
    for c in range(4):
        a.cmp("v_cmp_eq_u32", sr(S_MASK + 2 * c, 2), str(c), 2)
    VOP = 160
    a.raw(f"s_mov_b32 s10, {SCALE}")
    a.raw(f"s_mov_b32 s11, {SCALE}")
    a.raw(f"s_mov_b32 s62, {LOG2E}")
    a.raw(f"s_mov_b32 s63, {LOG2E}")
    a.raw("s_add_u32 s39, s12, 4096")
    for r in range(4):
        a.op1("v_mov_b32", 12 + r, "-1")
    a.raw("s_lshl_b32 s6, s3, 3")
    a.op2("v_lshlrev_b32", 146, "6", 0)
    a.op2("v_add_u32", 146, "s6", 146)
    a.raw("s_lshl_b32 s6, s3, 13")
    a.op2("v_add_u32", 147, "s6", 7)
    a.op2("v_and_b32", 148, "3", 0)
    a.op2("v_lshlrev_b32", 148, "8", 148)
    a.op2("v_and_b32", 126, "12", 0)
    a.op3("v_lshl_add_u32", 148, 126, "4", 148)
    a.op2("v_and_b32", 126, "16", 0)
    a.op3("v_lshl_add_u32", 148, 126, "6", 148)
    a.op2("v_lshrrev_b32", 126, "5", 0)
    a.raw("s_lshl_b32 s6, s3, 1")
    a.op2("v_add_u32", 126, "s6", 126)
    a.op3("v_lshl_add_u32", 148, 126, "4", 148)
    a.op2("v_lshlrev_b32", 149, "6", 126)
    a.raw("s_lshl_b32 s6, s4, 4")
    a.raw("s_add_u32 s6, s6, s5")
    a.raw("s_lshl_b32 s6, s6, 1")
    a.raw("s_add_u32 s6, s6, s3")
    a.raw("s_lshl_b32 s6, s6, 10")
    a.raw(f"s_add_u32 s13, s6, {OB}")
    for r in range(4):
        a.raw(f"s_mov_b32 s{16 + r}, {0x07060500 + r:#x}")
    q1 = [(128 + 4 * k, 144, "s12" if k < 2 else "s39", QB + (k & 1) * 2048) for k in range(4)]
    q2 = [(192 + 4 * k, 144, "s12" if k < 2 else "s39", QB + (k & 1) * 2048) for k in range(4)]

    def q_check(base, lab):
        a.op3("v_max3_u32", 126, base, base + 1, base + 2)
        for r in range(base + 3, base + 15, 2):
            a.op3("v_max3_u32", 126, 126, r, r + 1)
        a.op2("v_max_u32", 126, 126, base + 15)
        a.valu("v_cmp_eq_u32_e32 vcc, -1, v126", src=[126], sdst=["vcc"])
        a.raw(f"s_cbranch_vccz {lab}")

    def q_fin(base):
        for k in range(2):
            pk("v_pk_add_f32", base + 4 * k, base + 4 * k, base + 8 + 4 * k)
            pk("v_pk_add_f32", base + 2 + 4 * k, base + 2 + 4 * k, base + 10 + 4 * k)
        for k in range(2):
            for x in range(2):
                a.op2e("v_cvt_pk_bf16_f32", base + 8 + 2 * k + x, base + 4 * k + 2 * x, base + 4 * k + 2 * x + 1)
        for k in range(2):
            for x in range(2):
                dsw(base + 8 + 2 * k + x, 1, 145, L_Q + 512 * k + 16 * x)

    def vload(i):
        bload(VRAW + i * 4, 4, VOFF, R_B, soff=f"s{8 + i // 4}", imm=(i % 4) * 256, flags=SF)

    NV2 = opts.get("nv2", 6)
    a.raw(f"s_waitcnt vmcnt({NV1})")
    for T in range(2):
        for s in range(4):
            dsr(KR + T * 16 + s * 4, 4, 116 + s, T * 4096)
    a.raw(f"s_cmp_ge_u32 s3, {opts.get('qw', 0)}")
    a.raw("s_cbranch_scc1 L_a_nt")
    a.raw(f"s_waitcnt vmcnt({NV1 - opts.get('qtrig', 1)})")
    a.label("L_a_nt")
    stamp(1)
    a.raw("s_barrier")
    a.raw("s_cmp_lg_u32 s3, 0")
    a.raw("s_cbranch_scc1 L_a_nq")
    poll_flags(124, 128, "1", 125, pre_loaded=True)
    for (d, vo, so, im) in q1:
        bload(d, 4, vo, R_WS, soff=so, imm=im, flags="sc1")
    a.label("L_a_nq")
    a.raw("s_barrier")
    for i in range(NV1, NV2):
        vload(i)
    if NV2 > NV1:
        a.raw("s_barrier")
        a.raw("s_cmp_lg_u32 s3, 0")
        a.raw("s_cbranch_scc1 L_a_nq1")
        for (d, vo, so, im) in q2:
            bload(d, 4, vo, R_WS, soff=so, imm=im, flags="sc1")
        a.label("L_a_nq1")
        a.raw("s_barrier")
    for i in range(NV2, 8):
        vload(i)
    a.raw("s_cmp_eq_u32 s3, 0")
    a.raw("s_cbranch_scc1 L_a_q")
    a.raw("s_cmp_lg_u32 s3, 1")
    a.raw("s_cbranch_scc1 L_a_nc")
    a.raw("s_cmp_ge_u32 s5, 8")
    a.raw("s_cbranch_scc1 L_a_nc")
    a.raw(f"s_waitcnt vmcnt({8 - NV1})")
    for k in range(4):
        bstore(12, 4, 7, R_WS, soff="s15", imm=k * 1024, flags="sc1")
    perm8(VRAW, VOP, tuple(range(NV1 // 2)))
    a.raw("s_branch L_a_nq2")
    a.label("L_a_nc")
    a.raw(f"s_waitcnt vmcnt({8 - NV1})")
    perm8(VRAW, VOP, tuple(range(NV1 // 2)))
    a.raw("s_branch L_a_nq2")
    a.label("L_a_q")
    nq2 = 4 if NV2 > NV1 else 0
    a.raw(f"s_waitcnt vmcnt({8 - NV1 + nq2})")
    q_check(128, "L_a_q1ok")
    if nq2:
        a.raw(f"s_waitcnt vmcnt({8 - NV2})")
        q_check(192, "L_a_q2ok")
    poll_masked(q1, 126, sleep=1)
    a.label("L_a_q1ok")
    q_fin(128)
    a.raw("s_branch L_a_q3")
    a.label("L_a_q2ok")
    q_fin(192)
    a.label("L_a_q3")
    a.raw("s_waitcnt lgkmcnt(0)")
    a.raw("s_barrier")
    for s in range(4):
        dsr(QR + 4 * s, 4, QOFF, L_Q + 64 * s)
    perm8(VRAW, VOP, tuple(range(NV1 // 2)))
    a.raw("s_branch L_a_qk")
    a.label("L_a_nq2")
    a.raw("s_waitcnt lgkmcnt(0)")
    a.raw("s_barrier")
    for s in range(4):
        dsr(QR + 4 * s, 4, QOFF, L_Q + 64 * s)
    a.label("L_a_qk")
    stamp(2)
    a.raw("s_waitcnt lgkmcnt(0)")
    for s in range(4):
        for T in range(2):
            a.mfma16(SACC + 4 * T, KR + T * 16 + s * 4, QR + 4 * s, None if s == 0 else SACC + 4 * T)
    SV = QR
    PK = QR + 8
    for d in range(4):
        a.op2e("v_cvt_pk_bf16_f32", PK + d, SACC + 2 * d, SACC + 2 * d + 1)
    unpack(SV, PK, 4)
    for i in range(0, 8, 2):
        a.valu(f"v_pk_mul_f32 {vr(SV + i, 2)}, {vr(SV + i, 2)}, s[10:11]", dst=[SV + i, SV + i + 1], src=[SV + i, SV + i + 1])
    for d in range(4):
        a.op2e("v_cvt_pk_bf16_f32", PK + d, SV + 2 * d, SV + 2 * d + 1)
    unpack(SV, PK, 4)
    MX, LS, TT, NM = QR + 12, QR + 13, QR + 14, SACC
    a.op3("v_max3_f32", MX, SV + 0, SV + 1, SV + 2)
    a.op3("v_max3_f32", TT, SV + 3, SV + 4, SV + 5)
    a.op3("v_max3_f32", MX, MX, SV + 6, SV + 7)
    a.op2("v_max_f32", MX, MX, TT)
    a.allreduce("v_max_f32", [MX], ["x16", "x32"], [TT])
    a.op2("v_mul_f32", MX, "s62", MX)
    a.op2("v_sub_f32", NM, "0", MX)
    a.op2("v_sub_f32", NM + 1, "0", MX)
    for i in range(0, 8, 2):
        a.valu(f"v_pk_fma_f32 {vr(SV + i, 2)}, {vr(SV + i, 2)}, s[62:63], {vr(NM, 2)}",
               dst=[SV + i, SV + i + 1], src=[SV + i, SV + i + 1, NM, NM + 1])
    for i in range(8):
        a.op1("v_exp_f32", SV + i, SV + i, kind="trans")
    for d in range(4):
        a.op2e("v_cvt_pk_bf16_f32", PR + d, SV + 2 * d, SV + 2 * d + 1)
    pk("v_pk_add_f32", SV, SV, SV + 2)
    pk("v_pk_add_f32", SV + 4, SV + 4, SV + 6)
    pk("v_pk_add_f32", SV, SV, SV + 4)
    a.op2("v_add_f32", LS, SV, SV + 1)
    for c in range(4):
        for x in range(4):
            a.cndmask(PM + 4 * c + x, "0", PR + x, sr(S_MASK + 2 * c, 2))
    a.raw("s_waitcnt vmcnt(0)")
    stamp(3)
    perm8(VRAW, VOP, tuple(range(NV1 // 2, 4)))
    for c in range(4):
        for ch in range(2):
            a.mfma16(OACC + 4 * ch, VOP + 4 * (ch * 4 + c), PM + 4 * c, None if c == 0 else OACC + 4 * ch)
    a.allreduce("v_add_f32", [LS], ["x16", "x32"], [TT])
    a.raw("s_mov_b64 exec, 15")
    dsw(MX, 2, 146, L_ST)
    a.raw("s_mov_b64 exec, -1")
    for ch in range(2):
        dsw(OACC + 4 * ch, 4, 147, L_K + 1024 * ch)
    a.raw("s_waitcnt lgkmcnt(0)")
    a.raw("s_barrier")
    a.raw("s_cmp_ge_u32 s3, 2")
    a.raw("s_cbranch_scc1 L_a_fin")
    OW, STV = 16, 48
    for k in range(4):
        dsr(STV + 4 * k, 4, 149, L_ST + 16 * k)
    for w in range(8):
        dsr(OW + 4 * w, 4, 148, L_K + 8192 * w)
    a.raw("s_waitcnt lgkmcnt(8)")
    Mx, Lx, E0 = 64, 65, 66
    a.op3("v_max3_f32", Mx, STV + 0, STV + 2, STV + 4)
    a.op3("v_max3_f32", Lx, STV + 6, STV + 8, STV + 10)
    a.op3("v_max3_f32", Mx, Mx, STV + 12, STV + 14)
    a.op2("v_max_f32", Mx, Mx, Lx)
    for w in range(8):
        a.op2("v_sub_f32", E0 + 2 * w, STV + 2 * w, Mx)
    for w in range(8):
        a.op1("v_exp_f32", E0 + 2 * w, E0 + 2 * w, kind="trans")
    a.op2("v_mul_f32", Lx, E0, STV + 1)
    a.op2("v_mul_f32", 84, E0 + 2, STV + 3)
    for w in range(2, 8, 2):
        a.op2("v_fmac_f32", Lx, E0 + 2 * w, STV + 2 * w + 1)
        a.op2("v_fmac_f32", 84, E0 + 2 * w + 2, STV + 2 * w + 3)
    a.op2("v_add_f32", Lx, Lx, 84)
    a.op1("v_rcp_f32", 82, Lx, kind="trans")
    a.op1("v_log_f32", 83, Lx, kind="trans")
    a.raw("s_waitcnt lgkmcnt(0)")

    for h in range(2):
        pkb("v_pk_mul_f32", 84 + 2 * h, E0, OW + 2 * h)
        pkb("v_pk_mul_f32", 88 + 2 * h, E0 + 2, OW + 4 + 2 * h)
    for w in range(2, 8, 2):
        for h in range(2):
            pkb("v_pk_fma_f32", 84 + 2 * h, E0 + 2 * w, OW + 4 * w + 2 * h, 84 + 2 * h)
            pkb("v_pk_fma_f32", 88 + 2 * h, E0 + 2 * w + 2, OW + 4 * w + 4 + 2 * h, 88 + 2 * h)
    a.op2("v_add_f32", 83, 83, Mx)
    for h in range(2):
        pk("v_pk_add_f32", 84 + 2 * h, 84 + 2 * h, 88 + 2 * h)
    for h in range(2):
        pkb("v_pk_mul_f32", 84 + 2 * h, 82, 84 + 2 * h)
    for r in range(4):
        a.op3("v_perm_b32", 84 + r, 84 + r, 83, f"s{16 + r}")
    for r in range(4):
        a.op2("v_min_u32", 84 + r, "-2", 84 + r)
    if opts.get("dual", 0):
        a.raw(f"s_add_u32 s6, s13, {OX - OB}")
        bstore(84, 4, 7, R_WS, soff="s6")
    bstore(84, 4, 7, R_WS, soff="s13", flags="sc1")
    stamp(4)
    a.raw("s_branch L_exit")
    a.label("L_a_fin")
    a.raw("s_cmp_lg_u32 s3, 2")
    a.raw("s_cbranch_scc1 L_exit")
    a.raw("s_cmp_ge_u32 s5, 8")
    a.raw("s_cbranch_scc1 L_exit")
    a.raw("s_lshr_b32 s6, s14, 4")
    a.raw("s_lshl_b32 s6, s6, 7")
    a.raw("s_and_b32 s7, s14, 3")
    a.raw("s_lshl_b32 s7, s7, 5")
    a.raw("s_add_u32 s6, s6, s7")
    a.raw("s_bfe_u32 s7, s14, 0x20002")
    a.raw("s_lshl_b32 s7, s7, 1")
    a.raw("s_add_u32 s6, s6, s7")
    a.op2("v_and_b32", 2, "3", 0)
    a.op2("v_lshlrev_b32", 2, "3", 2)
    a.op2("v_bfe_u32" if False else "v_lshrrev_b32", 3, "3", 0)
    a.op2("v_and_b32", 3, "1", 3)
    a.op3("v_add3_u32", 2, 2, 3, "s6")
    a.op2("v_and_b32", 3, "4", 0)
    a.op2("v_lshlrev_b32", 4, "1", 2)
    a.op3("v_lshl_add_u32", 4, 3, "8", 4)
    a.mem(f"buffer_load_ushort v10, v4, {sr(R_A, 4)}, 0 offen", src=[4], dst=[10])
    a.op2("v_lshrrev_b32", 5, "6", 2)
    a.op2("v_lshlrev_b32", 5, "9", 5)
    a.op3("v_lshl_add_u32", 5, 3, "6", 5)
    a.op2("v_and_b32", 6, "6", 2)
    a.op3("v_lshl_add_u32", 5, 6, "5", 5)
    a.op2("v_and_b32", 6, "56", 2)
    a.op2("v_add_u32", 5, 5, 6)
    a.op2("v_and_b32", 6, "1", 2)
    a.op3("v_lshl_add_u32", 5, 6, "2", 5)
    a.op2("v_lshrrev_b32", 6, "4", 0)
    a.op3("v_lshl_add_u32", 5, 6, "12", 5)
    a.op2("v_lshrrev_b32", 6, "2", 0)
    a.op2("v_and_b32", 6, "3", 6)
    for r in (1, 2, 3):
        a.cmp("v_cmp_eq_u32", sr(S_MASK + 2 * (r - 1), 2), str(r), 6)
    a.op2("v_lshlrev_b32", 6, "2", 0)
    F0 = 16
    for r in range(4):
        a.op1("v_mov_b32", F0 + 12 + r, "0")
    poll_flags(6, 0, "0xff", 8)
    a.raw(f"s_mov_b32 s8, {AB}")
    a.raw(f"s_mov_b32 s9, {AB + 16384}")
    if opts.get("db", 0) & 2:
        a.raw("s_lshl_b32 s6, s4, 12")
        a.raw("s_lshl_b32 s7, s5, 9")
        a.raw("s_add_u32 s6, s6, s7")
        a.raw("s_add_u32 s62, s8, s6")
        doorbell("s62", 8, lanes="1", sleep=8)
    poll_masked([(12, 5, "s8", 0), (13, 5, "s9", 0)], 8, sleep=4, width=1)
    stamp(4)
    a.op2("v_add_f32", 12, 12, 13)
    a.allreduce("v_add_f32", [12], ["x16", "x32"], [13])
    round_bf16(12, 12)
    a.op2("v_lshlrev_b32", 10, "16", 10)
    a.op2("v_add_f32", 12, 12, 10)
    round_bf16(12, 12)
    if opts.get("db", 0) & 4:
        doorbell("s15", 8, lanes="1")
    poll_masked([(F0 + 4 * k, 7, "s15", k * 1024) for k in range(4)], 8, sleep=opts.get("sleep_f", 2), last_hi="0")
    stamp(5)
    for h in range(2):
        pk("v_pk_add_f32", F0 + 2 * h, F0 + 2 * h, F0 + 4 + 2 * h)
        pk("v_pk_add_f32", F0 + 8 + 2 * h, F0 + 8 + 2 * h, F0 + 12 + 2 * h)
    for h in range(2):
        pk("v_pk_add_f32", F0 + 2 * h, F0 + 2 * h, F0 + 8 + 2 * h)
    a.allreduce("v_add_f32", [F0 + r for r in range(4)], ["row_ror:4", "row_ror:8"], [])
    for r in (1, 2, 3):
        a.cndmask(F0, F0, F0 + r, sr(S_MASK + 2 * (r - 1), 2))
    a.allreduce("v_add_f32", [F0], ["x16", "x32"], [F0 + 4])
    round_bf16(F0, F0)
    a.op2("v_add_f32", F0, F0, 12)
    a.op2e("v_cvt_pk_bf16_f32", F0, F0, F0)
    if opts.get("padto"):
        a.label("L_pad")
        a.raw("s_memrealtime s[6:7]")
        a.raw("s_waitcnt lgkmcnt(0)")
        a.raw("s_sub_u32 s6, s6, s100")
        a.raw(f"s_cmp_lt_u32 s6, {opts['padto']}")
        a.raw("s_cbranch_scc1 L_pad")
    a.raw("s_mov_b64 exec, 0xffff")
    bstore(F0, 1, 4, R_D, op="buffer_store_short", flags=opts.get("outf", ""))
    a.raw("s_mov_b64 exec, -1")
    stamp(6)
    a.raw("s_branch L_exit")

    a.label("L_s3")
    WR3, WP3, C, T = 16, 48, 80, 96
    srd(R_D, P_WO, 4096 * 1024)

    def s3_flags():
        a.raw("s_cmp_lg_u32 s3, 0")
        a.raw("s_cbranch_scc1 L_s3_nf")
        poll_flags(123, 0, "1", 5, sleep=8)
        a.label("L_s3_nf")
        a.raw("s_barrier")
    if opts.get("slate", 0):
        s3_flags()
    a.op2("v_and_b32", 2, "8", 0)
    a.op3("v_lshl_add_u32", 2, 2, "3", 3)
    a.op2("v_lshlrev_b32", 2, "10", 2)
    a.op2("v_and_b32", 4, "7", 0)
    a.op3("v_lshl_add_u32", 2, 4, "4", 2)
    a.raw("s_lshl_b32 s6, s4, 2")
    a.raw("s_lshr_b32 s7, s3, 1")
    a.raw("s_add_u32 s6, s6, s7")
    a.raw("s_lshl_b32 s6, s6, 7")
    a.raw("s_and_b32 s7, s3, 1")
    a.raw("s_lshl_b32 s7, s7, 2")
    a.raw("s_add_u32 s6, s6, s7")
    a.raw("s_lshl_b32 s6, s6, 10")
    a.raw("s_lshl_b32 s7, s5, 7")
    a.raw("s_add_u32 s6, s6, s7")
    for i in range(8):
        bload(WR3 + 4 * i, 4, 2, R_D, soff="s6", flags=SF)
        if i < 7:
            a.raw("s_add_u32 s6, s6, 8192")
    a.op2("v_lshlrev_b32", 5, "11", 3)
    a.op2("v_and_b32", 6, "15", 0)
    a.op3("v_lshl_add_u32", 8, 6, "4", 5)
    a.raw("s_lshl_b32 s6, s3, 8")
    a.op3("v_lshl_add_u32", 9, 6, "3", "s6")
    a.op2("v_and_b32", 5, "32", 0)
    a.op3("v_lshl_add_u32", 9, 5, "2", 9)
    a.op2("v_and_b32", 5, "1", 3)
    a.op3("v_lshl_add_u32", 9, 5, "2", 9)
    a.op2("v_and_b32", 5, "1", 0)
    a.op3("v_lshl_add_u32", 5, 3, "1", 5)
    a.op3("v_lshl_add_u32", 10, 5, "4", "s6")
    a.op2("v_and_b32", 5, "2", 0)
    a.op3("v_lshl_add_u32", 10, 5, "6", 10)
    a.op3("v_lshl_add_u32", 5, 3, "3", 4)
    a.raw("s_lshl_b32 s7, s3, 9")
    a.op3("v_lshl_add_u32", 11, 5, "4", "s7")
    a.op2("v_and_b32", 5, "31", 0)
    a.op2("v_lshlrev_b32", 5, "4", 5)
    a.op2("v_and_b32", 6, "32", 0)
    a.op3("v_lshl_add_u32", 12, 6, "6", 5)
    a.op2("v_lshlrev_b32", 13, "3", 0)
    a.raw("s_lshl_b32 s7, s4, 15")
    a.raw("s_add_u32 s6, s6, s7")
    for k in range(4):
        a.raw(f"s_add_u32 s{8 + k}, s6, {(OX if opts.get('dual', 0) else OB) + k * 8192}")
    a.raw("s_lshl_b32 s6, s4, 3")
    a.raw("s_add_u32 s6, s6, s5")
    a.raw("s_lshl_b32 s12, s6, 9")
    a.raw(f"s_add_u32 s12, s12, {AB}")
    a.op2("v_lshrrev_b32", 5, "2", 0)
    a.op2("v_and_b32", 5, "3", 5)
    a.op1("v_mov_b32", 6, str(L_G + 128))
    for c in range(4):
        a.cmp("v_cmp_eq_u32", "vcc", str(c), 5)
        a.cndmask(116 + c, 6, 10, "vcc")
    for r in range(4):
        a.op1("v_mov_b32", 112 + r, "0")
    dsw(112, 4, 6, 0)
    a.op2("v_and_b32", 5, "8", 0)
    a.cmp("v_cmp_ne_u32", "s[14:15]", "0", 5)
    a.raw("s_mov_b32 s13, 0x0c0c0400")
    a.raw("s_waitcnt vmcnt(0)")
    stamp(1)
    perm8(WR3, WP3)
    if not opts.get("slate", 0):
        s3_flags()
    stamp(3)
    if opts.get("db", 0) & 1:
        a.raw("s_lshl_b32 s6, s5, 12")
        a.raw("s_add_u32 s62, s8, s6")
        doorbell("s62", 5, lanes="1")
    poll_masked([(C + 4 * k, 8, f"s{8 + k}", 0) for k in range(4)], 5, sleep=opts.get("sleep_o", 2),
                alt=((OB - OX) & 0xffffffff) if opts.get("dual", 0) else None)
    stamp(4)
    LK = T
    for k in range(4):
        a.op3("v_perm_b32", LK + 2 * k, C + 4 * k + 1, C + 4 * k, "s13")
        a.op3("v_perm_b32", LK + 2 * k + 1, C + 4 * k + 3, C + 4 * k + 2, "s13")
    for k in range(4):
        a.op3("v_perm_b32", LK + 2 * k, LK + 2 * k + 1, LK + 2 * k, f"s{S_SELLO}")
    MM = T + 18
    for b in range(2):
        a.op2("v_max_f32", MM + b, LK + 4 * b, LK + 4 * b + 2)
    a.allreduce("v_max_f32", [MM, MM + 1], ["x16", "x32"], [T + 1, T + 3])
    for k in range(4):
        a.op2("v_sub_f32", LK + 2 * k, LK + 2 * k, MM + (k >> 1))
    for k in range(4):
        a.op1("v_exp_f32", LK + 2 * k, LK + 2 * k, kind="trans")
    AC = T + 8
    SS = T + 16
    for b in range(2):
        for h in range(2):
            pkb("v_pk_mul_f32", AC + 4 * b + 2 * h, LK + 4 * b, C + 8 * b + 2 * h)
        a.op2("v_add_f32", SS + b, LK + 4 * b, LK + 4 * b + 2)
    for b in range(2):
        for h in range(2):
            pkb("v_pk_fma_f32", AC + 4 * b + 2 * h, LK + 4 * b + 2, C + 8 * b + 4 + 2 * h, AC + 4 * b + 2 * h)
    a.swap32(SS, SS + 1)
    for r in range(4):
        a.swap32(AC + r, AC + 4 + r)
    a.op2("v_add_f32", SS, SS, SS + 1)
    pk("v_pk_add_f32", AC, AC, AC + 4)
    pk("v_pk_add_f32", AC + 2, AC + 2, AC + 6)
    a.op1("v_mov_b32", SS + 1, SS)
    a.swap16(AC, AC + 2)
    a.swap16(AC + 1, AC + 3)
    a.swap16(SS, SS + 1)
    a.op2("v_add_f32", SS, SS, SS + 1)
    pk("v_pk_add_f32", AC, AC, AC + 2)
    a.op1("v_rcp_f32", SS, SS, kind="trans")
    pkb("v_pk_mul_f32", AC, SS, AC)
    a.op2e("v_cvt_pk_bf16_f32", AC, AC, AC + 1)
    dsw(AC, 1, 9, L_ON)
    a.raw("s_waitcnt lgkmcnt(0)")
    AM, D0 = 16, 32
    for c in range(4):
        dsr(AM + 4 * c, 4, 116 + c, 0)
    for c in range(4):
        a.raw(f"s_waitcnt lgkmcnt({3 - c})")
        for t in range(2):
            a.mfma16(D0 + 4 * t, AM + 4 * c, WP3 + 4 * (2 * c + t), None if c == 0 else D0 + 4 * t)
    for b in range(2):
        for t in range(2):
            a.cndmask(T + 2 * b + t, D0 + 4 * t + 2 * b, D0 + 4 * t + 2 * b + 1, "s[14:15]")
    a.allreduce("v_add_f32", [T, T + 1, T + 2, T + 3], ["row_ror:8"], [])
    a.raw("s_mov_b32 exec_lo, 0x00ff00ff")
    a.raw("s_mov_b32 exec_hi, 0x00ff00ff")
    dsw(T, 4, 11, L_P3)
    a.raw("s_mov_b64 exec, -1")
    a.raw("s_waitcnt lgkmcnt(0)")
    a.raw("s_barrier")
    a.raw("s_cmp_lg_u32 s3, 2")
    a.raw("s_cbranch_scc1 L_exit")
    for w in range(4):
        dsr(T + 4 * w, 4, 12, L_P3 + 512 * w)
    a.raw("s_waitcnt lgkmcnt(0)")
    for h in range(2):
        pk("v_pk_add_f32", T + 2 * h, T + 2 * h, T + 4 + 2 * h)
        pk("v_pk_add_f32", T + 8 + 2 * h, T + 8 + 2 * h, T + 12 + 2 * h)
    for h in range(2):
        pk("v_pk_add_f32", T + 2 * h, T + 2 * h, T + 8 + 2 * h)
    a.swap32(T, T + 2)
    a.swap32(T + 1, T + 3)
    pk("v_pk_add_f32", T, T, T + 2)
    for r in range(2):
        a.op2("v_min_u32", T + r, "-2", T + r)
    bstore(T, 2, 13, R_WS, soff="s12", flags="sc1")
    stamp(2)
    a.raw("s_branch L_exit")

    a.label("L_ffn")
    a.op2("v_lshrrev_b32", 2, "3", 0)
    a.op2("v_and_b32", 4, "3", 0)
    a.op3("v_lshl_add_u32", 2, 2, "2", 4)
    a.op2("v_lshlrev_b32", 2, "4", 2)
    a.op2("v_and_b32", 5, "4", 0)
    a.op3("v_lshl_add_u32", 120, 5, "8", 2)
    a.op3("v_lshl_add_u32", 2, 3, "2", 4)
    a.raw("s_lshl_b32 s6, s3, 7")
    a.op3("v_lshl_add_u32", 121, 2, "3", "s6")
    a.op3("v_lshl_add_u32", 121, 5, "8", 121)
    a.raw("s_lshl_b32 s6, s3, 8")
    a.op3("v_lshl_add_u32", 122, 2, "4", "s6")
    n32_masks(2)
    n32_out_addr(119, 2)
    W1R, W1P, W2R, W2P, C, T = 20, 36, 128, 160, 96, 64
    a.raw("s_mul_i32 s6, s4, 7")
    a.raw("s_add_u32 s6, s6, s5")
    a.raw(f"s_sub_u32 s{S_PHI}, s6, 8")
    srd(R_D, P_W1, 512 * 3584)
    srd(R_B, P_W2, 1792 * 1024)

    def ffn_flags():
        a.op2("v_lshlrev_b32", 6, "2", 0)
        a.raw("s_cmp_lg_u32 s3, 0")
        a.raw("s_cbranch_scc1 L_f_nf")
        poll_flags(6, 0, "0xff", 5, sleep=16)
        a.label("L_f_nf")
        a.raw("s_barrier")
    if opts.get("flate", 0) == 1:
        ffn_flags()
    if opts.get("flate", 0) == 3:
        a.raw("s_cmp_lg_u32 s3, 0")
        a.raw("s_cbranch_scc1 L_f_nf3")
        poll_flags(123, 0, "1", 5, sleep=8)
        a.raw("s_lshl_b32 s62, s14, 11")
        a.raw(f"s_add_u32 s62, s62, {OB}")
        doorbell("s62", 5, lanes="1", sleep=8)
        a.label("L_f_nf3")
        a.raw("s_barrier")
    if opts.get("flate", 0) == 2:
        a.raw("s_cmp_lg_u32 s3, 0")
        a.raw("s_cbranch_scc1 L_f_nf0")
        poll_flags(123, 0, "1", 5, sleep=8)
        a.label("L_f_nf0")
        a.raw("s_barrier")
    a.op2("v_and_b32", 2, "12", 0)
    a.op2("v_lshlrev_b32", 2, "2", 2)
    a.op3("v_lshl_add_u32", 2, 3, "1", 2)
    a.op2("v_mul_u32_u24", 2, "3584", 2)
    a.op2("v_and_b32", 4, "3", 0)
    a.op3("v_lshl_add_u32", 2, 4, "4", 2)
    a.raw(f"s_mul_i32 s6, s3, {64 * 3584}")
    a.raw(f"s_lshl_b32 s7, s{S_PHI}, 6")
    a.raw("s_add_u32 s6, s6, s7")
    for i in range(4):
        a.raw(f"s_add_u32 s7, s6, {((i >> 1) * 8 + (i & 1)) * 3584}")
        bload(W1R + 4 * i, 4, 2, R_D, soff="s7", flags=SF)
    a.raw("s_cmp_ge_u32 s3, 4")
    a.raw("s_cbranch_scc1 L_f_n2")
    a.op2("v_lshlrev_b32", 2, "13", 3)
    a.op2("v_and_b32", 4, "15", 0)
    a.op3("v_lshl_add_u32", 2, 4, "4", 2)
    a.raw(f"s_lshl_b32 s6, s{S_PHI}, 15")
    a.raw("s_lshl_b32 s7, s3, 8")
    a.raw("s_add_u32 s6, s6, s7")
    a.raw("s_add_u32 s7, s6, 4096")
    for i in range(8):
        bload(W2R + 4 * i, 4, 2, R_B, soff="s6" if i < 4 else "s7", imm=(i & 3) * 1024, flags=SF)
    a.label("L_f_n2")
    a.op2("v_and_b32", 4, "31", 0)
    a.op2("v_and_b32", 5, "32", 0)
    a.op2("v_lshlrev_b32", 5, "7", 5)
    a.op3("v_lshl_add_u32", 8, 4, "4", 5)
    a.op2("v_and_b32", 5, "15", 0)
    a.raw("s_lshl_b32 s6, s3, 7")
    a.op3("v_lshl_add_u32", 9, 5, "3", "s6")
    a.op2("v_and_b32", 5, "16", 0)
    a.op3("v_lshl_add_u32", 9, 5, "6", 9)
    a.op2("v_and_b32", 6, "3", 0)
    a.op3("v_lshl_add_u32", 6, 6, "5", "s6")
    a.op3("v_lshl_add_u32", 6, 5, "6", 6)
    a.op2("v_and_b32", 5, "12", 0)
    a.op2("v_add_u32", 6, 6, 5)
    a.op2("v_and_b32", 5, "32", 0)
    a.op2("v_lshrrev_b32", 5, "1", 5)
    a.op2("v_add_u32", 6, 6, 5)
    a.op2("v_lshrrev_b32", 5, "2", 5)
    a.op2("v_add_u32", 9, 9, 5)
    bload(10, 1, 6, R_A)
    a.raw("s_lshl_b32 s6, s3, 9")
    for k in range(4):
        a.raw(f"s_add_u32 s{8 + k}, s6, {AB + k * 8192}")
    a.op2("v_and_b32", 5, "1", 0)
    a.op2("v_lshlrev_b32", 5, "6", 5)
    a.op3("v_lshl_add_u32", 5, 3, "4", 5)
    a.op2("v_lshrrev_b32", 6, "1", 0)
    a.op2("v_and_b32", 6, "7", 6)
    a.op1("v_mov_b32", 4, "0x80")
    for c in range(8):
        a.cmp("v_cmp_eq_u32", "vcc", str(c), 6)
        a.cndmask(192 + c, 4, 5, "vcc")
    for r in range(4):
        a.op1("v_mov_b32", 12 + r, "0")
    dsw(12, 4, 4, L_G)
    a.op2("v_and_b32", 5, "15", 0)
    a.op2("v_lshrrev_b32", 5, "2", 5)
    a.op3("v_lshl_add_u32", 5, 3, "2", 5)
    a.op2("v_lshlrev_b32", 5, "12", 5)
    a.op2("v_and_b32", 6, "3", 0)
    a.op3("v_lshl_add_u32", 200, 6, "4", 5)
    a.raw("s_lshl_b32 s12, s3, 16")
    a.raw(f"s_lshl_b32 s6, s{S_PHI}, 6")
    a.raw("s_add_u32 s12, s12, s6")
    a.raw(f"s_add_u32 s12, s12, {FB}")
    a.op2("v_lshlrev_b32", 6, "2", 0)
    a.raw("s_waitcnt vmcnt(0)")
    stamp(1)
    perm4(W1R, W1P)
    perm8(W2R, W2P)
    unpack(12, 10, 1)
    if opts.get("flate", 0) != 1:
        ffn_flags()
    stamp(3)
    if opts.get("db", 0) & 2:
        a.raw("s_lshl_b32 s6, s4, 12")
        a.raw("s_add_u32 s62, s8, s6")
        doorbell("s62", 5, lanes="1")
    poll_masked([(C + 4 * k, 8, f"s{8 + k}", 0) for k in range(4)], 4, sleep=opts.get("sleep_a", 2))
    stamp(5)
    pk("v_pk_add_f32", C, C, C + 4)
    pk("v_pk_add_f32", C + 2, C + 2, C + 6)
    pk("v_pk_add_f32", C + 8, C + 8, C + 12)
    pk("v_pk_add_f32", C + 10, C + 10, C + 14)
    pk("v_pk_add_f32", C, C, C + 8)
    pk("v_pk_add_f32", C + 2, C + 2, C + 10)
    a.swap32(C, C + 2)
    a.swap32(C + 1, C + 3)
    pk("v_pk_add_f32", C, C, C + 2)
    a.op2e("v_cvt_pk_bf16_f32", C + 4, C, C + 1)
    unpack(C, C + 4, 1)
    pk("v_pk_add_f32", C, C, 12)
    a.op2e("v_cvt_pk_bf16_f32", C + 4, C, C + 1)
    dsw(C + 4, 1, 9, L_H)
    a.raw("s_waitcnt lgkmcnt(0)")
    a.raw("s_barrier")
    for s in range(2):
        dsr(XS + 4 * s, 4, 120, L_H + 512 * s)
    dsr(XA, 2, 121, L_H)
    a.raw("s_waitcnt lgkmcnt(0)")
    ln_norm4(XS, XA, 64, 80)
    n32_core(XA, W1P, 64, 80, 122)
    a.raw("s_waitcnt lgkmcnt(0)")
    a.raw("s_barrier")
    a.raw("s_cmp_ge_u32 s3, 4")
    a.raw("s_cbranch_scc1 L_exit")
    n32_final(7, 80)
    round_bf16(80, 80)
    a.op2("v_mul_f32", 81, "0xbfb8aa3b", 80)
    a.op1("v_exp_f32", 81, 81, kind="trans")
    a.op2("v_add_f32", 81, "1.0", 81)
    a.op1("v_rcp_f32", 81, 81, kind="trans")
    a.op2("v_mul_f32", 80, 80, 81)
    a.op2e("v_cvt_pk_bf16_f32", 80, 80, 80)
    dsw(80, 1, 119, L_G, op="ds_write_b16")
    a.raw("s_waitcnt lgkmcnt(0)")
    stamp(4)
    for c in range(8):
        dsr(84 + 4 * c, 4, 192 + c, L_G)
    for c in range(8):
        a.raw(f"s_waitcnt lgkmcnt({7 - c})")
        a.mfma16(64, 84 + 4 * c, W2P + 4 * c, None if c == 0 else 64)
    for r in range(4):
        a.op2("v_min_u32", 64 + r, "-2", 64 + r)
    bstore(64, 4, 200, R_WS, soff="s12", flags="sc1")
    stamp(6)
    a.label("L_exit")
    if opts.get("probe"):
        a.raw("s_cmp_lg_u32 s97, 1")
        a.raw("s_cbranch_scc1 L_end")
        a.raw(f"s_cmp_lt_u32 s2, {opts.get('plo', 0)}")
        a.raw("s_cbranch_scc1 L_end")
        a.raw(f"s_cmp_ge_u32 s2, {opts.get('phi', 256)}")
        a.raw("s_cbranch_scc1 L_end")
        if "pg" in opts:
            a.raw(f"s_cmp_lg_u32 s4, {opts['pg']}")
            a.raw("s_cbranch_scc1 L_end")
        a.raw("s_waitcnt lgkmcnt(0)")
        a.label("L_prb")
        a.raw("s_sleep 8")
        a.raw("s_memrealtime s[6:7]")
        a.raw("s_waitcnt lgkmcnt(0)")
        a.raw("s_sub_u32 s6, s6, s98")
        a.raw("s_cmp_lt_u32 s6, 2000")
        a.raw("s_cbranch_scc1 L_prb")
    dump_stamps()
    a.label("L_end")
    a.raw("s_endpgm")

    if opts.get("order", 0) == 1:
        L, m = a.lines, marks
        pro, t0, a0, rest = L[:m["tail0"]], L[m["tail0"]:m["att0"]], L[m["att0"]:m["tail1"]], L[m["tail1"]:]
        pro[-1] = "    s_cbranch_scc1 L_tail0"
        a.lines = pro + a0 + ["L_tail0:"] + t0 + rest

    hdr = open(f"cdna_kernels/{NAME}.s.ref").read().split("; Override launch")[0]
    out = hdr
    out += "; Override launch geometry by editing the next line (default: block=256,\n"
    out += "; grid=ceil(out_elems/256), lds=0). Harness parses it; keep it on one line.\n"
    out += f"; @launch grid=(256,1,1) block=(512,1,1) lds={LDS_BYTES}\n"
    out += '.amdgcn_target "amdgcn-amd-amdhsa--gfx950"\n.text\n'
    out += f".globl {NAME}_kernel\n.p2align 8\n.type {NAME}_kernel,@function\n{NAME}_kernel:\n"
    out += a.text()
    out += '.section .rodata,"a"\n.p2align 6\n'
    out += f".amdhsa_kernel {NAME}_kernel\n"
    out += "  .amdhsa_next_free_vgpr 208\n  .amdhsa_next_free_sgpr 102\n  .amdhsa_accum_offset 208\n"
    out += "  .amdhsa_group_segment_fixed_size 0\n  .amdhsa_kernarg_size 88\n  .amdhsa_user_sgpr_count 2\n"
    out += "  .amdhsa_user_sgpr_kernarg_segment_ptr 1\n  .amdhsa_system_sgpr_workgroup_id_x 1\n"
    out += "  .amdhsa_float_denorm_mode_32 3\n"
    out += ".end_amdhsa_kernel\n"
    return out


if __name__ == "__main__":
    debug = "--debug" in sys.argv
    path = [x for x in sys.argv[1:] if not x.startswith("--")]
    path = path[0] if path else f"cdna_kernels/{NAME}.s"
    opts = {}
    for x in sys.argv[1:]:
        if x.startswith("--opt="):
            k, v = x[6:].split(":")
            opts[k] = int(v) if v.lstrip("-").isdigit() else v
    open(path, "w").write(gen(debug, opts))
    print("wrote", path)
```

```python
import sys
from asmlib import Asm, vr, sr

NAME = "sequential_preLN__sliding_block_cached__dense_activation_silu__decode"

QB = 0
OB = 64 * 1024
AB = 384 * 1024
FB = 416 * 1024
OX = 704 * 1024
WS_BYTES = 1 << 20
TS_BASE = WS_BYTES
WS_SIZE_DBG = WS_BYTES + 256 * 8 * 128

L_Q = 0
L_ST = 1024
L_K = 2048
L_ON = 0
L_H = 2048
L_G = 4096
L_P3 = 4352
LDS_BYTES = 2048 + 65536

LOG2E = "0x3fb8aa3b"
SCALE = "0x3db504f3"
INV512 = "0x3b000000"
EPS = "0x3727c5ac"
POLL_MAX = 1 << 15

S_WG, S_WAVE, S_G, S_IDX = 2, 3, 4, 5
P_X, P_K, P_V, P_WQ, P_WO, P_W1, P_W2, P_OUT, P_DBG, P_WS = 16, 18, 20, 22, 24, 28, 30, 32, 34, 36
S_CNT = 38
S_PHI = 39
R_WS, R_A, R_B, R_C, R_D = 40, 44, 48, 52, 56
S_SELLO, S_SELHI = 60, 61
S_PM = 64
S_MASK = 80
S_TS = 88


def gen(debug=False, opts=None):
    opts = opts or {}
    SF = opts.get("stream_flags", "nt")
    a = Asm()
    marks = {}

    def mark(name):
        marks[name] = len(a.lines)

    site = [0]

    def stamp(k):
        import inspect
        site[0] += 1
        if opts.get("listsites"):
            print("site", site[0], "line", inspect.currentframe().f_back.f_lineno, "stamp", k)
        if opts.get("probe") == site[0]:
            a.raw("s_memrealtime s[98:99]")
            a.raw("s_mov_b32 s97, 1")
        if debug:
            a.raw(f"s_memrealtime {sr(S_TS + 2 * k, 2)}")

    def dump_stamps():
        if not debug:
            return
        a.raw("s_waitcnt vmcnt(0) lgkmcnt(0)")
        a.raw("s_mov_b64 exec, 1")
        a.raw(f"s_lshl_b32 s6, s{S_WG}, 3")
        a.raw(f"s_add_u32 s6, s6, s{S_WAVE}")
        a.raw("s_lshl_b32 s6, s6, 7")
        a.raw(f"s_add_u32 s6, s6, {TS_BASE}")
        a.op1("v_mov_b32", 1, "s6")
        for k in range(7):
            a.op1("v_mov_b32", 2, f"s{S_TS + 2 * k}")
            a.op1("v_mov_b32", 3, f"s{S_TS + 2 * k + 1}")
            a.mem(f"buffer_store_dwordx2 v[2:3], v1, {sr(R_WS, 4)}, 0 offen offset:{8 * k}", src=[1, 2, 3])
            a.nop(2)

    def srd(dst, ptr, size):
        a.raw(f"s_mov_b32 s{dst}, s{ptr}")
        a.raw(f"s_and_b32 s{dst + 1}, s{ptr + 1}, 0xffff")
        a.raw(f"s_mov_b32 s{dst + 2}, {size}")
        a.raw(f"s_mov_b32 s{dst + 3}, 0x20000")

    def srd_ws():
        srd(R_WS, P_WS, WS_SIZE_DBG if debug else WS_BYTES)

    def bload(d, n, off, srdb, soff="0", imm=0, flags=""):
        op = {1: "buffer_load_dword", 2: "buffer_load_dwordx2", 4: "buffer_load_dwordx4"}[n]
        t = f"{op} {vr(d, n)}, v{off}, {sr(srdb, 4)}, {soff} offen"
        if imm:
            t += f" offset:{imm}"
        if flags:
            t += " " + flags
        a.mem(t, src=[off], dst=list(range(d, d + n)))

    def bstore(s, n, off, srdb, soff="0", imm=0, flags="", op=None):
        op = op or {1: "buffer_store_dword", 2: "buffer_store_dwordx2", 4: "buffer_store_dwordx4"}[n]
        t = f"{op} {vr(s, n)}, v{off}, {sr(srdb, 4)}, {soff} offen"
        if imm:
            t += f" offset:{imm}"
        if flags:
            t += " " + flags
        regs = list(range(s, s + n))
        a.mem(t, src=[off] + regs, wide_store=regs if n == 4 else ())

    def dsr(d, n, addr, off):
        op = {1: "ds_read_b32", 2: "ds_read_b64", 4: "ds_read_b128"}[n]
        a.mem(f"{op} {vr(d, n)}, v{addr} offset:{off}", src=[addr], dst=list(range(d, d + n)))

    def dsw(s, n, addr, off, op=None):
        op = op or {1: "ds_write_b32", 2: "ds_write_b64", 4: "ds_write_b128"}[n]
        a.mem(f"{op} v{addr}, {vr(s, n)} offset:{off}", src=[addr] + list(range(s, s + n)))

    def poll_flags(voff, imm, lanes, tmp, pre_loaded=False, sleep=4):
        lp, dn, ck = a.newlabel("fp"), a.newlabel("fd"), a.newlabel("fc")
        a.raw(f"s_mov_b32 s{S_CNT}, {POLL_MAX}")
        a.raw(f"s_mov_b64 exec, {lanes}")
        if pre_loaded:
            a.raw(f"s_branch {ck}")
        a.label(lp)
        bload(tmp, 1, voff, R_C, imm=imm, flags="sc1")
        a.raw("s_waitcnt vmcnt(0)")
        a.label(ck)
        a.valu(f"v_cmp_ne_u32_e32 vcc, 1, v{tmp}", src=[tmp], sdst=["vcc"])
        a.raw(f"s_cbranch_vccz {dn}")
        a.raw(f"s_sleep {sleep}")
        a.raw(f"s_sub_u32 s{S_CNT}, s{S_CNT}, 1")
        a.raw(f"s_cmp_eq_u32 s{S_CNT}, 0")
        a.raw(f"s_cbranch_scc0 {lp}")
        a.label(dn)
        a.raw("s_mov_b64 exec, -1")

    def poll_masked(loads, tmp, sleep=2, width=4, last_hi=None, alt=None):
        n = len(loads)
        lp, dn = a.newlabel("pl"), a.newlabel("pd")
        a.raw(f"s_mov_b32 s{S_CNT}, {POLL_MAX}")
        for k, (d, vo, so, im) in enumerate(loads):
            if last_hi is not None and k == n - 1:
                a.raw(f"s_mov_b32 exec_hi, {last_hi}")
            bload(d, width, vo, R_WS, soff=so, imm=im, flags="sc1")
        if last_hi is not None:
            a.raw("s_mov_b64 exec, -1")
        a.label(lp)
        a.raw("s_waitcnt vmcnt(0)")
        for k, (d, vo, so, im) in enumerate(loads):
            t = tmp + (k & 1)
            if width == 4:
                a.op3("v_max3_u32", t, d, d + 1, d + 2)
                a.op2("v_max_u32", t, t, d + 3)
            else:
                t = d
            a.cmp("v_cmp_eq_u32", sr(S_PM + 2 * k, 2), "-1", t)
        a.nop(1)
        if n == 1:
            a.raw(f"s_cmp_eq_u64 {sr(S_PM, 2)}, 0")
        else:
            a.raw(f"s_or_b64 s[6:7], {sr(S_PM, 2)}, {sr(S_PM + 2, 2)}")
            for k in range(2, n):
                a.raw(f"s_or_b64 s[6:7], s[6:7], {sr(S_PM + 2 * k, 2)}")
            a.raw("s_cmp_eq_u64 s[6:7], 0")
        a.raw(f"s_cbranch_scc1 {dn}")
        if sleep:
            a.raw(f"s_sleep {sleep}")
        if alt is not None:
            a.raw(f"s_and_b32 s6, s{S_CNT}, {opts.get('altm', 3)}")
            a.raw("s_cmp_eq_u32 s6, 1")
            a.raw(f"s_cselect_b32 s7, {alt}, 0")
            a.raw("s_cmp_eq_u32 s6, 0")
            a.raw(f"s_cselect_b32 s7, {-alt & 0xffffffff:#x}, s7")
            a.raw(f"s_cmp_eq_u32 s{S_CNT}, {POLL_MAX}")
            a.raw("s_cselect_b32 s7, 0, s7")
            for so_ in dict.fromkeys(l[2] for l in loads):
                a.raw(f"s_add_u32 {so_}, {so_}, s7")
        for k, (d, vo, so, im) in enumerate(loads):
            sk = a.newlabel("sk")
            a.raw(f"s_mov_b64 exec, {sr(S_PM + 2 * k, 2)}")
            a.raw(f"s_cbranch_execz {sk}")
            bload(d, width, vo, R_WS, soff=so, imm=im, flags="sc1")
            a.label(sk)
        a.raw("s_mov_b64 exec, -1")
        a.raw(f"s_sub_u32 s{S_CNT}, s{S_CNT}, 1")
        a.raw(f"s_cmp_eq_u32 s{S_CNT}, 0")
        a.raw(f"s_cbranch_scc0 {lp}")
        a.raw("s_waitcnt vmcnt(0)")
        a.label(dn)

    def doorbell(soff, tmp, lanes="15", sleep=2):
        lp, dn = a.newlabel("db"), a.newlabel("dd")
        a.raw(f"s_mov_b32 s{S_CNT}, {POLL_MAX}")
        a.raw(f"s_mov_b64 exec, {lanes}")
        a.label(lp)
        bload(tmp, 1, 7, R_WS, soff=soff, flags="sc1")
        a.raw("s_waitcnt vmcnt(0)")
        a.valu(f"v_cmp_eq_u32_e32 vcc, -1, v{tmp}", src=[tmp], sdst=["vcc"])
        a.raw(f"s_cbranch_vccz {dn}")
        a.raw(f"s_sleep {sleep}")
        a.raw(f"s_sub_u32 s{S_CNT}, s{S_CNT}, 1")
        a.raw(f"s_cmp_eq_u32 s{S_CNT}, 0")
        a.raw(f"s_cbranch_scc0 {lp}")
        a.label(dn)
        a.raw("s_mov_b64 exec, -1")

    def perm8(raw, out, xs=(0, 1, 2, 3)):
        for x in xs:
            for j in range(4):
                lo, hi = raw + (2 * x) * 4 + j, raw + (2 * x + 1) * 4 + j
                a.op3("v_perm_b32", out + (2 * j) * 4 + x, hi, lo, f"s{S_SELLO}")
                a.op3("v_perm_b32", out + (2 * j + 1) * 4 + x, hi, lo, f"s{S_SELHI}")

    def perm4(raw, out):
        for j in range(4):
            for x in range(2):
                lo, hi = raw + (2 * x) * 4 + j, raw + (2 * x + 1) * 4 + j
                a.op3("v_perm_b32", out + (2 * j) * 2 + x, hi, lo, f"s{S_SELLO}")
                a.op3("v_perm_b32", out + (2 * j + 1) * 2 + x, hi, lo, f"s{S_SELHI}")

    def round_bf16(d, s):
        a.op2e("v_cvt_pk_bf16_f32", d, s, s)
        a.op2("v_lshlrev_b32", d, "16", d)

    def unpack(V, R, n):
        for d in range(n):
            a.op2("v_lshlrev_b32", V + 2 * d, "16", R + d)
            a.op2("v_and_b32", V + 2 * d + 1, "0xffff0000", R + d)

    LN_STEPS = ["quad_perm:[1,0,3,2]", "quad_perm:[2,3,0,1]", "row_ror:8", "x16", "x32"]

    def pk(op, d, x, y, z=None):
        regs = [x, x + 1, y, y + 1] + ([z, z + 1] if z is not None else [])
        t = f"{op} {vr(d, 2)}, {vr(x, 2)}, {vr(y, 2)}" + (f", {vr(z, 2)}" if z is not None else "")
        a.valu(t, dst=[d, d + 1], src=regs)

    def pkb(op, d, e, x, z=None):
        t = f"{op} {vr(d, 2)}, {vr(e, 2)}, {vr(x, 2)}" + (f", {vr(z, 2)}" if z is not None else "")
        t += " op_sel_hi:[0,1,1]" if z is not None else " op_sel_hi:[0,1]"
        a.valu(t, dst=[d, d + 1], src=[e, x, x + 1] + ([z, z + 1] if z is not None else []))

    def ln_norm4(R, XA, V, T, nA=2, steps=None):
        S, Q, MN, t0, M, RC = T, T + 2, T + 4, T + 6, T + 8, T + 6
        slow, join = a.newlabel("lnslow"), a.newlabel("lnjoin")
        if opts.get("fastln", 1):
            a.raw("s_mov_b32 s6, 0x3f803f80")

            def dot(d, x, y, c):
                yt = f"v{y}" if isinstance(y, int) else y
                ct = f"v{c}" if isinstance(c, int) else c
                a.valu(f"v_dot2_f32_bf16 v{d}, v{x}, {yt}, {ct}", dst=[d], src=[x])
            for d in range(0, 8, 2):
                dot(S, R + d, "s6", "0" if d == 0 else S)
                dot(Q, R + d, R + d, "0" if d == 0 else Q)
                dot(S + 1, R + d + 1, "s6", "0" if d == 0 else S + 1)
                dot(Q + 1, R + d + 1, R + d + 1, "0" if d == 0 else Q + 1)
            a.nop(3)
            a.op2("v_add_f32", S, S, S + 1)
            a.op2("v_add_f32", Q, Q, Q + 1)
            a.allreduce("v_add_f32", [S, Q], steps or LN_STEPS, [t0, t0 + 1])
            a.op2("v_mul_f32", MN, "0xbb000000", S)
            a.op2("v_mul_f32", t0, MN, S)
            a.op2("v_add_f32", Q, Q, t0)
            a.valu(f"v_cmp_nle_f32_e64 vcc, -v{t0}, v{Q}", src=[t0, Q], sdst=["vcc"])
            a.raw(f"s_cbranch_vccz {join}")
        unpack(V, R, 8)
        pk("v_pk_add_f32", S, V, V + 2)
        pk("v_pk_add_f32", Q, V + 4, V + 6)
        pk("v_pk_add_f32", S, S, V + 8)
        pk("v_pk_add_f32", Q, Q, V + 10)
        pk("v_pk_add_f32", S, S, V + 12)
        pk("v_pk_add_f32", Q, Q, V + 14)
        pk("v_pk_add_f32", S, S, Q)
        a.op2("v_add_f32", S, S, S + 1)
        a.allreduce("v_add_f32", [S], steps or LN_STEPS, [t0])
        a.op2("v_mul_f32", MN, "0xbb000000", S)
        for i in range(0, 16, 2):
            pkb("v_pk_add_f32", V + i, MN, V + i)
        pk("v_pk_mul_f32", Q, V, V)
        pk("v_pk_mul_f32", S, V + 2, V + 2)
        for i in range(4, 16, 4):
            pk("v_pk_fma_f32", Q, V + i, V + i, Q)
            pk("v_pk_fma_f32", S, V + i + 2, V + i + 2, S)
        pk("v_pk_add_f32", Q, Q, S)
        a.op2("v_add_f32", Q, Q, Q + 1)
        a.allreduce("v_add_f32", [Q], steps or LN_STEPS, [t0])
        a.label(join)
        a.fence(4)
        round_bf16(M, MN)
        unpack(V, XA, nA)
        a.op2("v_mul_f32", Q, INV512, Q)
        round_bf16(Q, Q)
        a.op2("v_add_f32", Q, EPS, Q)
        round_bf16(Q, Q)
        a.op1("v_sqrt_f32", Q, Q, kind="trans")
        for i in range(0, 2 * nA, 2):
            pkb("v_pk_add_f32", V + i, M, V + i)
        round_bf16(Q, Q)
        a.op1("v_rcp_f32", RC, Q, kind="trans")
        for d in range(nA):
            a.op2e("v_cvt_pk_bf16_f32", XA + d, V + 2 * d, V + 2 * d + 1)
        unpack(V, XA, nA)
        for i in range(0, 2 * nA, 2):
            pkb("v_pk_mul_f32", V + i, RC, V + i)
        for d in range(nA):
            a.op2e("v_cvt_pk_bf16_f32", XA + d, V + 2 * d, V + 2 * d + 1)

    def n32_masks(t):
        a.op2("v_lshrrev_b32", t, "2", 0)
        a.op2("v_and_b32", t, "3", t)
        for r in (1, 2, 3):
            a.cmp("v_cmp_eq_u32", sr(S_MASK + 2 * (r - 1), 2), str(r), t)
        a.op2("v_and_b32", t, "8", 0)
        a.cmp("v_cmp_ne_u32", sr(S_MASK + 6, 2), "0", t)

    def n32_core(PA, WP, ACC, T, P3ADDR):
        for x in range(2):
            a.cndmask(T + x, PA + x, "0", sr(S_MASK + 6, 2))
            a.cndmask(T + 2 + x, "0", PA + x, sr(S_MASK + 6, 2))
        for cc in range(2):
            for t in range(4):
                a.mfma16k16(ACC + 4 * t, T + 2 * cc, WP + 2 * (2 * t + cc), None if cc == 0 else ACC + 4 * t)
        for t in range(4):
            a.cndmask(T + 4 + t, ACC + 4 * t, ACC + 4 * t + 1, sr(S_MASK, 2))
            a.cndmask(T + 4 + t, T + 4 + t, ACC + 4 * t + 2, sr(S_MASK + 2, 2))
            a.cndmask(T + 4 + t, T + 4 + t, ACC + 4 * t + 3, sr(S_MASK + 4, 2))
        a.allreduce("v_add_f32", [T + 4 + t for t in range(4)], ["row_ror:4", "row_ror:8"], [])
        a.raw("s_mov_b32 exec_lo, 0x000f000f")
        a.raw("s_mov_b32 exec_hi, 0x000f000f")
        dsw(T + 4, 4, P3ADDR, L_P3)
        a.raw("s_mov_b64 exec, -1")

    def n32_final(L16, T):
        dsr(T, 4, L16, L_P3)
        dsr(T + 4, 4, L16, L_P3 + 1024)
        a.raw("s_waitcnt lgkmcnt(0)")
        pk("v_pk_add_f32", T, T, T + 4)
        pk("v_pk_add_f32", T + 2, T + 2, T + 6)
        a.swap32(T, T + 1)
        a.swap32(T + 2, T + 3)
        a.op2("v_add_f32", T, T, T + 1)
        a.op2("v_add_f32", T + 2, T + 2, T + 3)
        a.swap16(T, T + 2)
        a.op2("v_add_f32", T, T, T + 2)

    def n32_out_addr(d, t):
        a.op2("v_and_b32", d, "3", 0)
        a.op2("v_lshlrev_b32", d, "4", d)
        a.op2("v_and_b32", t, "4", 0)
        a.op3("v_lshl_add_u32", d, t, "4", d)
        a.op2("v_and_b32", t, "8", 0)
        a.op2("v_lshrrev_b32", t, "2", t)
        a.op2("v_add_u32", d, d, t)
        a.op2("v_and_b32", t, "16", 0)
        a.op2("v_lshrrev_b32", t, "1", t)
        a.op2("v_add_u32", d, d, t)
        a.op2("v_and_b32", t, "32", 0)
        a.op2("v_lshrrev_b32", t, "3", t)
        a.op2("v_add_u32", d, d, t)

    a.raw("s_cmp_ge_u32 s2, 256")
    a.raw("s_cbranch_scc1 L_end")
    a.raw("s_load_dwordx16 s[16:31], s[0:1], 0")
    a.raw("s_load_dwordx4 s[32:35], s[0:1], 64")
    a.raw("s_load_dwordx2 s[36:37], s[0:1], 80")
    if opts.get("probe"):
        a.raw("s_mov_b32 s97, 0")
    stamp(0)
    if opts.get("padto"):
        a.raw("s_memrealtime s[100:101]")
    a.op2("v_lshrrev_b32", 1, "6", 0)
    a.op2("v_and_b32", 0, "63", 0)
    a.op2("v_lshrrev_b32", 3, "4", 0)
    a.valu("v_readfirstlane_b32 s3, v1", src=[1], sdst=["s3"])
    a.raw("s_and_b32 s4, s2, 7")
    a.raw("s_lshr_b32 s5, s2, 4")
    a.op2("v_lshlrev_b32", 7, "4", 0)
    a.raw("s_bitcmp1_b32 s2, 3")
    a.raw("s_cbranch_scc0 L_att")

    mark("tail0")
    XS, XA = 8, 16
    WR1, WP1 = 24, 56
    a.raw("s_lshl_b32 s14, s4, 4")
    a.raw("s_add_u32 s14, s14, s5")
    a.raw("s_cmp_ge_u32 s3, 4")
    a.raw("s_cbranch_scc1 L_t_aux")
    a.op2("v_lshrrev_b32", 2, "3", 0)
    a.op2("v_lshlrev_b32", 2, "13" if opts.get("wqpat") else "16", 2)
    a.op2("v_and_b32", 4, "7", 0)
    a.op3("v_lshl_add_u32", 6, 4, "4", 2)
    a.raw("s_lshr_b32 s10, s5, 3")
    a.raw("s_and_b32 s11, s5, 7")
    a.raw("s_lshl_b32 s8, s4, 10")
    a.raw("s_lshl_b32 s9, s11, 7")
    a.raw("s_add_u32 s8, s8, s9")
    a.raw("s_lshl_b32 s9, s10, 2")
    a.raw("s_add_u32 s9, s9, s3")
    a.raw("s_lshl_b32 s9, s9, 19")
    a.raw("s_add_u32 s8, s8, s9")
    a.raw("s_waitcnt lgkmcnt(0)")
    srd(R_B, P_WQ, 512 * 8192)
    if not opts.get("nob0t"):
        a.raw("s_barrier")
    for i in range(8):
        bload(WR1 + 4 * i, 4, 6, R_B, soff="s8", flags={"def": ""}.get(opts.get("wqf", SF), opts.get("wqf", SF)))
        if i < 7:
            a.raw(f"s_add_u32 s8, s8, {65536 if opts.get('wqpat') else 8192}")
    a.raw("s_branch L_tail1")
    a.label("L_t_aux")
    for r in range(4):
        a.op1("v_mov_b32", 124 + r, "-1")
    a.raw("s_waitcnt lgkmcnt(0)")
    srd_ws()
    srd(R_A, P_X, 2048)
    a.raw("s_cmp_eq_u32 s3, 4")
    a.raw("s_cbranch_scc1 L_t_x")
    a.raw("s_cmp_eq_u32 s3, 5")
    a.raw("s_cbranch_scc1 L_t_co")
    a.raw("s_cmp_eq_u32 s3, 6")
    a.raw("s_cbranch_scc1 L_t_ca")
    a.raw("s_cmp_lg_u32 s5, 0")
    a.raw("s_cbranch_scc1 L_t_auxb")
    a.raw("s_lshl_b32 s6, s4, 13")
    a.raw("s_add_u32 s7, s6, 4096")
    for k in range(8):
        bstore(124, 4, 7, R_WS, soff="s6" if k < 4 else "s7", imm=QB + (k & 3) * 1024, flags="sc1")
    a.raw("s_branch L_t_auxb")
    a.label("L_t_x")
    bload(XS, 4, 7, R_A)
    bload(XS + 4, 4, 7, R_A, imm=1024)
    a.raw("s_branch L_t_auxb")
    a.label("L_t_co")
    a.raw("s_lshl_b32 s9, s14, 11")
    a.raw(f"s_add_u32 s9, s9, {OB}")
    bstore(124, 4, 7, R_WS, soff="s9", flags="sc1")
    bstore(124, 4, 7, R_WS, soff="s9", imm=1024, flags="sc1")
    if opts.get("dual", 0):
        a.raw(f"s_add_u32 s9, s9, {OX - OB}")
        bstore(124, 4, 7, R_WS, soff="s9", flags="sc1")
        bstore(124, 4, 7, R_WS, soff="s9", imm=1024, flags="sc1")
    a.raw("s_branch L_t_auxb")
    a.label("L_t_ca")
    a.raw("s_cmp_ge_u32 s5, 8")
    a.raw("s_cbranch_scc1 L_t_auxb")
    a.raw("s_lshl_b32 s10, s4, 3")
    a.raw("s_add_u32 s10, s10, s5")
    a.raw("s_lshl_b32 s10, s10, 9")
    a.raw(f"s_add_u32 s10, s10, {AB}")
    a.raw("s_mov_b32 exec_hi, 0")
    bstore(124, 4, 7, R_WS, soff="s10", flags="sc1")
    a.raw("s_mov_b64 exec, -1")
    a.label("L_t_auxb")
    if not opts.get("nob0t"):
        a.raw("s_barrier")
    a.raw("s_branch L_tail1")

    mark("att0")
    a.label("L_att")
    VOFF, QOFF = 5, 6
    KR, VRAW, QR, SACC, PR, PM, OACC = 16, 48, 80, 96, 104, 108, 8
    a.op2("v_and_b32", 2, "15", 0)
    a.op2("v_xor_b32", 4, 2, 3)
    a.op2("v_lshlrev_b32", 4, "4", 4)
    for q in range(4):
        a.op2("v_xor_b32", 116 + q, str(64 * q), 4)
        a.op3("v_lshl_add_u32", 112 + q, 3, "8", 116 + q)
    a.op2("v_lshlrev_b32", 4, "10", 3)
    a.op3("v_lshl_add_u32", VOFF, 2, "4", 4)
    for t in ["s_lshr_b32 s6, s5, 3", "s_and_b32 s7, s5, 7", "s_lshl_b32 s8, s6, 3", "s_add_u32 s8, s8, s4",
              "s_lshl_b32 s8, s8, 13", "s_lshl_b32 s9, s7, 8", "s_add_u32 s8, s8, s9", "s_lshl_b32 s9, s3, 5",
              "s_add_u32 s8, s8, s9", "s_add_u32 s8, s8, 6144", "s_lshl_b32 s8, s8, 8", "s_add_u32 s9, s8, 4096",
              "s_lshl_b32 s13, s3, 13", f"s_add_u32 s13, s13, {L_K}", "s_add_u32 s12, s13, 4096", "s_mov_b32 m0, s13"]:
        a.raw(t)
    a.raw("s_waitcnt lgkmcnt(0)")
    srd(R_A, P_K, 0x2000000)
    for rr in range(opts.get("adelay", 0)):
        a.raw("s_mov_b64 exec, 1")
        bload(126, 1, 112 + rr, R_A, soff="s9", imm=2048 * rr, flags=SF)
        a.raw("s_mov_b64 exec, -1")
        a.raw("s_waitcnt vmcnt(0)")
    for T in range(2):
        if T:
            if opts.get("kpace", -1) >= 0:
                a.raw(f"s_waitcnt vmcnt({opts['kpace']})")
            a.raw("s_mov_b32 m0, s12")
            a.nop(1)
        for q in range(4):
            a.mem(f"buffer_load_dwordx4 v{112 + q}, {sr(R_A, 4)}, s{8 + T} offen offset:{q * 1024} {SF} lds",
                  src=[112 + q])
    srd(R_B, P_V, 0x2000000)
    if opts.get("vpace", -1) >= 0:
        a.raw(f"s_waitcnt vmcnt({opts['vpace']})")
    if opts.get("kbar", 1):
        a.raw("s_barrier")
    NV1 = opts.get("nv1", 6)
    srd(R_C, P_DBG, 256)
    a.raw("s_lshl_b32 s6, s4, 2")
    a.op1("v_mov_b32", 124, "s6")
    a.raw("s_cmp_lg_u32 s3, 0")
    a.raw("s_cbranch_scc1 L_a_nfs")
    a.raw("s_mov_b64 exec, 1")
    bload(125, 1, 124, R_C, imm=128, flags="sc1")
    a.raw("s_mov_b64 exec, -1")
    a.label("L_a_nfs")
    for i in range(NV1):
        bload(VRAW + i * 4, 4, VOFF, R_B, soff=f"s{8 + i // 4}", imm=(i % 4) * 256, flags=SF)
    a.raw("s_branch L_att1")

    EARLY = opts.get("early", 1)

    def issue_wo():
        srd(R_D, P_WO, 4096 * 1024)
        a.op2("v_and_b32", 224, "8", 0)
        a.op3("v_lshl_add_u32", 224, 224, "3", 3)
        a.op2("v_lshlrev_b32", 224, "10", 224)
        a.op2("v_and_b32", 225, "7", 0)
        a.op3("v_lshl_add_u32", 224, 225, "4", 224)
        a.raw("s_lshl_b32 s6, s4, 2")
        a.raw("s_lshr_b32 s7, s3, 1")
        a.raw("s_add_u32 s6, s6, s7")
        a.raw("s_lshl_b32 s6, s6, 7")
        a.raw("s_and_b32 s7, s3, 1")
        a.raw("s_lshl_b32 s7, s7, 2")
        a.raw("s_add_u32 s6, s6, s7")
        a.raw("s_lshl_b32 s6, s6, 10")
        a.raw("s_lshl_b32 s7, s5, 7")
        a.raw("s_add_u32 s6, s6, s7")
        for i in range(8):
            bload(128 + 4 * i, 4, 224, R_D, soff="s6", flags=SF)
            if i < 7:
                a.raw("s_add_u32 s6, s6, 8192")

    def issue_ffn():
        n2 = a.newlabel("fn2")
        srd(R_D, P_W1, 512 * 3584)
        a.op2("v_and_b32", 224, "12", 0)
        a.op2("v_lshlrev_b32", 224, "2", 224)
        a.op3("v_lshl_add_u32", 224, 3, "1", 224)
        a.op2("v_mul_u32_u24", 224, "3584", 224)
        a.op2("v_and_b32", 225, "3", 0)
        a.op3("v_lshl_add_u32", 224, 225, "4", 224)
        a.raw(f"s_mul_i32 s6, s3, {64 * 3584}")
        a.raw(f"s_lshl_b32 s7, s{S_PHI}, 6")
        a.raw("s_add_u32 s6, s6, s7")
        for i in range(4):
            a.raw(f"s_add_u32 s7, s6, {((i >> 1) * 8 + (i & 1)) * 3584}")
            bload(208 + 4 * i, 4, 224, R_D, soff="s7", flags=SF)
        a.raw("s_cmp_ge_u32 s3, 4")
        a.raw(f"s_cbranch_scc1 {n2}")
        srd(R_B, P_W2, 1792 * 1024)
        a.op2("v_lshlrev_b32", 224, "13", 3)
        a.op2("v_and_b32", 225, "15", 0)
        a.op3("v_lshl_add_u32", 224, 225, "4", 224)
        a.raw(f"s_lshl_b32 s6, s{S_PHI}, 15")
        a.raw("s_lshl_b32 s7, s3, 8")
        a.raw("s_add_u32 s6, s6, s7")
        a.raw("s_add_u32 s7, s6, 4096")
        for i in range(8):
            bload(128 + 4 * i, 4, 224, R_B, soff="s6" if i < 4 else "s7", imm=(i & 3) * 1024, flags=SF)
        a.label(n2)

    def issue_late():
        lf, ld = a.newlabel("lf"), a.newlabel("ld")
        a.raw("s_cmp_ge_u32 s5, 8")
        a.raw(f"s_cbranch_scc1 {lf}")
        issue_wo()
        a.raw(f"s_branch {ld}")
        a.label(lf)
        a.raw("s_cmp_ge_u32 s5, 15")
        a.raw(f"s_cbranch_scc1 {ld}")
        issue_ffn()
        a.label(ld)

    mark("tail1")
    a.label("L_tail1")
    a.raw(f"s_mov_b32 s{S_SELLO}, 0x05040100")
    a.raw(f"s_mov_b32 s{S_SELHI}, 0x07060302")
    srd_ws()
    srd(R_A, P_X, 2048)
    srd(R_C, P_DBG, 256)
    a.raw("s_lshl_b32 s6, s4, 2")
    a.op1("v_mov_b32", 123, "s6")
    a.raw("s_mul_i32 s6, s4, 7")
    a.raw("s_add_u32 s6, s6, s5")
    a.raw(f"s_sub_u32 s{S_PHI}, s6, 8")
    a.raw("s_cmp_lt_u32 s3, 4")
    a.raw("s_cbranch_scc1 L_t_main")
    a.raw("s_waitcnt vmcnt(0)")
    a.raw("s_cmp_lg_u32 s3, 4")
    a.raw("s_cbranch_scc1 L_t_a1")
    dsw(XS, 4, 7, L_H)
    dsw(XS + 4, 4, 7, L_H + 1024)
    a.raw("s_waitcnt lgkmcnt(0)")
    stamp(3)
    a.raw("s_branch L_t_a2")
    a.label("L_t_a1")
    a.raw("s_lshl_b32 s6, s5, 3")
    a.raw("s_add_u32 s6, s6, s3")
    a.raw("s_cmp_lg_u32 s6, 7")
    a.raw("s_cbranch_scc1 L_t_a2")
    a.op1("v_mov_b32", 4, "1")
    a.raw("s_mov_b64 exec, 1")
    bstore(4, 1, 123, R_C, imm=128, flags="sc1")
    a.raw("s_mov_b64 exec, -1")
    a.label("L_t_a2")
    stamp(5)
    a.raw("s_barrier")
    if EARLY:
        a.raw("s_barrier")
        issue_late()
    a.raw("s_barrier")
    a.raw("s_branch L_t_np")
    a.label("L_t_main")
    a.op2("v_lshrrev_b32", 2, "2", 0)
    a.op2("v_and_b32", 5, "1", 0)
    a.op3("v_lshl_add_u32", 2, 2, "1", 5)
    a.op2("v_lshlrev_b32", 2, "4", 2)
    a.op2("v_and_b32", 6, "2", 0)
    a.op3("v_lshl_add_u32", 20, 6, "9", 2)
    a.op3("v_lshl_add_u32", 2, 3, "1", 5)
    a.raw("s_lshl_b32 s6, s10, 2")
    a.raw("s_add_u32 s6, s6, s3")
    a.raw("s_lshl_b32 s6, s6, 7")
    a.op3("v_lshl_add_u32", 21, 2, "4", "s6")
    a.op3("v_lshl_add_u32", 21, 6, "9", 21)
    a.op3("v_lshl_add_u32", 2, 3, "3", 4)
    a.raw("s_lshl_b32 s7, s3, 9")
    a.op3("v_lshl_add_u32", 22, 2, "4", "s7")
    a.op2("v_and_b32", 2, "31", 0)
    a.op2("v_lshlrev_b32", 2, "4", 2)
    a.op2("v_and_b32", 5, "32", 0)
    a.op3("v_lshl_add_u32", 23, 5, "5", 2)
    a.op2("v_lshrrev_b32", 2, "2", 0)
    a.op2("v_and_b32", 2, "3", 2)
    for c in range(4):
        a.cmp("v_cmp_eq_u32", sr(S_MASK + 2 * c, 2), str(c), 2)
    a.op2("v_and_b32", 2, "8", 0)
    a.cmp("v_cmp_ne_u32", "s[12:13]", "0", 2)
    a.raw("s_lshl_b32 s8, s14, 9")
    a.op2("v_lshlrev_b32", 6, "3", 0)
    a.raw("s_barrier")
    for s_ in range(2):
        dsr(XS + 4 * s_, 4, 20, L_H + 512 * s_)
    dsr(XA, 4, 21, L_H)
    a.raw("s_waitcnt lgkmcnt(0)")
    ln_norm4(XS, XA, 88, 104, nA=4, steps=["quad_perm:[1,0,3,2]", "row_ror:4", "row_ror:8", "x16", "x32"])
    for c in range(4):
        for x in range(4):
            a.cndmask(88 + 4 * c + x, "0", XA + x, sr(S_MASK + 2 * c, 2))
    stamp(2)
    a.raw("s_waitcnt vmcnt(4)")
    a.raw("s_cmp_lg_u32 s3, 0")
    a.raw("s_cbranch_scc1 L_t_nfs")
    a.raw("s_mov_b64 exec, 1")
    bload(5, 1, 123, R_C, imm=128, flags="sc1")
    a.raw("s_mov_b64 exec, -1")
    a.label("L_t_nfs")
    if EARLY:
        a.raw("s_barrier")
    perm8(WR1, WP1, (0, 1))
    a.raw("s_waitcnt vmcnt(0)")
    stamp(1)
    if EARLY:
        issue_late()
    perm8(WR1, WP1, (2, 3))
    for c in range(4):
        for t in range(2):
            a.mfma16(8 + 4 * t, 88 + 4 * c, WP1 + 4 * (2 * c + t), None if c == 0 else 8 + 4 * t)
    for b in range(2):
        for t in range(2):
            a.cndmask(16 + 2 * b + t, 8 + 4 * t + 2 * b, 8 + 4 * t + 2 * b + 1, "s[12:13]")
    a.allreduce("v_add_f32", [16, 17, 18, 19], ["row_ror:8"], [])
    a.raw("s_mov_b32 exec_lo, 0x00ff00ff")
    a.raw("s_mov_b32 exec_hi, 0x00ff00ff")
    dsw(16, 4, 22, L_P3)
    a.raw("s_mov_b64 exec, -1")
    a.raw("s_waitcnt lgkmcnt(0)")
    a.raw("s_barrier")
    stamp(4)
    a.raw("s_cmp_lg_u32 s3, 0")
    a.raw("s_cbranch_scc1 L_t_np")
    dsr(8, 4, 23, L_P3)
    dsr(12, 4, 23, L_P3 + 512)
    a.raw("s_waitcnt lgkmcnt(0)")
    for r in range(4):
        a.op2("v_add_f32", 8 + r, 8 + r, 12 + r)
    a.swap32(8, 10)
    a.swap32(9, 11)
    a.op2("v_add_f32", 8, 8, 10)
    a.op2("v_add_f32", 9, 9, 11)
    for r in range(2):
        a.op2("v_min_u32", 8 + r, "-2", 8 + r)
    poll_flags(123, 128, "1", 5, pre_loaded=True)
    bstore(8, 2, 6, R_WS, soff="s8", imm=QB, flags="sc1")
    stamp(2)
    a.label("L_t_np")
    a.raw("s_barrier")
    a.raw("s_cmp_lt_u32 s5, 8")
    a.raw("s_cbranch_scc1 L_s3")
    a.raw("s_cmp_lt_u32 s5, 15")
    a.raw("s_cbranch_scc1 L_ffn")
    a.raw("s_cmp_eq_u32 s3, 1")
    a.raw("s_cbranch_scc1 L_touch")
    a.raw("s_cmp_lg_u32 s3, 0")
    a.raw("s_cbranch_scc1 L_exit")
    a.raw("s_lshl_b32 s8, s4, 13")
    a.raw("s_add_u32 s9, s8, 4096")
    a.op2("v_and_b32", 2, "15", 0)
    a.op2("v_lshlrev_b32", 2, "4", 2)
    a.op3("v_lshl_add_u32", 2, 3, "9", 2)
    poll_masked([(8 + 4 * k, 2, "s8" if k < 2 else "s9", QB + (k & 1) * 2048) for k in range(4)], 24, sleep=2)
    a.op1("v_mov_b32", 4, "1")
    a.raw("s_mov_b64 exec, 1")
    bstore(4, 1, 123, R_C, flags="sc1")
    a.raw("s_mov_b64 exec, -1")
    stamp(3)
    a.raw("s_branch L_exit")
    a.label("L_touch")
    a.raw("s_getpc_b64 s[6:7]")
    a.label("L_pc")
    a.raw(f"s_sub_u32 s6, s6, L_pc - {NAME}_kernel")
    a.raw("s_subb_u32 s7, s7, 0")
    for k in range(opts.get("code_kb", 10)):
        if k % 4 == 0 and k:
            a.op2("v_add_u32", 7, "4096", 7)
        a.mem(f"global_load_dwordx4 v[12:15], v7, s[6:7] offset:{(k % 4) * 1024}", src=[7], dst=[12, 13, 14, 15])
    a.raw("s_branch L_exit")

    a.label("L_att1")
    a.raw(f"s_mov_b32 s{S_SELLO}, 0x05040100")
    a.raw(f"s_mov_b32 s{S_SELHI}, 0x07060302")
    srd_ws()
    srd(R_A, P_X, 2048)
    srd(R_D, P_OUT, 2048)
    a.raw("s_lshl_b32 s14, s5, 3")
    a.raw("s_add_u32 s14, s14, s4")
    a.raw("s_lshl_b32 s15, s14, 12")
    a.raw(f"s_add_u32 s15, s15, {FB}")
    a.raw("s_lshl_b32 s12, s4, 13")
    a.raw("s_lshr_b32 s7, s5, 3")
    a.raw("s_lshl_b32 s7, s7, 8")
    a.raw("s_add_u32 s12, s12, s7")
    a.op2("v_lshlrev_b32", 126, "4", 2)
    a.op3("v_lshl_add_u32", 144, 3, "9", 126)
    a.op2("v_lshlrev_b32", 145, "7", 3)
    a.op2("v_and_b32", 126, "3", 0)
    a.op3("v_lshl_add_u32", 145, 126, "5", 145)
    a.op2("v_and_b32", 126, "12", 0)
    a.op2("v_add_u32", 145, 145, 126)
    for q in range(4):
        a.op3("v_lshl_add_u32", 116 + q, 2, "8", 116 + q)
        a.op2("v_add_u32", 116 + q, "s13", 116 + q)
    a.op2("v_and_b32", 2, "3", 0)
    a.op2("v_lshlrev_b32", 2, "8", 2)
    a.op3("v_lshl_add_u32", QOFF, 3, "4", 2)
    a.op2("v_lshrrev_b32", 2, "2", 0)
    a.op2("v_and_b32", 2, "3", 2)
    for c in range(4):
        a.cmp("v_cmp_eq_u32", sr(S_MASK + 2 * c, 2), str(c), 2)
    VOP = 160
    a.raw(f"s_mov_b32 s10, {SCALE}")
    a.raw(f"s_mov_b32 s11, {SCALE}")
    a.raw(f"s_mov_b32 s62, {LOG2E}")
    a.raw(f"s_mov_b32 s63, {LOG2E}")
    a.raw("s_add_u32 s39, s12, 4096")
    for r in range(4):
        a.op1("v_mov_b32", 12 + r, "-1")
    a.raw("s_lshl_b32 s6, s3, 3")
    a.op2("v_lshlrev_b32", 146, "6", 0)
    a.op2("v_add_u32", 146, "s6", 146)
    a.raw("s_lshl_b32 s6, s3, 13")
    a.op2("v_add_u32", 147, "s6", 7)
    a.op2("v_and_b32", 148, "3", 0)
    a.op2("v_lshlrev_b32", 148, "8", 148)
    a.op2("v_and_b32", 126, "12", 0)
    a.op3("v_lshl_add_u32", 148, 126, "4", 148)
    a.op2("v_and_b32", 126, "16", 0)
    a.op3("v_lshl_add_u32", 148, 126, "6", 148)
    a.op2("v_lshrrev_b32", 126, "5", 0)
    a.raw("s_lshl_b32 s6, s3, 1")
    a.op2("v_add_u32", 126, "s6", 126)
    a.op3("v_lshl_add_u32", 148, 126, "4", 148)
    a.op2("v_lshlrev_b32", 149, "6", 126)
    a.raw("s_lshl_b32 s6, s4, 4")
    a.raw("s_add_u32 s6, s6, s5")
    a.raw("s_lshl_b32 s6, s6, 1")
    a.raw("s_add_u32 s6, s6, s3")
    a.raw("s_lshl_b32 s6, s6, 10")
    a.raw(f"s_add_u32 s13, s6, {OB}")
    for r in range(4):
        a.raw(f"s_mov_b32 s{16 + r}, {0x07060500 + r:#x}")
    q1 = [(128 + 4 * k, 144, "s12" if k < 2 else "s39", QB + (k & 1) * 2048) for k in range(4)]
    q2 = [(192 + 4 * k, 144, "s12" if k < 2 else "s39", QB + (k & 1) * 2048) for k in range(4)]

    def q_check(base, lab):
        a.op3("v_max3_u32", 126, base, base + 1, base + 2)
        for r in range(base + 3, base + 15, 2):
            a.op3("v_max3_u32", 126, 126, r, r + 1)
        a.op2("v_max_u32", 126, 126, base + 15)
        a.valu("v_cmp_eq_u32_e32 vcc, -1, v126", src=[126], sdst=["vcc"])
        a.raw(f"s_cbranch_vccz {lab}")

    def q_fin(base):
        for k in range(2):
            pk("v_pk_add_f32", base + 4 * k, base + 4 * k, base + 8 + 4 * k)
            pk("v_pk_add_f32", base + 2 + 4 * k, base + 2 + 4 * k, base + 10 + 4 * k)
        for k in range(2):
            for x in range(2):
                a.op2e("v_cvt_pk_bf16_f32", base + 8 + 2 * k + x, base + 4 * k + 2 * x, base + 4 * k + 2 * x + 1)
        for k in range(2):
            for x in range(2):
                dsw(base + 8 + 2 * k + x, 1, 145, L_Q + 512 * k + 16 * x)

    def vload(i):
        bload(VRAW + i * 4, 4, VOFF, R_B, soff=f"s{8 + i // 4}", imm=(i % 4) * 256, flags=SF)

    NV2 = opts.get("nv2", 6)
    a.raw(f"s_waitcnt vmcnt({NV1})")
    for T in range(2):
        for s in range(4):
            dsr(KR + T * 16 + s * 4, 4, 116 + s, T * 4096)
    a.raw(f"s_cmp_ge_u32 s3, {opts.get('qw', 0)}")
    a.raw("s_cbranch_scc1 L_a_nt")
    a.raw(f"s_waitcnt vmcnt({NV1 - opts.get('qtrig', 1)})")
    a.label("L_a_nt")
    stamp(1)
    a.raw("s_barrier")
    a.raw("s_cmp_lg_u32 s3, 0")
    a.raw("s_cbranch_scc1 L_a_nq")
    poll_flags(124, 128, "1", 125, pre_loaded=True)
    for (d, vo, so, im) in q1:
        bload(d, 4, vo, R_WS, soff=so, imm=im, flags="sc1")
    a.label("L_a_nq")
    a.raw("s_barrier")
    for i in range(NV1, NV2):
        vload(i)
    if NV2 > NV1:
        a.raw("s_barrier")
        a.raw("s_cmp_lg_u32 s3, 0")
        a.raw("s_cbranch_scc1 L_a_nq1")
        for (d, vo, so, im) in q2:
            bload(d, 4, vo, R_WS, soff=so, imm=im, flags="sc1")
        a.label("L_a_nq1")
        a.raw("s_barrier")
    for i in range(NV2, 8):
        vload(i)
    a.raw("s_cmp_eq_u32 s3, 0")
    a.raw("s_cbranch_scc1 L_a_q")
    a.raw("s_cmp_lg_u32 s3, 1")
    a.raw("s_cbranch_scc1 L_a_nc")
    a.raw("s_cmp_ge_u32 s5, 8")
    a.raw("s_cbranch_scc1 L_a_nc")
    a.raw(f"s_waitcnt vmcnt({8 - NV1})")
    for k in range(4):
        bstore(12, 4, 7, R_WS, soff="s15", imm=k * 1024, flags="sc1")
    perm8(VRAW, VOP, tuple(range(NV1 // 2)))
    a.raw("s_branch L_a_nq2")
    a.label("L_a_nc")
    a.raw(f"s_waitcnt vmcnt({8 - NV1})")
    perm8(VRAW, VOP, tuple(range(NV1 // 2)))
    a.raw("s_branch L_a_nq2")
    a.label("L_a_q")
    nq2 = 4 if NV2 > NV1 else 0
    a.raw(f"s_waitcnt vmcnt({8 - NV1 + nq2})")
    q_check(128, "L_a_q1ok")
    if nq2:
        a.raw(f"s_waitcnt vmcnt({8 - NV2})")
        q_check(192, "L_a_q2ok")
    poll_masked(q1, 126, sleep=1)
    a.label("L_a_q1ok")
    q_fin(128)
    a.raw("s_branch L_a_q3")
    a.label("L_a_q2ok")
    q_fin(192)
    a.label("L_a_q3")
    a.raw("s_waitcnt lgkmcnt(0)")
    a.raw("s_barrier")
    for s in range(4):
        dsr(QR + 4 * s, 4, QOFF, L_Q + 64 * s)
    perm8(VRAW, VOP, tuple(range(NV1 // 2)))
    a.raw("s_branch L_a_qk")
    a.label("L_a_nq2")
    a.raw("s_waitcnt lgkmcnt(0)")
    a.raw("s_barrier")
    for s in range(4):
        dsr(QR + 4 * s, 4, QOFF, L_Q + 64 * s)
    a.label("L_a_qk")
    stamp(2)
    a.raw("s_waitcnt lgkmcnt(0)")
    for s in range(4):
        for T in range(2):
            a.mfma16(SACC + 4 * T, KR + T * 16 + s * 4, QR + 4 * s, None if s == 0 else SACC + 4 * T)
    SV = QR
    PK = QR + 8
    for d in range(4):
        a.op2e("v_cvt_pk_bf16_f32", PK + d, SACC + 2 * d, SACC + 2 * d + 1)
    unpack(SV, PK, 4)
    for i in range(0, 8, 2):
        a.valu(f"v_pk_mul_f32 {vr(SV + i, 2)}, {vr(SV + i, 2)}, s[10:11]", dst=[SV + i, SV + i + 1], src=[SV + i, SV + i + 1])
    for d in range(4):
        a.op2e("v_cvt_pk_bf16_f32", PK + d, SV + 2 * d, SV + 2 * d + 1)
    unpack(SV, PK, 4)
    MX, LS, TT, NM = QR + 12, QR + 13, QR + 14, SACC
    a.op3("v_max3_f32", MX, SV + 0, SV + 1, SV + 2)
    a.op3("v_max3_f32", TT, SV + 3, SV + 4, SV + 5)
    a.op3("v_max3_f32", MX, MX, SV + 6, SV + 7)
    a.op2("v_max_f32", MX, MX, TT)
    a.allreduce("v_max_f32", [MX], ["x16", "x32"], [TT])
    a.op2("v_mul_f32", MX, "s62", MX)
    a.op2("v_sub_f32", NM, "0", MX)
    a.op2("v_sub_f32", NM + 1, "0", MX)
    for i in range(0, 8, 2):
        a.valu(f"v_pk_fma_f32 {vr(SV + i, 2)}, {vr(SV + i, 2)}, s[62:63], {vr(NM, 2)}",
               dst=[SV + i, SV + i + 1], src=[SV + i, SV + i + 1, NM, NM + 1])
    for i in range(8):
        a.op1("v_exp_f32", SV + i, SV + i, kind="trans")
    for d in range(4):
        a.op2e("v_cvt_pk_bf16_f32", PR + d, SV + 2 * d, SV + 2 * d + 1)
    pk("v_pk_add_f32", SV, SV, SV + 2)
    pk("v_pk_add_f32", SV + 4, SV + 4, SV + 6)
    pk("v_pk_add_f32", SV, SV, SV + 4)
    a.op2("v_add_f32", LS, SV, SV + 1)
    for c in range(4):
        for x in range(4):
            a.cndmask(PM + 4 * c + x, "0", PR + x, sr(S_MASK + 2 * c, 2))
    a.raw("s_waitcnt vmcnt(0)")
    stamp(3)
    perm8(VRAW, VOP, tuple(range(NV1 // 2, 4)))
    for c in range(4):
        for ch in range(2):
            a.mfma16(OACC + 4 * ch, VOP + 4 * (ch * 4 + c), PM + 4 * c, None if c == 0 else OACC + 4 * ch)
    a.allreduce("v_add_f32", [LS], ["x16", "x32"], [TT])
    a.raw("s_mov_b64 exec, 15")
    dsw(MX, 2, 146, L_ST)
    a.raw("s_mov_b64 exec, -1")
    for ch in range(2):
        dsw(OACC + 4 * ch, 4, 147, L_K + 1024 * ch)
    a.raw("s_waitcnt lgkmcnt(0)")
    a.raw("s_barrier")
    a.raw("s_cmp_ge_u32 s3, 2")
    a.raw("s_cbranch_scc1 L_a_fin")
    OW, STV = 16, 48
    for k in range(4):
        dsr(STV + 4 * k, 4, 149, L_ST + 16 * k)
    for w in range(8):
        dsr(OW + 4 * w, 4, 148, L_K + 8192 * w)
    a.raw("s_waitcnt lgkmcnt(8)")
    Mx, Lx, E0 = 64, 65, 66
    a.op3("v_max3_f32", Mx, STV + 0, STV + 2, STV + 4)
    a.op3("v_max3_f32", Lx, STV + 6, STV + 8, STV + 10)
    a.op3("v_max3_f32", Mx, Mx, STV + 12, STV + 14)
    a.op2("v_max_f32", Mx, Mx, Lx)
    for w in range(8):
        a.op2("v_sub_f32", E0 + 2 * w, STV + 2 * w, Mx)
    for w in range(8):
        a.op1("v_exp_f32", E0 + 2 * w, E0 + 2 * w, kind="trans")
    a.op2("v_mul_f32", Lx, E0, STV + 1)
    a.op2("v_mul_f32", 84, E0 + 2, STV + 3)
    for w in range(2, 8, 2):
        a.op2("v_fmac_f32", Lx, E0 + 2 * w, STV + 2 * w + 1)
        a.op2("v_fmac_f32", 84, E0 + 2 * w + 2, STV + 2 * w + 3)
    a.op2("v_add_f32", Lx, Lx, 84)
    a.op1("v_rcp_f32", 82, Lx, kind="trans")
    a.op1("v_log_f32", 83, Lx, kind="trans")
    a.raw("s_waitcnt lgkmcnt(0)")

    for h in range(2):
        pkb("v_pk_mul_f32", 84 + 2 * h, E0, OW + 2 * h)
        pkb("v_pk_mul_f32", 88 + 2 * h, E0 + 2, OW + 4 + 2 * h)
    for w in range(2, 8, 2):
        for h in range(2):
            pkb("v_pk_fma_f32", 84 + 2 * h, E0 + 2 * w, OW + 4 * w + 2 * h, 84 + 2 * h)
            pkb("v_pk_fma_f32", 88 + 2 * h, E0 + 2 * w + 2, OW + 4 * w + 4 + 2 * h, 88 + 2 * h)
    a.op2("v_add_f32", 83, 83, Mx)
    for h in range(2):
        pk("v_pk_add_f32", 84 + 2 * h, 84 + 2 * h, 88 + 2 * h)
    for h in range(2):
        pkb("v_pk_mul_f32", 84 + 2 * h, 82, 84 + 2 * h)
    for r in range(4):
        a.op3("v_perm_b32", 84 + r, 84 + r, 83, f"s{16 + r}")
    for r in range(4):
        a.op2("v_min_u32", 84 + r, "-2", 84 + r)
    if opts.get("dual", 0):
        a.raw(f"s_add_u32 s6, s13, {OX - OB}")
        bstore(84, 4, 7, R_WS, soff="s6")
    bstore(84, 4, 7, R_WS, soff="s13", flags="sc1")
    stamp(4)
    a.raw("s_branch L_exit")
    a.label("L_a_fin")
    a.raw("s_cmp_lg_u32 s3, 2")
    a.raw("s_cbranch_scc1 L_exit")
    a.raw("s_cmp_ge_u32 s5, 8")
    a.raw("s_cbranch_scc1 L_exit")
    a.raw("s_lshr_b32 s6, s14, 4")
    a.raw("s_lshl_b32 s6, s6, 7")
    a.raw("s_and_b32 s7, s14, 3")
    a.raw("s_lshl_b32 s7, s7, 5")
    a.raw("s_add_u32 s6, s6, s7")
    a.raw("s_bfe_u32 s7, s14, 0x20002")
    a.raw("s_lshl_b32 s7, s7, 1")
    a.raw("s_add_u32 s6, s6, s7")
    a.op2("v_and_b32", 2, "3", 0)
    a.op2("v_lshlrev_b32", 2, "3", 2)
    a.op2("v_bfe_u32" if False else "v_lshrrev_b32", 3, "3", 0)
    a.op2("v_and_b32", 3, "1", 3)
    a.op3("v_add3_u32", 2, 2, 3, "s6")
    a.op2("v_and_b32", 3, "4", 0)
    a.op2("v_lshlrev_b32", 4, "1", 2)
    a.op3("v_lshl_add_u32", 4, 3, "8", 4)
    a.mem(f"buffer_load_ushort v10, v4, {sr(R_A, 4)}, 0 offen", src=[4], dst=[10])
    a.op2("v_lshrrev_b32", 5, "6", 2)
    a.op2("v_lshlrev_b32", 5, "9", 5)
    a.op3("v_lshl_add_u32", 5, 3, "6", 5)
    a.op2("v_and_b32", 6, "6", 2)
    a.op3("v_lshl_add_u32", 5, 6, "5", 5)
    a.op2("v_and_b32", 6, "56", 2)
    a.op2("v_add_u32", 5, 5, 6)
    a.op2("v_and_b32", 6, "1", 2)
    a.op3("v_lshl_add_u32", 5, 6, "2", 5)
    a.op2("v_lshrrev_b32", 6, "4", 0)
    a.op3("v_lshl_add_u32", 5, 6, "12", 5)
    a.op2("v_lshrrev_b32", 6, "2", 0)
    a.op2("v_and_b32", 6, "3", 6)
    for r in (1, 2, 3):
        a.cmp("v_cmp_eq_u32", sr(S_MASK + 2 * (r - 1), 2), str(r), 6)
    a.op2("v_lshlrev_b32", 6, "2", 0)
    F0 = 16
    for r in range(4):
        a.op1("v_mov_b32", F0 + 12 + r, "0")
    poll_flags(6, 0, "0xff", 8)
    a.raw(f"s_mov_b32 s8, {AB}")
    a.raw(f"s_mov_b32 s9, {AB + 16384}")
    if opts.get("db", 0) & 2:
        a.raw("s_lshl_b32 s6, s4, 12")
        a.raw("s_lshl_b32 s7, s5, 9")
        a.raw("s_add_u32 s6, s6, s7")
        a.raw("s_add_u32 s62, s8, s6")
        doorbell("s62", 8, lanes="1", sleep=8)
    poll_masked([(12, 5, "s8", 0), (13, 5, "s9", 0)], 8, sleep=4, width=1)
    stamp(4)
    a.op2("v_add_f32", 12, 12, 13)
    a.allreduce("v_add_f32", [12], ["x16", "x32"], [13])
    round_bf16(12, 12)
    a.op2("v_lshlrev_b32", 10, "16", 10)
    a.op2("v_add_f32", 12, 12, 10)
    round_bf16(12, 12)
    if opts.get("db", 0) & 4:
        doorbell("s15", 8, lanes="1")
    poll_masked([(F0 + 4 * k, 7, "s15", k * 1024) for k in range(4)], 8, sleep=opts.get("sleep_f", 2), last_hi="0")
    stamp(5)
    for h in range(2):
        pk("v_pk_add_f32", F0 + 2 * h, F0 + 2 * h, F0 + 4 + 2 * h)
        pk("v_pk_add_f32", F0 + 8 + 2 * h, F0 + 8 + 2 * h, F0 + 12 + 2 * h)
    for h in range(2):
        pk("v_pk_add_f32", F0 + 2 * h, F0 + 2 * h, F0 + 8 + 2 * h)
    a.allreduce("v_add_f32", [F0 + r for r in range(4)], ["row_ror:4", "row_ror:8"], [])
    for r in (1, 2, 3):
        a.cndmask(F0, F0, F0 + r, sr(S_MASK + 2 * (r - 1), 2))
    a.allreduce("v_add_f32", [F0], ["x16", "x32"], [F0 + 4])
    round_bf16(F0, F0)
    a.op2("v_add_f32", F0, F0, 12)
    a.op2e("v_cvt_pk_bf16_f32", F0, F0, F0)
    if opts.get("padto"):
        a.label("L_pad")
        a.raw("s_memrealtime s[6:7]")
        a.raw("s_waitcnt lgkmcnt(0)")
        a.raw("s_sub_u32 s6, s6, s100")
        a.raw(f"s_cmp_lt_u32 s6, {opts['padto']}")
        a.raw("s_cbranch_scc1 L_pad")
    a.raw("s_mov_b64 exec, 0xffff")
    bstore(F0, 1, 4, R_D, op="buffer_store_short", flags=opts.get("outf", ""))
    a.raw("s_mov_b64 exec, -1")
    stamp(6)
    a.raw("s_branch L_exit")

    a.label("L_s3")
    WR3, WP3, C, T = 128, 48, 80, 96

    def s3_flags():
        a.raw("s_cmp_lg_u32 s3, 0")
        a.raw("s_cbranch_scc1 L_s3_nf")
        poll_flags(123, 0, "1", 5, sleep=8)
        a.label("L_s3_nf")
        a.raw("s_barrier")
    if opts.get("slate", 0):
        s3_flags()
    if not EARLY:
        issue_wo()
    a.op2("v_and_b32", 4, "7", 0)
    a.op2("v_lshlrev_b32", 5, "11", 3)
    a.op2("v_and_b32", 6, "15", 0)
    a.op3("v_lshl_add_u32", 8, 6, "4", 5)
    a.raw("s_lshl_b32 s6, s3, 8")
    a.op3("v_lshl_add_u32", 9, 6, "3", "s6")
    a.op2("v_and_b32", 5, "32", 0)
    a.op3("v_lshl_add_u32", 9, 5, "2", 9)
    a.op2("v_and_b32", 5, "1", 3)
    a.op3("v_lshl_add_u32", 9, 5, "2", 9)
    a.op2("v_and_b32", 5, "1", 0)
    a.op3("v_lshl_add_u32", 5, 3, "1", 5)
    a.op3("v_lshl_add_u32", 10, 5, "4", "s6")
    a.op2("v_and_b32", 5, "2", 0)
    a.op3("v_lshl_add_u32", 10, 5, "6", 10)
    a.op3("v_lshl_add_u32", 5, 3, "3", 4)
    a.raw("s_lshl_b32 s7, s3, 9")
    a.op3("v_lshl_add_u32", 11, 5, "4", "s7")
    a.op2("v_and_b32", 5, "31", 0)
    a.op2("v_lshlrev_b32", 5, "4", 5)
    a.op2("v_and_b32", 6, "32", 0)
    a.op3("v_lshl_add_u32", 12, 6, "6", 5)
    a.op2("v_lshlrev_b32", 13, "3", 0)
    a.raw("s_lshl_b32 s7, s4, 15")
    a.raw("s_add_u32 s6, s6, s7")
    for k in range(4):
        a.raw(f"s_add_u32 s{8 + k}, s6, {(OX if opts.get('dual', 0) else OB) + k * 8192}")
    a.raw("s_lshl_b32 s6, s4, 3")
    a.raw("s_add_u32 s6, s6, s5")
    a.raw("s_lshl_b32 s12, s6, 9")
    a.raw(f"s_add_u32 s12, s12, {AB}")
    a.op2("v_lshrrev_b32", 5, "2", 0)
    a.op2("v_and_b32", 5, "3", 5)
    a.op1("v_mov_b32", 6, str(L_G + 128))
    for c in range(4):
        a.cmp("v_cmp_eq_u32", "vcc", str(c), 5)
        a.cndmask(116 + c, 6, 10, "vcc")
    for r in range(4):
        a.op1("v_mov_b32", 112 + r, "0")
    dsw(112, 4, 6, 0)
    a.op2("v_and_b32", 5, "8", 0)
    a.cmp("v_cmp_ne_u32", "s[14:15]", "0", 5)
    a.raw("s_mov_b32 s13, 0x0c0c0400")
    a.raw("s_waitcnt vmcnt(0)")
    stamp(1)
    perm8(WR3, WP3)
    if not opts.get("slate", 0):
        s3_flags()
    stamp(3)
    if opts.get("db", 0) & 1:
        a.raw("s_lshl_b32 s6, s5, 12")
        a.raw("s_add_u32 s62, s8, s6")
        doorbell("s62", 5, lanes="1")
    poll_masked([(C + 4 * k, 8, f"s{8 + k}", 0) for k in range(4)], 5, sleep=opts.get("sleep_o", 2),
                alt=((OB - OX) & 0xffffffff) if opts.get("dual", 0) else None)
    stamp(4)
    LK = T
    for k in range(4):
        a.op3("v_perm_b32", LK + 2 * k, C + 4 * k + 1, C + 4 * k, "s13")
        a.op3("v_perm_b32", LK + 2 * k + 1, C + 4 * k + 3, C + 4 * k + 2, "s13")
    for k in range(4):
        a.op3("v_perm_b32", LK + 2 * k, LK + 2 * k + 1, LK + 2 * k, f"s{S_SELLO}")
    MM = T + 18
    for b in range(2):
        a.op2("v_max_f32", MM + b, LK + 4 * b, LK + 4 * b + 2)
    a.allreduce("v_max_f32", [MM, MM + 1], ["x16", "x32"], [T + 1, T + 3])
    for k in range(4):
        a.op2("v_sub_f32", LK + 2 * k, LK + 2 * k, MM + (k >> 1))
    for k in range(4):
        a.op1("v_exp_f32", LK + 2 * k, LK + 2 * k, kind="trans")
    AC = T + 8
    SS = T + 16
    for b in range(2):
        for h in range(2):
            pkb("v_pk_mul_f32", AC + 4 * b + 2 * h, LK + 4 * b, C + 8 * b + 2 * h)
        a.op2("v_add_f32", SS + b, LK + 4 * b, LK + 4 * b + 2)
    for b in range(2):
        for h in range(2):
            pkb("v_pk_fma_f32", AC + 4 * b + 2 * h, LK + 4 * b + 2, C + 8 * b + 4 + 2 * h, AC + 4 * b + 2 * h)
    a.swap32(SS, SS + 1)
    for r in range(4):
        a.swap32(AC + r, AC + 4 + r)
    a.op2("v_add_f32", SS, SS, SS + 1)
    pk("v_pk_add_f32", AC, AC, AC + 4)
    pk("v_pk_add_f32", AC + 2, AC + 2, AC + 6)
    a.op1("v_mov_b32", SS + 1, SS)
    a.swap16(AC, AC + 2)
    a.swap16(AC + 1, AC + 3)
    a.swap16(SS, SS + 1)
    a.op2("v_add_f32", SS, SS, SS + 1)
    pk("v_pk_add_f32", AC, AC, AC + 2)
    a.op1("v_rcp_f32", SS, SS, kind="trans")
    pkb("v_pk_mul_f32", AC, SS, AC)
    a.op2e("v_cvt_pk_bf16_f32", AC, AC, AC + 1)
    dsw(AC, 1, 9, L_ON)
    a.raw("s_waitcnt lgkmcnt(0)")
    AM, D0 = 16, 32
    for c in range(4):
        dsr(AM + 4 * c, 4, 116 + c, 0)
    for c in range(4):
        a.raw(f"s_waitcnt lgkmcnt({3 - c})")
        for t in range(2):
            a.mfma16(D0 + 4 * t, AM + 4 * c, WP3 + 4 * (2 * c + t), None if c == 0 else D0 + 4 * t)
    for b in range(2):
        for t in range(2):
            a.cndmask(T + 2 * b + t, D0 + 4 * t + 2 * b, D0 + 4 * t + 2 * b + 1, "s[14:15]")
    a.allreduce("v_add_f32", [T, T + 1, T + 2, T + 3], ["row_ror:8"], [])
    a.raw("s_mov_b32 exec_lo, 0x00ff00ff")
    a.raw("s_mov_b32 exec_hi, 0x00ff00ff")
    dsw(T, 4, 11, L_P3)
    a.raw("s_mov_b64 exec, -1")
    a.raw("s_waitcnt lgkmcnt(0)")
    a.raw("s_barrier")
    a.raw("s_cmp_lg_u32 s3, 2")
    a.raw("s_cbranch_scc1 L_exit")
    for w in range(4):
        dsr(T + 4 * w, 4, 12, L_P3 + 512 * w)
    a.raw("s_waitcnt lgkmcnt(0)")
    for h in range(2):
        pk("v_pk_add_f32", T + 2 * h, T + 2 * h, T + 4 + 2 * h)
        pk("v_pk_add_f32", T + 8 + 2 * h, T + 8 + 2 * h, T + 12 + 2 * h)
    for h in range(2):
        pk("v_pk_add_f32", T + 2 * h, T + 2 * h, T + 8 + 2 * h)
    a.swap32(T, T + 2)
    a.swap32(T + 1, T + 3)
    pk("v_pk_add_f32", T, T, T + 2)
    for r in range(2):
        a.op2("v_min_u32", T + r, "-2", T + r)
    bstore(T, 2, 13, R_WS, soff="s12", flags="sc1")
    stamp(2)
    a.raw("s_branch L_exit")

    a.label("L_ffn")
    a.op2("v_lshrrev_b32", 2, "3", 0)
    a.op2("v_and_b32", 4, "3", 0)
    a.op3("v_lshl_add_u32", 2, 2, "2", 4)
    a.op2("v_lshlrev_b32", 2, "4", 2)
    a.op2("v_and_b32", 5, "4", 0)
    a.op3("v_lshl_add_u32", 120, 5, "8", 2)
    a.op3("v_lshl_add_u32", 2, 3, "2", 4)
    a.raw("s_lshl_b32 s6, s3, 7")
    a.op3("v_lshl_add_u32", 121, 2, "3", "s6")
    a.op3("v_lshl_add_u32", 121, 5, "8", 121)
    a.raw("s_lshl_b32 s6, s3, 8")
    a.op3("v_lshl_add_u32", 122, 2, "4", "s6")
    n32_masks(2)
    n32_out_addr(119, 2)
    W1R, W1P, W2R, W2P, C, T = 208, 36, 128, 160, 96, 64

    def ffn_flags():
        a.op2("v_lshlrev_b32", 6, "2", 0)
        a.raw("s_cmp_lg_u32 s3, 0")
        a.raw("s_cbranch_scc1 L_f_nf")
        poll_flags(6, 0, "0xff", 5, sleep=16)
        a.label("L_f_nf")
        a.raw("s_barrier")
    if opts.get("flate", 0) == 1:
        ffn_flags()
    if opts.get("flate", 0) == 3:
        a.raw("s_cmp_lg_u32 s3, 0")
        a.raw("s_cbranch_scc1 L_f_nf3")
        poll_flags(123, 0, "1", 5, sleep=8)
        a.raw("s_lshl_b32 s62, s14, 11")
        a.raw(f"s_add_u32 s62, s62, {OB}")
        doorbell("s62", 5, lanes="1", sleep=8)
        a.label("L_f_nf3")
        a.raw("s_barrier")
    if opts.get("flate", 0) == 2:
        a.raw("s_cmp_lg_u32 s3, 0")
        a.raw("s_cbranch_scc1 L_f_nf0")
        poll_flags(123, 0, "1", 5, sleep=8)
        a.label("L_f_nf0")
        a.raw("s_barrier")
    if not EARLY:
        issue_ffn()
    a.op2("v_and_b32", 4, "31", 0)
    a.op2("v_and_b32", 5, "32", 0)
    a.op2("v_lshlrev_b32", 5, "7", 5)
    a.op3("v_lshl_add_u32", 8, 4, "4", 5)
    a.op2("v_and_b32", 5, "15", 0)
    a.raw("s_lshl_b32 s6, s3, 7")
    a.op3("v_lshl_add_u32", 9, 5, "3", "s6")
    a.op2("v_and_b32", 5, "16", 0)
    a.op3("v_lshl_add_u32", 9, 5, "6", 9)
    a.op2("v_and_b32", 6, "3", 0)
    a.op3("v_lshl_add_u32", 6, 6, "5", "s6")
    a.op3("v_lshl_add_u32", 6, 5, "6", 6)
    a.op2("v_and_b32", 5, "12", 0)
    a.op2("v_add_u32", 6, 6, 5)
    a.op2("v_and_b32", 5, "32", 0)
    a.op2("v_lshrrev_b32", 5, "1", 5)
    a.op2("v_add_u32", 6, 6, 5)
    a.op2("v_lshrrev_b32", 5, "2", 5)
    a.op2("v_add_u32", 9, 9, 5)
    bload(10, 1, 6, R_A)
    a.raw("s_lshl_b32 s6, s3, 9")
    for k in range(4):
        a.raw(f"s_add_u32 s{8 + k}, s6, {AB + k * 8192}")
    a.op2("v_and_b32", 5, "1", 0)
    a.op2("v_lshlrev_b32", 5, "6", 5)
    a.op3("v_lshl_add_u32", 5, 3, "4", 5)
    a.op2("v_lshrrev_b32", 6, "1", 0)
    a.op2("v_and_b32", 6, "7", 6)
    a.op1("v_mov_b32", 4, "0x80")
    for c in range(8):
        a.cmp("v_cmp_eq_u32", "vcc", str(c), 6)
        a.cndmask(192 + c, 4, 5, "vcc")
    for r in range(4):
        a.op1("v_mov_b32", 12 + r, "0")
    dsw(12, 4, 4, L_G)
    a.op2("v_and_b32", 5, "15", 0)
    a.op2("v_lshrrev_b32", 5, "2", 5)
    a.op3("v_lshl_add_u32", 5, 3, "2", 5)
    a.op2("v_lshlrev_b32", 5, "12", 5)
    a.op2("v_and_b32", 6, "3", 0)
    a.op3("v_lshl_add_u32", 200, 6, "4", 5)
    a.raw("s_lshl_b32 s12, s3, 16")
    a.raw(f"s_lshl_b32 s6, s{S_PHI}, 6")
    a.raw("s_add_u32 s12, s12, s6")
    a.raw(f"s_add_u32 s12, s12, {FB}")
    a.op2("v_lshlrev_b32", 6, "2", 0)
    a.raw("s_waitcnt vmcnt(0)")
    stamp(1)
    perm4(W1R, W1P)
    perm8(W2R, W2P)
    unpack(12, 10, 1)
    if opts.get("flate", 0) != 1:
        ffn_flags()
    stamp(3)
    if opts.get("db", 0) & 2:
        a.raw("s_lshl_b32 s6, s4, 12")
        a.raw("s_add_u32 s62, s8, s6")
        doorbell("s62", 5, lanes="1")
    poll_masked([(C + 4 * k, 8, f"s{8 + k}", 0) for k in range(4)], 4, sleep=opts.get("sleep_a", 2))
    stamp(5)
    pk("v_pk_add_f32", C, C, C + 4)
    pk("v_pk_add_f32", C + 2, C + 2, C + 6)
    pk("v_pk_add_f32", C + 8, C + 8, C + 12)
    pk("v_pk_add_f32", C + 10, C + 10, C + 14)
    pk("v_pk_add_f32", C, C, C + 8)
    pk("v_pk_add_f32", C + 2, C + 2, C + 10)
    a.swap32(C, C + 2)
    a.swap32(C + 1, C + 3)
    pk("v_pk_add_f32", C, C, C + 2)
    a.op2e("v_cvt_pk_bf16_f32", C + 4, C, C + 1)
    unpack(C, C + 4, 1)
    pk("v_pk_add_f32", C, C, 12)
    a.op2e("v_cvt_pk_bf16_f32", C + 4, C, C + 1)
    dsw(C + 4, 1, 9, L_H)
    a.raw("s_waitcnt lgkmcnt(0)")
    a.raw("s_barrier")
    for s in range(2):
        dsr(XS + 4 * s, 4, 120, L_H + 512 * s)
    dsr(XA, 2, 121, L_H)
    a.raw("s_waitcnt lgkmcnt(0)")
    ln_norm4(XS, XA, 64, 80)
    n32_core(XA, W1P, 64, 80, 122)
    a.raw("s_waitcnt lgkmcnt(0)")
    a.raw("s_barrier")
    a.raw("s_cmp_ge_u32 s3, 4")
    a.raw("s_cbranch_scc1 L_exit")
    n32_final(7, 80)
    round_bf16(80, 80)
    a.op2("v_mul_f32", 81, "0xbfb8aa3b", 80)
    a.op1("v_exp_f32", 81, 81, kind="trans")
    a.op2("v_add_f32", 81, "1.0", 81)
    a.op1("v_rcp_f32", 81, 81, kind="trans")
    a.op2("v_mul_f32", 80, 80, 81)
    a.op2e("v_cvt_pk_bf16_f32", 80, 80, 80)
    dsw(80, 1, 119, L_G, op="ds_write_b16")
    a.raw("s_waitcnt lgkmcnt(0)")
    stamp(4)
    for c in range(8):
        dsr(84 + 4 * c, 4, 192 + c, L_G)
    for c in range(8):
        a.raw(f"s_waitcnt lgkmcnt({7 - c})")
        a.mfma16(64, 84 + 4 * c, W2P + 4 * c, None if c == 0 else 64)
    for r in range(4):
        a.op2("v_min_u32", 64 + r, "-2", 64 + r)
    bstore(64, 4, 200, R_WS, soff="s12", flags="sc1")
    stamp(6)
    a.label("L_exit")
    if opts.get("probe"):
        a.raw("s_cmp_lg_u32 s97, 1")
        a.raw("s_cbranch_scc1 L_end")
        a.raw(f"s_cmp_lt_u32 s2, {opts.get('plo', 0)}")
        a.raw("s_cbranch_scc1 L_end")
        a.raw(f"s_cmp_ge_u32 s2, {opts.get('phi', 256)}")
        a.raw("s_cbranch_scc1 L_end")
        if "pg" in opts:
            a.raw(f"s_cmp_lg_u32 s4, {opts['pg']}")
            a.raw("s_cbranch_scc1 L_end")
        a.raw("s_waitcnt lgkmcnt(0)")
        a.label("L_prb")
        a.raw("s_sleep 8")
        a.raw("s_memrealtime s[6:7]")
        a.raw("s_waitcnt lgkmcnt(0)")
        a.raw("s_sub_u32 s6, s6, s98")
        a.raw("s_cmp_lt_u32 s6, 2000")
        a.raw("s_cbranch_scc1 L_prb")
    dump_stamps()
    a.label("L_end")
    a.raw("s_endpgm")

    if opts.get("order", 0) == 1:
        L, m = a.lines, marks
        pro, t0, a0, rest = L[:m["tail0"]], L[m["tail0"]:m["att0"]], L[m["att0"]:m["tail1"]], L[m["tail1"]:]
        pro[-1] = "    s_cbranch_scc1 L_tail0"
        a.lines = pro + a0 + ["L_tail0:"] + t0 + rest

    hdr = open(f"cdna_kernels/{NAME}.s.ref").read().split("; Override launch")[0]
    out = hdr
    out += "; Override launch geometry by editing the next line (default: block=256,\n"
    out += "; grid=ceil(out_elems/256), lds=0). Harness parses it; keep it on one line.\n"
    out += f"; @launch grid=(256,1,1) block=(512,1,1) lds={LDS_BYTES}\n"
    out += '.amdgcn_target "amdgcn-amd-amdhsa--gfx950"\n.text\n'
    out += f".globl {NAME}_kernel\n.p2align 8\n.type {NAME}_kernel,@function\n{NAME}_kernel:\n"
    out += a.text()
    out += '.section .rodata,"a"\n.p2align 6\n'
    out += f".amdhsa_kernel {NAME}_kernel\n"
    out += "  .amdhsa_next_free_vgpr 232\n  .amdhsa_next_free_sgpr 102\n  .amdhsa_accum_offset 232\n"
    out += "  .amdhsa_group_segment_fixed_size 0\n  .amdhsa_kernarg_size 88\n  .amdhsa_user_sgpr_count 2\n"
    out += "  .amdhsa_user_sgpr_kernarg_segment_ptr 1\n  .amdhsa_system_sgpr_workgroup_id_x 1\n"
    out += "  .amdhsa_float_denorm_mode_32 3\n"
    out += ".end_amdhsa_kernel\n"
    return out


if __name__ == "__main__":
    debug = "--debug" in sys.argv
    path = [x for x in sys.argv[1:] if not x.startswith("--")]
    path = path[0] if path else f"cdna_kernels/{NAME}.s"
    opts = {}
    for x in sys.argv[1:]:
        if x.startswith("--opt="):
            k, v = x[6:].split(":")
            opts[k] = int(v) if v.lstrip("-").isdigit() else v
    open(path, "w").write(gen(debug, opts))
    print("wrote", path)
```
